```python
import torch

def _softmax(x, axis=-1):
    return torch.softmax(x, dim=axis)
def _gelu(x):
    return torch.nn.functional.gelu(x, approximate="tanh")
def _silu(x):
    return torch.nn.functional.silu(x)
def _sigmoid(x):
    return torch.sigmoid(x)
def _layernorm(x, axis=-1, eps=1e-5):
    m = x.mean(dim=axis, keepdim=True)
    v = x.var(dim=axis, keepdim=True, unbiased=False)
    return (x - m) / torch.sqrt(v + eps)
def _scatter_add(tgt, idx, src, axis=0):
    return tgt.clone().index_add_(axis, idx, src)
def _segment_sum(src, seg, n):
    out = torch.zeros((n,) + src.shape[1:], dtype=src.dtype)
    return out.index_add_(0, seg, src)
def _pad(x, pw):
    flat = tuple(v for pair in reversed(pw) for v in pair)
    return torch.nn.functional.pad(x, flat)

kernel_name = 'sequential_preLN__ssm_conv_s4__mixer_s_mlp__prompt'

def setup_inputs():

    _w = (lambda a: (lambda t: t.to(torch.bfloat16) if t.is_floating_point() else t)(torch.as_tensor(a)))
    def _A_setup():
        B, L, D, N = 1, 2048, 640, 192
        A_re = -(lambda _x: torch.exp(torch.as_tensor(_x)))((lambda *s: torch.randn(*s, dtype=torch.bfloat16) * 6.4)(D, N))
        A_im = torch.pi * (lambda *s: torch.randn(*s, dtype=torch.bfloat16) * 0.05)(D, N)
        B_re = (lambda *s: torch.randn(*s, dtype=torch.bfloat16) * 0.05)(D, N)
        B_im = (lambda *s: torch.randn(*s, dtype=torch.bfloat16) * 0.05)(D, N)
        C_re = (lambda *s: torch.randn(*s, dtype=torch.bfloat16) * 0.05)(D, N)
        C_im = (lambda *s: torch.randn(*s, dtype=torch.bfloat16) * 0.05)(D, N)
        log_dt = (lambda *s: torch.randn(*s, dtype=torch.bfloat16) * 0.05)(D) * 0.5 - 4.0
        Dskip = (lambda *s: torch.randn(*s, dtype=torch.bfloat16) * 0.05)(D)
        return {
            "u": _w((lambda *s: torch.randn(*s, dtype=torch.bfloat16) * 0.05)(B, L, D)),
            "A_re": _w(A_re),
            "A_im": _w(A_im),
            "B_re": _w(B_re),
            "B_im": _w(B_im),
            "C_re": _w(C_re),
            "C_im": _w(C_im),
            "log_dt": _w(log_dt),
            "Dskip": _w(Dskip),
        }
    _A_in = _A_setup()

    def _B_setup():
        B, S, D, F = 1, 2048, 640, 1536
        return {
            "x":  _w((lambda *s: torch.randn(*s, dtype=torch.bfloat16) * 0.05)(B, S, D)),
            "w1": _w((lambda *s: torch.randn(*s, dtype=torch.bfloat16) * 6.4)(D, D) * (D ** -0.5)),
            "w2": _w((lambda *s: torch.randn(*s, dtype=torch.bfloat16) * 6.4)(D, D) * (D ** -0.5)),
            "w3": _w((lambda *s: torch.randn(*s, dtype=torch.bfloat16) * 6.4)(D, F) * (D ** -0.5)),
            "w4": _w((lambda *s: torch.randn(*s, dtype=torch.bfloat16) * 6.4)(F, D) * (F ** -0.5)),
        }
    _B_in = _B_setup()

    return {
        "A_u": _A_in["u"],
        "A_A_re": _A_in["A_re"],
        "A_A_im": _A_in["A_im"],
        "A_B_re": _A_in["B_re"],
        "A_B_im": _A_in["B_im"],
        "A_C_re": _A_in["C_re"],
        "A_C_im": _A_in["C_im"],
        "A_log_dt": _A_in["log_dt"],
        "A_Dskip": _A_in["Dskip"],
        "B_x": _B_in["x"],
        "B_w1": _B_in["w1"],
        "B_w2": _B_in["w2"],
        "B_w3": _B_in["w3"],
        "B_w4": _B_in["w4"],
    }

def reference(A_u, A_A_re, A_A_im, A_B_re, A_B_im, A_C_re, A_C_im, A_log_dt, A_Dskip, B_x, B_w1, B_w2, B_w3, B_w4):
    def _A_ref(u, A_re, A_im, B_re, B_im, C_re, C_im, log_dt, Dskip):
        Bsz, L, D = u.shape
        dt = torch.exp(log_dt)[:, None]
        A = A_re + 1j * A_im
        Bc = B_re + 1j * B_im
        Cc = C_re + 1j * C_im
        logdA = dt * A
        dB = dt * Bc
        l = (lambda x, dt: x.to(dt))(torch.arange(L), A_re.dtype)
        P = torch.exp(logdA[:, :, None] * l[None, None, :])
        K = torch.einsum("dn,dnl,dn->dl", Cc, P, dB).real
        L2 = 2 * L
        Kp = _pad(K, ((0, 0), (0, L)))
        up = (lambda x, *d: x.permute(*d))(u, 0, 2, 1)
        up = _pad(up, ((0, 0), (0, 0), (0, L)))
        Kf = (lambda x, axes=(-2,-1): torch.fft.rfft2(x.float(), dim=axes))(Kp[:, None, :], axes=(-2, -1))
        Uf = (lambda x, axes=(-2,-1): torch.fft.rfft2(x.float(), dim=axes))(up[:, :, None, :], axes=(-2, -1))
        Yf = Uf * Kf[None, :, :, :]
        y = (lambda x, s, axes=(-2,-1): torch.fft.irfft2(x, s=s, dim=axes).to(torch.bfloat16))(Yf, (1, L2), axes=(-2, -1))[:, :, 0, :L]
        y = (lambda x, *d: x.permute(*d))(y, 0, 2, 1) + u * Dskip[None, None, :]
        return y

    def _B_ref(x, w1, w2, w3, w4):
        B, S, D = x.shape
        h = _gelu(_layernorm(x, axis=-1) @ w1)
        c = D // 4
        g0 = _pad(h[:, :, 0*c:1*c], ((0, 0), (1, 0), (0, 0)))[:, :S, :]
        g1 = _pad(h[:, :, 1*c:2*c], ((0, 0), (0, 1), (0, 0)))[:, 1:, :]
        g2 = _pad(h[:, :, 2*c:3*c], ((0, 0), (2, 0), (0, 0)))[:, :S, :]
        g3 = _pad(h[:, :, 3*c:   ], ((0, 0), (0, 2), (0, 0)))[:, 2:, :]
        hs = torch.concatenate([g0, g1, g2, g3], axis=-1) @ w2
        x1 = x + hs
        h2 = _gelu(_layernorm(x1, axis=-1) @ w3) @ w4
        return x1 + h2

    x = A_u
    h = x + _A_ref(_layernorm(x, axis=-1), A_A_re, A_A_im, A_B_re, A_B_im, A_C_re, A_C_im, A_log_dt, A_Dskip)
    h2 = h + _B_ref(_layernorm(h, axis=-1), B_w1, B_w2, B_w3, B_w4)
    return h2
```

```python
class Asm:
    def __init__(self):
        self.lines = []
        self._lbl = 0
    def __call__(self, s):
        for ln in s.strip("\n").split("\n"):
            self.lines.append("    " + ln.strip())
    def raw(self, s):
        self.lines.append(s)
    def label(self, l):
        self.lines.append(l + ":")
    def newlabel(self, p="L"):
        self._lbl += 1
        return f"{p}_{self._lbl}"
    def comment(self, s):
        self.lines.append("    ; " + s)
    def text(self):
        return "\n".join(self.lines) + "\n"

def vr(b, n=1):
    return f"v{b}" if n == 1 else f"v[{b}:{b+n-1}]"
def ar(b, n=1):
    return f"a{b}" if n == 1 else f"a[{b}:{b+n-1}]"
def sr(b, n=1):
    return f"s{b}" if n == 1 else f"s[{b}:{b+n-1}]"

import struct
def f2u(x):
    return struct.unpack("<I", struct.pack("<f", x))[0]
def fhex(x):
    return "0x%08x" % f2u(x)

def srd(a, d, base, off, size):
    if off:
        a(f"s_add_u32 s{d}, s{base}, 0x{off:x}")
        a(f"s_addc_u32 s{d+1}, s{base+1}, 0")
    else:
        a(f"s_mov_b32 s{d}, s{base}")
        a(f"s_mov_b32 s{d+1}, s{base+1}")
    a(f"s_mov_b32 s{d+2}, 0x{size:x}")
    a(f"s_mov_b32 s{d+3}, 0x00020000")

def kernel_begin(a, name):
    a.raw(f".globl {name}")
    a.raw(".p2align 8")
    a.raw(f".type {name},@function")
    a.label(name)

def kernel_desc(name, vgpr, accum, sgpr=102):
    return f""".amdhsa_kernel {name}
  .amdhsa_next_free_vgpr {vgpr}
  .amdhsa_next_free_sgpr {sgpr}
  .amdhsa_accum_offset {accum}
  .amdhsa_group_segment_fixed_size 0
  .amdhsa_kernarg_size 136
  .amdhsa_user_sgpr_count 2
  .amdhsa_user_sgpr_kernarg_segment_ptr 1
  .amdhsa_system_sgpr_workgroup_id_x 1
.end_amdhsa_kernel
"""
```

```python
from asmlib import *
from layout import *
import math
LOG2E = 1.4426950408889634

def pack_common(a, B, sb, ns, magic):
    t0, t1 = B + 9, B + 10
    a(f"s_mul_hi_u32 s{t0}, s{sb}, s{magic}")
    a(f"s_mul_i32 s{t1}, s{t0}, s{ns}")
    a(f"s_sub_u32 s{t1}, s{sb}, s{t1}")
    a(f"s_mul_i32 s{B+5}, s{t0}, s{B+4}")
    a(f"s_lshl_b32 s{B+5}, s{B+5}, 5")
    a(f"s_lshl_b32 s{sb}, s{t1}, 7")
    a(f"s_add_u32 s{B+5}, s{B+5}, s{sb}")
    a(f"s_mul_i32 s{sb}, s{t1}, s{B+7}")
    a(f"s_lshl_b32 s{sb}, s{sb}, 2")
    a(f"s_add_u32 s{B+6}, s{B+6}, s{sb}")
    a(f"s_lshl_b32 s{sb}, s{t0}, 10")
    a(f"s_add_u32 s{B+6}, s{B+6}, s{sb}")
    a(f"s_mul_i32 s{sb}, s{t0}, {NT*4}")
    a(f"s_add_u32 s{B+8}, s{B+8}, s{sb}")
    a(f"s_lshl_b32 s{sb}, s{t1}, 8")
    a(f"s_add_u32 s{B+8}, s{B+8}, s{sb}")

def pack_issue(a, B, vlane, vtmp, ldsbase_s, ldsoff):
    a(f"v_lshrrev_b32 v{vtmp}, 3, v{vlane}")
    a(f"v_mul_lo_u32 v{vtmp}, v{vtmp}, s{B+4}")
    a(f"v_and_b32 v{vtmp+1}, 7, v{vlane}")
    a(f"v_lshl_add_u32 v{vtmp}, v{vtmp+1}, 4, v{vtmp}")
    a(f"s_lshl_b32 s{B+9}, s{B+4}, 3")
    for m in range(4):
        a(f"s_add_u32 m0, s{ldsbase_s}, {ldsoff + m*1024}")
        if m:
            a(f"s_add_u32 s{B+5}, s{B+5}, s{B+9}")
        else:
            a("s_nop 0")
        a(f"buffer_load_dwordx4 v{vtmp}, s[{B}:{B+3}], s{B+5} offen lds")

def pack_finish(a, B, vrd, vst, vF, wssrd, ldsoff, colsum=None):
    for jj in range(4):
        for h in range(2):
            a(f"ds_read_b64_tr_b16 v[{vF+4*jj+2*h}:{vF+4*jj+2*h+1}], v{vrd} offset:{ldsoff + h*512 + jj*32}")
    for jj in range(4):
        a(f"s_waitcnt lgkmcnt({6-2*jj})")
        a(f"buffer_store_dwordx4 v[{vF+4*jj}:{vF+4*jj+3}], v{vst}, s[{wssrd}:{wssrd+3}], s{B+6} offen")
        if colsum:
            vsel, vD, vcs = colsum
            c = "0" if jj == 0 else f"v[{vD}:{vD+3}]"
            a(f"v_mfma_f32_16x16x32_bf16 v[{vD}:{vD+3}], v[{vF+4*jj}:{vF+4*jj+3}], v[{vsel+4*jj}:{vsel+4*jj+3}], {c}")
        if jj < 3:
            a(f"s_add_u32 s{B+6}, s{B+6}, s{B+7}")
    if colsum:
        vsel, vD, vcs = colsum
        a("s_nop 7")
        a(f"buffer_store_dwordx4 v[{vD}:{vD+3}], v{vcs}, s[{wssrd}:{wssrd+3}], s{B+8} offen")
        a("s_nop 1")

def pack_lane_setup(a, vlane, vrd, vst, vt, ldsbase_s):
    a(f"v_lshrrev_b32 v{vt}, 4, v{vlane}")
    a(f"v_lshlrev_b32 v{vrd}, 10, v{vt}")
    a(f"v_bfe_u32 v{vt}, v{vlane}, 2, 2")
    a(f"v_lshl_add_u32 v{vrd}, v{vt}, 7, v{vrd}")
    a(f"v_and_b32 v{vt}, 3, v{vlane}")
    a(f"v_lshl_add_u32 v{vrd}, v{vt}, 3, v{vrd}")
    a(f"v_add_u32 v{vrd}, s{ldsbase_s}, v{vrd}")
    a(f"v_lshlrev_b32 v{vst}, 4, v{vlane}")

K1_WGS = 768
KG_ROW = 272
KG_WAVE = 53 * KG_ROW
K1_LDS = 3 * KG_WAVE + 8192
LN_ROW = 2624

def red32(a, ra, rb, ta, tb):
    a("s_nop 1")
    for ctrl in ("quad_perm:[1,0,3,2]", "quad_perm:[2,3,0,1]", "row_half_mirror", "row_mirror"):
        a(f"v_add_f32_dpp v{ra}, v{ra}, v{ra} {ctrl} row_mask:0xf bank_mask:0xf")
        a(f"v_add_f32_dpp v{rb}, v{rb}, v{rb} {ctrl} row_mask:0xf bank_mask:0xf")
        a("s_nop 0")
    a(f"v_mov_b32 v{ta}, v{ra}")
    a(f"v_mov_b32 v{tb}, v{rb}")
    a("s_nop 1")
    a(f"v_permlane16_swap_b32 v{ra}, v{ta}")
    a(f"v_permlane16_swap_b32 v{rb}, v{tb}")
    a("s_nop 0")
    a(f"v_add_f32 v{ra}, v{ra}, v{ta}")
    a(f"v_add_f32 v{rb}, v{rb}, v{tb}")

def gen_k1(a, name):
    kernel_begin(a, name)
    a(f"s_cmp_ge_u32 s2, {K1_WGS}")
    a("s_cbranch_scc1 K1_END")
    a("s_load_dwordx16 s[16:31], s[0:1], 0")
    a("s_load_dwordx8 s[32:39], s[0:1], 80")
    a("s_load_dwordx2 s[40:41], s[0:1], 128")
    a("v_and_b32 v1, 63, v0")
    a("v_lshrrev_b32 v2, 6, v0")
    a("s_mov_b32 s42, 0xffff0000")
    a("v_readfirstlane_b32 s3, v2")
    a("s_cmp_lt_u32 s2, 128")
    a("s_cbranch_scc0 K1_KGEN")
    a("s_and_b32 s4, s2, 7")
    a("s_lshr_b32 s5, s2, 3")
    a("s_lshl_b32 s4, s4, 2")
    a("s_and_b32 s6, s5, 3")
    a("s_add_u32 s4, s4, s6")
    a("s_lshr_b32 s5, s5, 2")
    a("s_lshl_b32 s6, s4, 6")
    a("s_lshl_b32 s7, s5, 3")
    a("s_add_u32 s6, s6, s7")
    a("v_lshrrev_b32 v3, 5, v0")
    a("v_and_b32 v4, 31, v0")
    a("v_add_u32 v5, s6, v3")
    a("s_movk_i32 s7, 1280")
    a("v_mul_lo_u32 v5, v5, s7")
    a("v_lshl_add_u32 v5, v4, 3, v5")
    a("s_mov_b32 s7, 40960")
    a("s_waitcnt lgkmcnt(0)")
    srd(a, 8, 16, 0, ACT)
    XA, XB, FA, FB = 10, 20, 30, 50
    for i in range(5):
        a(f"buffer_load_dwordx2 v[{XA+2*i}:{XA+2*i+1}], v5, s[8:11], 0 offen offset:{256*i}")
    for i in range(5):
        a(f"buffer_load_dwordx2 v[{XB+2*i}:{XB+2*i+1}], v5, s[8:11], s7 offen offset:{256*i}")
    srd(a, 12, 40, WS["UT"][0], 2 * ACT)
    a(f"s_movk_i32 s7, {LN_ROW}")
    a("v_mul_lo_u32 v6, v3, s7")
    a("v_lshl_add_u32 v6, v4, 4, v6")
    a("v_bfe_u32 v8, v1, 2, 2")
    a("v_mul_lo_u32 v7, v8, s7")
    a("v_lshrrev_b32 v8, 4, v1")
    a("v_lshl_add_u32 v7, v8, 5, v7")
    a("v_and_b32 v8, 3, v1")
    a("v_lshl_add_u32 v7, v8, 3, v7")
    a("s_mul_i32 s7, s3, 640")
    a("v_add_u32 v7, s7, v7")
    a("v_lshrrev_b32 v8, 1, v1")
    a("s_mul_i32 s7, s3, 160")
    a("v_add_u32 v8, s7, v8")
    a("v_lshlrev_b32 v9, 12, v8")
    a("v_and_b32 v8, 1, v1")
    a("v_lshl_add_u32 v9, v8, 4, v9")
    a("s_lshl_b32 s7, s5, 10")
    a("s_lshl_b32 s43, s4, 5")
    a("s_add_u32 s7, s7, s43")
    a("v_add_u32 v9, s7, v9")
    a("s_mov_b32 s44, 0x05040100")
    a("s_mov_b32 s45, 0x07060302")
    SA, SB, TA, TB = 70, 72, 74, 76
    for (X, Fr, S, cnt) in ((XA, FA, SA, 5), (XB, FB, SB, 0)):
        a(f"s_waitcnt vmcnt({cnt})")
        for m in range(10):
            a(f"v_lshlrev_b32 v{Fr+2*m}, 16, v{X+m}")
            a(f"v_and_b32 v{Fr+2*m+1}, s42, v{X+m}")
        a(f"v_pk_add_f32 v[{S}:{S+1}], v[{Fr}:{Fr+1}], v[{Fr+2}:{Fr+3}]")
        for m in range(2, 10):
            a(f"v_pk_add_f32 v[{S}:{S+1}], v[{S}:{S+1}], v[{Fr+2*m}:{Fr+2*m+1}]")
        a(f"v_add_f32 v{S}, v{S}, v{S+1}")
    red32(a, SA, SB, TA, TB)
    a(f"s_mov_b32 s46, {fhex(1.0/640)}")
    a(f"v_mul_f32 v{SA}, s46, v{SA}")
    a(f"v_mul_f32 v{SB}, s46, v{SB}")
    QA, QB = 78, 80
    for (Fr, S, Q, T) in ((FA, SA, QA, TA), (FB, SB, QB, TB)):
        for m in range(10):
            a(f"v_pk_add_f32 v[{T}:{T+1}], v[{Fr+2*m}:{Fr+2*m+1}], v[{S}:{S+1}] op_sel_hi:[1,0] neg_lo:[0,1] neg_hi:[0,1]")
            if m == 0:
                a(f"v_pk_mul_f32 v[{Q}:{Q+1}], v[{T}:{T+1}], v[{T}:{T+1}]")
            else:
                a(f"v_pk_fma_f32 v[{Q}:{Q+1}], v[{T}:{T+1}], v[{T}:{T+1}], v[{Q}:{Q+1}]")
        a(f"v_add_f32 v{Q}, v{Q}, v{Q+1}")
    red32(a, QA, QB, TA, TB)
    a(f"v_mul_f32 v{QA}, s46, v{QA}")
    a(f"v_mul_f32 v{QB}, s46, v{QB}")
    a(f"v_cvt_pk_bf16_f32 v{TA}, v{SA}, v{SB}")
    a(f"v_lshlrev_b32 v{SA}, 16, v{TA}")
    a(f"v_and_b32 v{SB}, s42, v{TA}")
    a(f"v_cvt_pk_bf16_f32 v{TA}, v{QA}, v{QB}")
    a(f"v_lshlrev_b32 v{QA}, 16, v{TA}")
    a(f"v_and_b32 v{QB}, s42, v{TA}")
    a(f"v_add_f32 v{QA}, {fhex(1e-5)}, v{QA}")
    a(f"v_add_f32 v{QB}, {fhex(1e-5)}, v{QB}")
    a(f"v_cvt_pk_bf16_f32 v{TA}, v{QA}, v{QB}")
    a(f"v_lshlrev_b32 v{QA}, 16, v{TA}")
    a(f"v_and_b32 v{QB}, s42, v{TA}")
    a(f"v_sqrt_f32 v{QA}, v{QA}")
    a(f"v_sqrt_f32 v{QB}, v{QB}")
    a("s_nop 0")
    a(f"v_cvt_pk_bf16_f32 v{TA}, v{QA}, v{QB}")
    a(f"v_lshlrev_b32 v{QA}, 16, v{TA}")
    a(f"v_and_b32 v{QB}, s42, v{TA}")
    INV = 82
    a(f"v_rcp_f32 v{INV}, v{QA}")
    a(f"v_rcp_f32 v{INV+1}, v{QB}")
    for (Fr, S) in ((FA, SA), (FB, SB)):
        for m in range(10):
            a(f"v_pk_add_f32 v[{Fr+2*m}:{Fr+2*m+1}], v[{Fr+2*m}:{Fr+2*m+1}], v[{S}:{S+1}] op_sel_hi:[1,0] neg_lo:[0,1] neg_hi:[0,1]")
    UO, XO = 84, 104
    for e in range(20):
        t = TA + 2 * (e & 1)
        a(f"v_cvt_pk_bf16_f32 v{UO+e}, v{FA+e}, v{FB+e}")
        a(f"v_lshlrev_b32 v{t}, 16, v{UO+e}")
        a(f"v_and_b32 v{t+1}, s42, v{UO+e}")
        a(f"v_pk_mul_f32 v[{t}:{t+1}], v[{t}:{t+1}], v[{INV}:{INV+1}]")
        a(f"v_cvt_pk_bf16_f32 v{UO+e}, v{t}, v{t+1}")
        if e % 4 == 3:
            i = e // 4
            a(f"ds_write_b128 v6, v[{UO+4*i}:{UO+4*i+3}] offset:{512*i}")
    for m in range(10):
        a(f"v_perm_b32 v{XO+2*m}, v{XB+m}, v{XA+m}, s44")
        a(f"v_perm_b32 v{XO+2*m+1}, v{XB+m}, v{XA+m}, s45")
        if m % 2 == 1:
            i = m // 2
            a(f"ds_write_b128 v6, v[{XO+4*i}:{XO+4*i+3}] offset:{8*LN_ROW + 512*i}")
    a("s_waitcnt lgkmcnt(0)")
    a("s_barrier")
    R = 10
    for arr in range(2):
        for p in range(5):
            for h in range(2):
                d = R + (arr * 5 + p) * 4 + 2 * h
                a(f"ds_read_b64_tr_b16 v[{d}:{d+1}], v7 offset:{arr*8*LN_ROW + h*4*LN_ROW + p*128}")
        a(f"s_mov_b32 s7, {arr*ACT}")
        for p in range(5):
            d = R + (arr * 5 + p) * 4
            a(f"s_waitcnt lgkmcnt({8-2*p})")
            a(f"buffer_store_dwordx4 v[{d}:{d+3}], v9, s[12:15], s7 offen")
            if p < 4:
                a(f"s_add_u32 s7, s7, {32*4096}")
    a("s_endpgm")

    a.label("K1_KGEN")
    a("s_sub_u32 s4, s2, 128")
    a("s_cmp_eq_u32 s3, 3")
    a("s_cbranch_scc1 K1_PACK")
    a("s_mul_i32 s5, s4, 384")
    a("v_lshl_add_u32 v3, v0, 1, s5")
    a("s_lshl_b32 s5, s4, 1")
    a("v_mov_b32 v4, s5")
    a("s_waitcnt lgkmcnt(0)")
    P = 10
    a(f"global_load_ushort v{P+6}, v4, s[30:31]")
    for i in range(6):
        a(f"global_load_ushort v{P+i}, v3, s[{18+2*i}:{19+2*i}]")
    srd(a, 12, 40, WS["G"][0], WS["G"][1])
    a(f"s_mul_i32 s6, s3, {KG_WAVE}")
    a("v_lshl_add_u32 v5, v1, 2, s6")
    a("v_and_b32 v6, 31, v1")
    a("v_lshrrev_b32 v7, 5, v1")
    a(f"s_movk_i32 s7, {KG_ROW}")
    a("v_mul_lo_u32 v8, v6, s7")
    a("v_lshl_add_u32 v8, v7, 4, v8")
    a("v_add_u32 v8, s6, v8")
    PW0, PW1, PW2, PW3 = 20, 21, 22, 23
    a(f"v_lshlrev_b32 v{PW0}, 5, v6")
    a(f"v_lshl_add_u32 v{PW0}, v7, 4, v{PW0}")
    a(f"v_add_u32 v{PW0}, s6, v{PW0}")
    a("v_cmp_eq_u32 vcc, 1, v7")
    a(f"v_lshlrev_b32 v{PW3}, 4, v6")
    a(f"v_add_u32 v{PW1}, {256*4}, v{PW3}")
    a(f"v_add_u32 v{PW2}, {258*4}, v{PW3}")
    a(f"v_lshlrev_b32 v{PW3}, 3, v6")
    a(f"v_add_u32 v9, {384*4}, v{PW3}")
    a(f"v_cndmask_b32 v{PW1}, v{PW1}, v9, vcc")
    a(f"v_add_u32 v9, {448*4}, v{PW3}")
    a(f"v_cndmask_b32 v{PW2}, v{PW2}, v9, vcc")
    a(f"v_add_u32 v{PW1}, s6, v{PW1}")
    a(f"v_add_u32 v{PW2}, s6, v{PW2}")
    a(f"v_lshlrev_b32 v{PW3}, 2, v6")
    a(f"v_lshl_add_u32 v{PW3}, v7, 9, v{PW3}")
    a(f"v_add_u32 v{PW3}, s6, v{PW3}")
    TB0 = 4096 + 32
    GA = 24
    code128 = (f2u(128.0) >> 16)
    for rnd in range(2):
        g = GA + 9 * rnd
        a(f"v_lshlrev_b32 v9, 3, v0")
        a(f"v_sub_u32 v9, {2047 - 8*192*rnd}, v9")
        a("v_cvt_f32_i32 v42, v9")
        a("v_cmp_gt_i32 vcc, 256, v9")
        a(f"v_lshlrev_b32 v9, 1, v9")
        a(f"v_add_u32 v9, {TB0}, v9")
        for i in range(0, 9, 2):
            a(f"v_add_f32 v43, {fhex(-float(i))}, v42")
            a(f"v_add_f32 v44, {fhex(-float(i+1))}, v42")
            a("v_cvt_pk_bf16_f32 v45, v43, v44")
            for k in range(2):
                if i + k > 8: continue
                if k == 0:
                    a("v_and_b32 v43, 0xffff, v45")
                else:
                    a("v_lshrrev_b32 v43, 16, v45")
                a(f"v_lshlrev_b32 v43, 1, v43")
                a(f"v_add_u32 v43, {(TB0 + 2*(128 - code128)) & 0xffffffff}, v43")
                a(f"v_add_u32 v44, {(-2*(i+k)) & 0xffffffff}, v9") if (i + k) else a("v_mov_b32 v44, v9")
                a(f"v_cndmask_b32 v{g+i+k}, v43, v44, vcc")
    a("s_waitcnt vmcnt(0)")
    for i in range(7):
        a(f"v_lshlrev_b32 v{P+i}, 16, v{P+i}")
    ARE, AIM, BRE, BIM, CRE, CIM, LDT = range(P, P + 7)
    a(f"s_mov_b32 s43, {fhex(LOG2E)}")
    a(f"v_mul_f32 v{LDT}, s43, v{LDT}")
    a(f"v_exp_f32 v{LDT}, v{LDT}")
    a("s_nop 0")
    a(f"v_cvt_pk_bf16_f32 v{LDT}, v{LDT}, v{LDT}")
    a(f"v_lshlrev_b32 v{LDT}, 16, v{LDT}")
    a(f"v_mul_f32 v{ARE}, v{LDT}, v{ARE}")
    a(f"v_mul_f32 v{ARE}, s43, v{ARE}")
    a(f"v_mul_f32 v{AIM}, v{LDT}, v{AIM}")
    a(f"v_mul_f32 v{AIM}, 0.15915494, v{AIM}")
    a(f"v_mul_f32 v{BRE}, v{LDT}, v{BRE}")
    a(f"v_mul_f32 v{BIM}, v{LDT}, v{BIM}")
    Wr, Wi = 46, 47
    a(f"v_mul_f32 v42, v{CIM}, v{BIM}")
    a(f"v_fma_f32 v{Wr}, v{CRE}, v{BRE}, -v42")
    a(f"v_mul_f32 v42, v{CIM}, v{BRE}")
    a(f"v_fma_f32 v{Wi}, v{CRE}, v{BIM}, v42")
    Z1, Z8, Z256, Z2, Z4 = 48, 50, 52, 54, 56
    for (z, m) in ((Z1, 1.0), (Z8, 8.0), (Z256, 256.0)):
        a(f"v_mul_f32 v42, {fhex(m)}, v{ARE}")
        a(f"v_mul_f32 v43, {fhex(m)}, v{AIM}")
        a("v_exp_f32 v42, v42")
        a("v_fract_f32 v43, v43")
        a("v_cos_f32 v44, v43")
        a("v_sin_f32 v45, v43")
        a("s_nop 0")
        a(f"v_mul_f32 v{z}, v42, v44")
        a(f"v_mul_f32 v{z+1}, v42, v45")
    def cmul(d, x, y):
        a(f"v_mul_f32 v42, v{x+1}, v{y+1}")
        a(f"v_mul_f32 v43, v{x+1}, v{y}")
        a(f"v_fma_f32 v44, v{x}, v{y}, -v42") if d == x else a(f"v_fma_f32 v{d}, v{x}, v{y}, -v42")
        a(f"v_fma_f32 v{d+1}, v{x}, v{y+1}, v43")
        if d == x:
            a(f"v_mov_b32 v{d}, v44")
    wt = [0]
    def put(row, x, negim):
        t = 60 + (wt[0] & 3); wt[0] += 1
        a(f"v_cvt_pk_bf16_f32 v{t}, v{x}, {'-' if negim else ''}v{x+1}")
        a(f"ds_write_b32 v5, v{t} offset:{row*KG_ROW}")
    Pa, Pb, Qa, Qb = 64, 66, 68, 70
    cmul(Z2, Z1, Z1)
    cmul(Z4, Z2, Z2)
    a(f"v_mov_b32 v60, 0x00003f80")
    a(f"ds_write_b32 v5, v60 offset:{21*KG_ROW}")
    wt[0] = 1
    put(22, Z8, True)
    cur = Z8
    for j in range(2, 32):
        nxt = Pa if cur != Pa else Pb
        cmul(nxt, cur, Z8)
        put(21 + j, nxt, True)
        cur = nxt
    put(0, Wr, False)
    cur = Wr
    for p in range(1, 8):
        nxt = Pa if cur != Pa else Pb
        cmul(nxt, cur, Z1)
        put(p, nxt, False)
        cur = nxt
    cur = Wr
    for i in range(1, 9):
        nxt = Qa if cur != Qa else Qb
        cmul(nxt, cur, Z256)
        cur = nxt
        if i == 1:
            put(8, cur, False)
            c2 = cur
            for p in range(1, 4):
                n2 = Pa if c2 != Pa else Pb
                cmul(n2, c2, Z2)
                put(8 + p, n2, False)
                c2 = n2
        elif i in (2, 3):
            put(12 + 2 * (i - 2), cur, False)
            cmul(Pa, cur, Z4)
            put(13 + 2 * (i - 2), Pa, False)
        else:
            put(16 + (i - 4), cur, False)
    FR = 72
    ACC = 136
    for s in range(8):
        a(f"ds_read_b128 v[{FR+8*s}:{FR+8*s+3}], v8 offset:{32*s}")
        a(f"ds_read_b128 v[{FR+8*s+4}:{FR+8*s+7}], v8 offset:{21*KG_ROW + 32*s}")
        if s == 5:
            pass
    for s in range(8):
        a(f"s_waitcnt lgkmcnt({min(15, 14-2*s)})")
        c = "0" if s == 0 else f"v[{ACC}:{ACC+15}]"
        a(f"v_mfma_f32_32x32x16_bf16 v[{ACC}:{ACC+15}], v[{FR+8*s}:{FR+8*s+3}], v[{FR+8*s+4}:{FR+8*s+7}], {c}")
    a("v_mov_b32 v42, 0")
    a("v_mov_b32 v43, 0")
    a(f"v_lshlrev_b32 v44, 3, v1")
    a(f"v_and_b32 v44, 31, v44")
    a("s_nop 9")
    a(f"ds_write_b128 v{PW0}, v[{ACC}:{ACC+3}]")
    a(f"ds_write_b64 v{PW1}, v[{ACC+4}:{ACC+5}]")
    a(f"ds_write_b64 v{PW2}, v[{ACC+6}:{ACC+7}]")
    for r in range(4):
        a(f"ds_write_b32 v{PW3}, v{ACC+8+r} offset:{(512+32*r)*4}")
    a("s_waitcnt lgkmcnt(0)")
    a("s_barrier")
    a(f"ds_write_b64 v44, v[42:43] offset:4096")
    a("v_lshlrev_b32 v9, 4, v0")
    for w in range(3):
        a(f"ds_read_b128 v[{FR+4*w}:{FR+4*w+3}], v9 offset:{w*KG_WAVE}")
    a("v_lshlrev_b32 v9, 3, v0")
    a("s_waitcnt lgkmcnt(0)")
    for r in range(4):
        a(f"v_add_f32 v{FR+r}, v{FR+r}, v{FR+4+r}")
    for r in range(4):
        a(f"v_add_f32 v{FR+r}, v{FR+r}, v{FR+8+r}")
    a(f"v_cvt_pk_bf16_f32 v{FR+4}, v{FR}, v{FR+1}")
    a(f"v_cvt_pk_bf16_f32 v{FR+5}, v{FR+2}, v{FR+3}")
    a(f"ds_write_b64 v9, v[{FR+4}:{FR+5}] offset:{TB0}")
    a("s_waitcnt lgkmcnt(0)")
    a("s_barrier")
    a(f"s_mul_i32 s5, s4, {GS}")
    a(f"s_add_u32 s7, s5, {GH}")
    a("v_lshlrev_b32 v9, 4, v0")
    for rnd in range(2):
        g = GA + 9 * rnd
        if rnd == 1:
            a("v_cmp_gt_u32 vcc, 65, v0")
            a("s_and_saveexec_b64 s[44:45], vcc")
            a("s_cbranch_execz K1_END")
        V = FR + 20 * rnd
        for i in range(9):
            a(f"ds_read_u16 v{V+i}, v{g+i}")
        a("s_waitcnt lgkmcnt(0)")
        O0, O1 = V + 12, V + 16
        for m in range(4):
            a(f"v_lshl_or_b32 v{O0+m}, v{V+2*m+1}, 16, v{V+2*m}")
        for m in range(4):
            a(f"v_lshl_or_b32 v{O1+m}, v{V+2*m+2}, 16, v{V+2*m+1}")
        a(f"buffer_store_dwordx4 v[{O0}:{O0+3}], v9, s[12:15], s5 offen offset:{3072*rnd}")
        a(f"buffer_store_dwordx4 v[{O1}:{O1+3}], v9, s[12:15], s7 offen offset:{3072*rnd}")
    a("s_endpgm")

    a.label("K1_PACK")
    a("s_waitcnt lgkmcnt(0)")
    srd(a, 12, 40, 0, WS_TOTAL)
    a(f"s_mov_b32 s6, {3*KG_WAVE}")
    pack_lane_setup(a, 1, 5, 6, 7, 6)
    a("v_and_b32 v9, 15, v1")
    a("v_mov_b32 v10, 0x3f803f80")
    for jj in range(4):
        a(f"v_cmp_eq_u32 vcc, {jj}, v9")
        a("s_nop 1")
        for r in range(4):
            a(f"v_cndmask_b32 v{16+4*jj+r}, 0, v10, vcc")
    a("v_lshrrev_b32 v10, 4, v1")
    a("v_lshlrev_b32 v8, 6, v9")
    a("v_lshl_add_u32 v8, v10, 4, v8")
    a("v_cmp_gt_u32 vcc, 4, v9")
    a("v_mov_b32 v10, 0x7fffffff")
    a("s_nop 0")
    a("v_cndmask_b32 v8, v10, v8, vcc")
    def decode(B, sb):
        l3, lc = a.newlabel("K1_P3"), a.newlabel("K1_PC")
        ns, mg = B + 11, B + 12
        a(f"s_mov_b32 s{B+3}, 0x00020000")
        a(f"s_mov_b32 s{B+7}, {20*1024}")
        a(f"s_cmp_ge_u32 s{sb}, 400")
        a(f"s_cbranch_scc1 {l3}")
        a(f"s_cmp_ge_u32 s{sb}, 200")
        a(f"s_cselect_b32 s{B}, s34, s32")
        a(f"s_cselect_b32 s{B+1}, s35, s33")
        a(f"s_cselect_b32 s{B+6}, 0x{WS['WP2'][0]:x}, 0x0")
        a(f"s_cselect_b32 s{B+8}, {WS['CSP'][0] + 2176*4}, 0")
        a(f"s_cselect_b32 s{ns}, 200, 0")
        a(f"s_sub_u32 s{sb}, s{sb}, s{ns}")
        a(f"s_max_u32 s{B+6}, s{B+6}, 0x{WS['WP1'][0]:x}")
        a(f"s_max_u32 s{B+8}, s{B+8}, {WS['CSP'][0]}")
        a(f"s_mov_b32 s{B+2}, {D*D*2}")
        a(f"s_movk_i32 s{B+4}, 1280")
        a(f"s_movk_i32 s{ns}, 10")
        a(f"s_mov_b32 s{mg}, 0x{(2**32 + 9)//10:x}")
        a(f"s_branch {lc}")
        a.label(l3)
        a(f"s_sub_u32 s{sb}, s{sb}, 400")
        a(f"s_mov_b32 s{B}, s36")
        a(f"s_mov_b32 s{B+1}, s37")
        a(f"s_mov_b32 s{B+2}, {D*F*2}")
        a(f"s_movk_i32 s{B+4}, 3072")
        a(f"s_mov_b32 s{B+6}, 0x{WS['WP3'][0]:x}")
        a(f"s_mov_b32 s{B+8}, {WS['CSP'][0] + 640*4}")
        a(f"s_movk_i32 s{ns}, 24")
        a(f"s_mov_b32 s{mg}, 0x{(2**32 + 23)//24:x}")
        a.label(lc)
        pack_common(a, B, sb, ns, mg)
    B0, B1 = 48, 64
    a("s_mov_b32 s5, s4")
    decode(B0, 5)
    pack_issue(a, B0, 1, 11, 6, 0)
    a("s_cmp_lt_u32 s4, 240")
    a("s_cbranch_scc1 K1_PACK2")
    a("s_waitcnt vmcnt(0)")
    pack_finish(a, B0, 5, 6, 32, 12, 0, colsum=(16, 48, 8))
    a("s_endpgm")
    a.label("K1_PACK2")
    a("s_add_u32 s5, s4, 640")
    decode(B1, 5)
    pack_issue(a, B1, 1, 13, 6, 4096)
    a("s_waitcnt vmcnt(4)")
    pack_finish(a, B0, 5, 6, 32, 12, 0, colsum=(16, 48, 8))
    a("s_waitcnt vmcnt(5)")
    pack_finish(a, B1, 5, 6, 52, 12, 4096, colsum=(16, 68, 8))
    a.label("K1_END")
    a("s_endpgm")
    return dict(name=name, grid=K1_WGS, block=256, lds=K1_LDS, vgpr=152, accum=152)
```

```python
from asmlib import *
from layout import *
from k1 import pack_common, pack_issue, pack_finish, pack_lane_setup

K2_CONV = 256
K2_PACK = 120
K2_CS = 9
K2_WGS = K2_CONV + K2_PACK + K2_CS
KC = 4160
SLOT = 4 * KC + 4 * 1280
UOFF = 4 * KC
RED = 3 * SLOT
K2_LDS = RED + 16384

def conv_steps(a, steps, vA, vB, ACC, FR, first_zero):
    def loads(i):
        d0 = steps[i]
        base = FR + 32 * (i & 1)
        def lb(c): a(f"ds_read_b128 v[{base+16+4*c}:{base+16+4*c+3}], v{vB} offset:{16*(15-d0) + 256*c}")
        def la(q):
            o = 64 * (15 - d0) + 1024 * (3 - q)
            a(f"ds_read_b64 v[{base+4*q}:{base+4*q+1}], v{vA} offset:{o}")
            a(f"ds_read_b64 v[{base+4*q+2}:{base+4*q+3}], v{vA} offset:{o+8}")
        return [lambda: lb(0), lambda: la(0), lambda: lb(1), lambda: lb(2), lambda: lb(3), lambda: la(1), lambda: la(2), lambda: la(3)]
    for f in loads(0): f()
    n = len(steps)
    for i in range(n):
        base = FR + 32 * (i & 1)
        a("s_waitcnt lgkmcnt(0)")
        nxt = loads(i + 1) if i + 1 < n else []
        k = 0
        for q in range(4):
            for c in range(q, 4):
                cc = "0" if (first_zero and i == 0 and q == 0) else f"v[{ACC+4*c}:{ACC+4*c+3}]"
                a(f"v_mfma_f32_16x16x32_bf16 v[{ACC+4*c}:{ACC+4*c+3}], v[{base+4*q}:{base+4*q+3}], v[{base+16+4*(c-q)}:{base+16+4*(c-q)+3}], {cc}")
                if k < len(nxt): nxt[k]()
                k += 1

def conv_epi(a, Y, U, X, DS, T, smask):
    a(f"v_lshlrev_b32 v{T}, 16, v{U}")
    a(f"v_and_b32 v{T+1}, s{smask}, v{U}")
    a(f"v_lshlrev_b32 v{T+2}, 16, v{U+1}")
    a(f"v_and_b32 v{T+3}, s{smask}, v{U+1}")
    for r in range(4):
        a(f"v_mul_f32 v{T+r}, v{DS}, v{T+r}")
    a(f"v_cvt_pk_bf16_f32 v{T+4}, v{T}, v{T+1}")
    a(f"v_cvt_pk_bf16_f32 v{T+5}, v{T+2}, v{T+3}")
    a(f"v_cvt_pk_bf16_f32 v{T+6}, v{Y}, v{Y+1}")
    a(f"v_cvt_pk_bf16_f32 v{T+7}, v{Y+2}, v{Y+3}")
    for m in range(2):
        a(f"v_lshlrev_b32 v{T+2*m}, 16, v{T+4+m}")
        a(f"v_and_b32 v{T+2*m+1}, s{smask}, v{T+4+m}")
        a(f"v_lshlrev_b32 v{Y+2*m}, 16, v{T+6+m}")
        a(f"v_and_b32 v{Y+2*m+1}, s{smask}, v{T+6+m}")
    for r in range(4):
        a(f"v_add_f32 v{Y+r}, v{Y+r}, v{T+r}")
    a(f"v_cvt_pk_bf16_f32 v{T+4}, v{Y}, v{Y+1}")
    a(f"v_cvt_pk_bf16_f32 v{T+5}, v{Y+2}, v{Y+3}")
    for m in range(2):
        a(f"v_lshlrev_b32 v{T+2*m}, 16, v{T+4+m}")
        a(f"v_and_b32 v{T+2*m+1}, s{smask}, v{T+4+m}")
        a(f"v_lshlrev_b32 v{Y+2*m}, 16, v{X+m}")
        a(f"v_and_b32 v{Y+2*m+1}, s{smask}, v{X+m}")
    for r in range(4):
        a(f"v_add_f32 v{Y+r}, v{Y+r}, v{T+r}")
    a(f"v_cvt_pk_bf16_f32 v{Y}, v{Y}, v{Y+1}")
    a(f"v_cvt_pk_bf16_f32 v{Y+1}, v{Y+2}, v{Y+3}")

def gen_k2(a, name):
    kernel_begin(a, name)
    a(f"s_cmp_ge_u32 s2, {K2_WGS}")
    a("s_cbranch_scc1 K2_END")
    a("s_load_dwordx2 s[40:41], s[0:1], 128")
    a("s_load_dwordx2 s[38:39], s[0:1], 64")
    a("s_load_dwordx2 s[36:37], s[0:1], 104")
    a("v_and_b32 v1, 63, v0")
    a("v_lshrrev_b32 v2, 6, v0")
    a("s_mov_b32 s42, 0xffff0000")
    a("v_readfirstlane_b32 s3, v2")
    a(f"s_cmp_lt_u32 s2, {K2_CONV}")
    a("s_cbranch_scc0 K2_AUX")
    a("s_lshr_b32 s4, s2, 1")
    a("s_and_b32 s5, s2, 1")
    a("s_mul_i32 s4, s4, 5")
    a("s_mul_i32 s6, s5, 3")
    a("s_add_u32 s16, s4, s6")
    a("s_add_u32 s17, s16, 1")
    a("s_add_u32 s18, s4, 2")
    a("v_lshlrev_b32 v3, 4, v0")
    a("s_lshl_b32 s19, s3, 10")
    a("s_mul_i32 s20, s3, 1280")
    a("s_waitcnt lgkmcnt(0)")
    srd(a, 8, 40, 0, WS_TOTAL)
    for sl in range(3):
        a(f"s_mul_i32 s21, s{16+sl}, {GS}")
        a(f"s_add_u32 s21, s21, 0x{WS['G'][0]:x}")
        for c in range(4):
            a(f"s_add_u32 m0, s19, {sl*SLOT + c*KC}")
            a(f"s_add_u32 s22, s21, {(c & 1)*GH + (c >> 1)*4}")
            a(f"buffer_load_dwordx4 v3, s[8:11], s22 offen lds")
        a(f"s_add_u32 m0, s20, {sl*SLOT + UOFF + 256}")
        a(f"s_lshl_b32 s22, s{16+sl}, 12")
        a(f"buffer_load_dwordx4 v3, s[8:11], s22 offen lds")
    a("v_and_b32 v4, 15, v1")
    a("v_lshrrev_b32 v5, 4, v1")
    a("s_lshr_b32 s23, s3, 1")
    a("s_and_b32 s24, s3, 1")
    a("s_cmp_eq_u32 s23, 0")
    a("s_cselect_b32 s25, s16, s17")
    a("v_lshrrev_b32 v6, 1, v5")
    a("v_lshlrev_b32 v6, 10, v6")
    a("v_lshl_add_u32 v6, v4, 4, v6")
    a("v_and_b32 v7, 1, v5")
    a("v_lshl_add_u32 v6, v7, 3, v6")
    a("s_lshl_b32 s26, s25, 12")
    a("s_lshl_b32 s27, s24, 11")
    a("s_add_u32 s26, s26, s27")
    a(f"s_add_u32 s26, s26, 0x{WS['XT'][0]:x}")
    XR = 12
    for nt in range(4):
        a(f"buffer_load_dwordx2 v[{XR+2*nt}:{XR+2*nt+1}], v6, s[8:11], s26 offen offset:{256*nt}")
    a("s_lshl_b32 s26, s18, 12")
    a("s_lshl_b32 s27, s5, 11")
    a("s_add_u32 s26, s26, s27")
    a("s_lshl_b32 s27, s3, 8")
    a("s_add_u32 s26, s26, s27")
    a(f"s_add_u32 s26, s26, 0x{WS['XT'][0]:x}")
    a(f"buffer_load_dwordx2 v[{XR+8}:{XR+9}], v6, s[8:11], s26 offen")
    a("s_lshl_b32 s26, s25, 1")
    a("v_mov_b32 v8, s26")
    a("s_lshl_b32 s26, s18, 1")
    a("v_mov_b32 v9, s26")
    a("global_load_ushort v22, v8, s[38:39]")
    a("global_load_ushort v23, v9, s[38:39]")
    a("v_mul_u32_u24 v8, 205, v0")
    a("v_lshrrev_b32 v8, 14, v8")
    a("v_mul_u32_u24 v9, 80, v8")
    a("v_sub_u32 v9, v0, v9")
    a(f"v_mul_u32_u24 v8, {SLOT}, v8")
    a("v_lshrrev_b32 v10, 2, v9")
    a(f"v_mul_u32_u24 v10, {KC}, v10")
    a("v_and_b32 v11, 3, v9")
    a("v_lshl_add_u32 v10, v11, 4, v10")
    a("v_add_u32 v10, 4096, v10")
    a("v_subrev_u32 v11, 16, v9")
    a("v_lshrrev_b32 v24, 4, v11")
    a("v_mul_u32_u24 v24, 1280, v24")
    a("v_and_b32 v11, 15, v11")
    a("v_lshl_add_u32 v24, v11, 4, v24")
    a(f"v_add_u32 v24, {UOFF}, v24")
    a("v_cmp_gt_u32 vcc, 16, v9")
    a("v_mov_b32 v28, 0")
    a("v_mov_b32 v29, 0")
    a("v_cndmask_b32 v10, v24, v10, vcc")
    a("v_add_u32 v10, v8, v10")
    a("v_mov_b32 v30, 0")
    a("v_mov_b32 v31, 0")
    a("ds_write_b128 v10, v[28:31]")
    a("v_sub_u32 v8, 3, v4")
    a("v_and_b32 v8, 3, v8")
    a(f"v_mul_u32_u24 v8, {KC}, v8")
    a("v_lshl_add_u32 v8, v5, 4, v8")
    a("v_lshrrev_b32 v9, 2, v4")
    a("v_lshlrev_b32 v9, 3, v9")
    a("v_sub_u32 v8, v8, v9")
    a(f"v_add_u32 v8, {2*2044 - 64*15 - 1024*3}, v8")
    a("v_mul_u32_u24 v9, 1280, v5")
    a("v_lshl_add_u32 v9, v4, 4, v9")
    a(f"v_add_u32 v9, {UOFF + 256 - 16*15}, v9")
    a(f"s_mul_i32 s26, s23, {SLOT}")
    a("s_lshl_b32 s27, s24, 5")
    a("s_sub_u32 s27, s26, s27")
    a("v_add_u32 v24, s27, v8")
    a("v_add_u32 v25, s26, v9")
    a("s_lshl_b32 s27, s5, 5")
    a("s_lshl_b32 s28, s3, 8")
    a("s_add_u32 s27, s27, s28")
    a(f"s_sub_u32 s27, {2*SLOT}, s27")
    a("v_add_u32 v26, s27, v8")
    a("s_lshl_b32 s28, s3, 6")
    a(f"s_sub_u32 s28, {2*SLOT}, s28")
    a("v_add_u32 v27, s28, v9")
    ACC, ACC2, FR = 32, 48, 64
    a("s_waitcnt vmcnt(0) lgkmcnt(0)")
    a("s_barrier")
    conv_steps(a, [0, 1, 2, 3], 26, 27, ACC2, FR, True)
    conv_steps(a, list(range(16)), 24, 25, ACC, FR, True)
    a("v_lshlrev_b32 v8, 4, v1")
    a("s_lshl_b32 s26, s3, 12")
    a(f"s_add_u32 s26, s26, {RED}")
    a("v_add_u32 v8, s26, v8")
    for nt in range(4):
        a(f"ds_write_b128 v8, v[{ACC2+4*nt}:{ACC2+4*nt+3}] offset:{1024*nt}")
    a("v_lshrrev_b32 v9, 1, v5")
    a("v_mul_u32_u24 v9, 1280, v9")
    a("v_lshl_add_u32 v9, v4, 4, v9")
    a("v_lshl_add_u32 v9, v7, 3, v9")
    a(f"s_mul_i32 s26, s23, {SLOT}")
    a("s_mul_i32 s27, s24, 2560")
    a("s_add_u32 s26, s26, s27")
    a("v_add_u32 v10, s26, v9")
    UR = FR
    for nt in range(4):
        a(f"ds_read_b64 v[{UR+2*nt}:{UR+2*nt+1}], v10 offset:{UOFF + 256 + 256*nt}")
    a("s_mul_i32 s27, s5, 2560")
    a("s_lshl_b32 s28, s3, 8")
    a("s_add_u32 s27, s27, s28")
    a("v_add_u32 v10, s27, v9")
    a(f"ds_read_b64 v[{UR+8}:{UR+9}], v10 offset:{2*SLOT + UOFF + 256}")
    a("v_lshlrev_b32 v11, 9, v5")
    a("v_lshl_add_u32 v11, v4, 3, v11")
    a("s_lshl_b32 s26, s25, 12")
    a("s_lshl_b32 s27, s24, 11")
    a("s_add_u32 s26, s26, s27")
    a(f"s_add_u32 s26, s26, 0x{WS['HT'][0]:x}")
    a("v_lshlrev_b32 v22, 16, v22")
    a("v_lshlrev_b32 v23, 16, v23")
    a("s_waitcnt lgkmcnt(0)")
    a("s_barrier")
    a("v_lshlrev_b32 v8, 4, v1")
    a("s_lshl_b32 s27, s3, 10")
    a(f"s_add_u32 s27, s27, {RED}")
    a("v_add_u32 v8, s27, v8")
    for w in range(4):
        a(f"ds_read_b128 v[{ACC2+4*w}:{ACC2+4*w+3}], v8 offset:{4096*w}")
    T = FR + 16
    for nt in range(4):
        conv_epi(a, ACC + 4 * nt, UR + 2 * nt, XR + 2 * nt, 22, T, 42)
        a(f"buffer_store_dwordx2 v[{ACC+4*nt}:{ACC+4*nt+1}], v11, s[8:11], s26 offen offset:{128*nt}")
    a("s_waitcnt lgkmcnt(0)")
    for r in range(4):
        a(f"v_add_f32 v{ACC2+r}, v{ACC2+r}, v{ACC2+4+r}")
        a(f"v_add_f32 v{ACC2+8+r}, v{ACC2+8+r}, v{ACC2+12+r}")
    for r in range(4):
        a(f"v_add_f32 v{ACC2+r}, v{ACC2+r}, v{ACC2+8+r}")
    conv_epi(a, ACC2, UR + 8, XR + 8, 23, T, 42)
    a("s_lshl_b32 s26, s18, 12")
    a("s_lshl_b32 s27, s5, 11")
    a("s_add_u32 s26, s26, s27")
    a("s_lshl_b32 s27, s3, 7")
    a("s_add_u32 s26, s26, s27")
    a(f"s_add_u32 s26, s26, 0x{WS['HT'][0]:x}")
    a(f"buffer_store_dwordx2 v[{ACC2}:{ACC2+1}], v11, s[8:11], s26 offen")
    a("s_endpgm")
    a.label("K2_AUX")
    a("s_waitcnt lgkmcnt(0)")
    srd(a, 12, 40, 0, WS_TOTAL)
    a(f"s_cmp_lt_u32 s2, {K2_CONV + K2_PACK}")
    a("s_cbranch_scc0 K2_CS")
    B = 48
    a(f"s_sub_u32 s5, s2, {K2_CONV}")
    a("s_lshl_b32 s5, s5, 2")
    a("s_add_u32 s5, s5, s3")
    a("s_lshl_b32 s6, s3, 12")
    pack_lane_setup(a, 1, 5, 6, 7, 6)
    srd(a, B, 36, 0, D * F * 2)
    a(f"s_movk_i32 s{B+4}, 1280")
    a(f"s_mov_b32 s{B+6}, 0x{WS['WP4'][0]:x}")
    a(f"s_mov_b32 s{B+7}, {48*1024}")
    a(f"s_mov_b32 s{B+8}, 0")
    a(f"s_movk_i32 s{B+11}, 10")
    a(f"s_mov_b32 s{B+12}, 0x{(2**32 + 9)//10:x}")
    pack_common(a, B, 5, B + 11, B + 12)
    pack_issue(a, B, 1, 11, 6, 0)
    a("s_waitcnt vmcnt(0)")
    pack_finish(a, B, 5, 6, 32, 12, 0)
    a("s_endpgm")
    a.label("K2_CS")
    a(f"s_sub_u32 s5, s2, {K2_CONV + K2_PACK}")
    a("s_lshl_b32 s5, s5, 10")
    a("v_lshl_add_u32 v3, v0, 2, s5")
    a(f"s_mov_b32 s6, 0x{WS['CSP'][0]:x}")
    for s in range(20):
        a(f"buffer_load_dword v{8+s}, v3, s[12:15], s6 offen")
        if s < 19: a(f"s_add_u32 s6, s6, {NT*4}")
    a(f"s_mov_b32 s6, 0x{WS['CS'][0]:x}")
    for s in range(1, 20):
        a(f"s_waitcnt vmcnt({19-s})")
        a(f"v_add_f32 v8, v8, v{8+s}")
    a("buffer_store_dword v8, v3, s[12:15], s6 offen")
    a.label("K2_END")
    a("s_endpgm")
    return dict(name=name, grid=K2_WGS, block=256, lds=K2_LDS, vgpr=128, accum=128)
```

```python
from asmlib import *
from layout import *
import math
LOG2E = 1.4426950408889634
GC0 = -2.0 * math.sqrt(2.0 / math.pi) * LOG2E
GC1 = GC0 * 0.044715
MASK = 42

def rbf2(a, x, y, t):
    a(f"v_cvt_pk_bf16_f32 v{t}, v{x}, v{y}")
    a(f"v_lshlrev_b32 v{x}, 16, v{t}")
    a(f"v_and_b32 v{y}, s{MASK}, v{t}")

def rbf1(a, x):
    a(f"v_cvt_pk_bf16_f32 v{x}, v{x}, v{x}")
    a(f"v_and_b32 v{x}, s{MASK}, v{x}")

def gelu_regs(a, X, T, n, CG):
    for p in range(0, n, 2):
        a(f"v_pk_mul_f32 v[{T+p}:{T+p+1}], v[{X+p}:{X+p+1}], v[{X+p}:{X+p+1}]")
    for p in range(0, n, 2):
        a(f"v_pk_fma_f32 v[{T+p}:{T+p+1}], v[{T+p}:{T+p+1}], v[{CG}:{CG+1}], v[{CG+2}:{CG+3}]")
    for p in range(0, n, 2):
        a(f"v_pk_mul_f32 v[{T+p}:{T+p+1}], v[{T+p}:{T+p+1}], v[{X+p}:{X+p+1}]")
    for p in range(n):
        a(f"v_exp_f32 v{T+p}, v{T+p}")
    a("s_nop 0")
    for p in range(0, n, 2):
        a(f"v_pk_add_f32 v[{T+p}:{T+p+1}], v[{T+p}:{T+p+1}], 1.0 op_sel_hi:[1,0]")
    for p in range(n):
        a(f"v_rcp_f32 v{T+p}, v{T+p}")
    a("s_nop 0")
    for p in range(0, n, 2):
        a(f"v_pk_mul_f32 v[{X+p}:{X+p+1}], v[{X+p}:{X+p+1}], v[{T+p}:{T+p+1}]")

def ln_apply_gelu(a, X, AB, CS, T, CG, out):
    for p in (0, 2):
        a(f"v_pk_mul_f32 v[{T+p}:{T+p+1}], v[{CS+p}:{CS+p+1}], v[{AB}:{AB+1}] op_sel:[0,1] op_sel_hi:[1,1]")
    for p in (0, 2):
        a(f"v_pk_fma_f32 v[{X+p}:{X+p+1}], v[{X+p}:{X+p+1}], v[{AB}:{AB+1}], v[{T+p}:{T+p+1}] op_sel_hi:[1,0,1] neg_lo:[0,0,1] neg_hi:[0,0,1]")
    rbf2(a, X, X + 1, T)
    rbf2(a, X + 2, X + 3, T + 1)
    gelu_regs(a, X, T, 4, CG)
    a(f"v_cvt_pk_bf16_f32 v{out}, v{X}, v{X+1}")
    a(f"v_cvt_pk_bf16_f32 v{out+1}, v{X+2}, v{X+3}")

def swap_pair(a, P):
    a("s_nop 1")
    a(f"v_permlane16_swap_b32 v{P}, v{P+2}")
    a(f"v_permlane16_swap_b32 v{P+1}, v{P+3}")

def stats_calc(a, S1, S2, vi, vq, T, double_ln, vaddr):
    sm, sq = T + 4, T + 5
    a(f"v_and_b32 v{T+6}, 3, v{vi}")
    a(f"v_cmp_eq_u32 vcc, 1, v{T+6}")
    a(f"s_mov_b32 s46, {fhex(1.0/640)}")
    a("s_nop 0")
    a(f"v_cndmask_b32 v{sq}, v{S2}, v{S2+1}, vcc")
    a(f"v_cmp_eq_u32 vcc, 2, v{T+6}")
    a(f"v_mul_f32 v{sm}, s46, v{S1}")
    a("s_nop 0")
    a(f"v_cndmask_b32 v{sq}, v{sq}, v{S2+2}, vcc")
    a(f"v_cmp_eq_u32 vcc, 3, v{T+6}")
    a(f"v_lshrrev_b32 v{T+7}, 2, v{vi}")
    a("s_nop 0")
    a(f"v_cndmask_b32 v{sq}, v{sq}, v{S2+3}, vcc")
    a(f"v_mul_f32 v{sq}, s46, v{sq}")
    a(f"v_fma_f32 v{sq}, -v{sm}, v{sm}, v{sq}")
    a(f"v_max_f32 v{sq}, 0, v{sq}")
    m1r, i1 = T + 2, T + 3
    a(f"v_mov_b32 v{m1r}, v{sm}")
    a(f"v_mov_b32 v{i1}, v{sq}")
    rbf2(a, m1r, i1, T + 6)
    a(f"v_add_f32 v{i1}, {fhex(1e-5)}, v{i1}")
    rbf1(a, i1)
    a(f"v_sqrt_f32 v{i1}, v{i1}")
    a("s_nop 0")
    rbf1(a, i1)
    a(f"v_rcp_f32 v{i1}, v{i1}")
    a(f"v_cmp_eq_u32 vcc, v{T+7}, v{vq}")
    if double_ln:
        a(f"v_sub_f32 v{T}, v{sm}, v{m1r}")
        a(f"v_mul_f32 v{T}, v{T}, v{i1}")
        a(f"v_mul_f32 v{T+1}, v{sq}, v{i1}")
        a(f"v_mul_f32 v{T+1}, v{T+1}, v{i1}")
        rbf2(a, T, T + 1, T + 6)
        a(f"v_add_f32 v{T+1}, {fhex(1e-5)}, v{T+1}")
        rbf1(a, T + 1)
        a(f"v_sqrt_f32 v{T+1}, v{T+1}")
        a("s_nop 0")
        rbf1(a, T + 1)
        a(f"v_rcp_f32 v{T+6}, v{T+1}")
        a("s_nop 0")
        a(f"v_mul_f32 v{T+1}, v{T}, v{T+6}")
        a(f"v_mul_f32 v{T}, v{i1}, v{T+6}")
        a(f"v_fma_f32 v{T+1}, v{m1r}, v{T}, v{T+1}")
    else:
        a(f"v_mov_b32 v{T}, v{i1}")
        a(f"v_mul_f32 v{T+1}, v{m1r}, v{i1}")
    a("s_and_saveexec_b64 s[44:45], vcc")
    a(f"ds_write_b128 v{vaddr}, v[{T}:{T+3}]")
    a("s_mov_b64 exec, s[44:45]")

def common_head(a, name, K, extra_loads=()):
    kernel_begin(a, name)
    a("s_cmp_ge_u32 s2, 256")
    a(f"s_cbranch_scc1 {K}_END")
    a("s_load_dwordx2 s[40:41], s[0:1], 128")
    for l in extra_loads: a(l)
    a("v_and_b32 v1, 63, v0")
    a("v_lshrrev_b32 v2, 6, v0")
    a(f"s_mov_b32 s{MASK}, 0xffff0000")
    a("v_readfirstlane_b32 s3, v2")
    a("s_and_b32 s4, s2, 7")
    a("s_lshr_b32 s5, s2, 6")
    a("s_lshr_b32 s6, s2, 3")
    a("s_and_b32 s6, s6, 7")
    a("s_lshl_b32 s7, s4, 2")
    a("s_add_u32 s7, s7, s5")
    a("v_and_b32 v4, 15, v1")
    a("v_lshrrev_b32 v5, 4, v1")
    a("v_lshlrev_b32 v6, 4, v1")

def gelu_consts(a, CG):
    a(f"v_mov_b32 v{CG}, {fhex(GC1)}")
    a(f"v_mov_b32 v{CG+1}, {fhex(GC1)}")
    a(f"v_mov_b32 v{CG+2}, {fhex(GC0)}")
    a(f"v_mov_b32 v{CG+3}, {fhex(GC0)}")

def gen_gemm5(a, name, K, KS, wname, mode):
    k3, k4, k6 = mode == 'k3', mode == 'k4', mode == 'k6'
    common_head(a, name, K, ["s_load_dwordx2 s[38:39], s[0:1], 112"] if k6 else [])
    NSLOT = KS if KS <= 20 else 36
    SCR = NSLOT * 4096
    if k6: SCR = 0
    LDS = NSLOT * 4096 + (16384 + 1024 if not k6 else 0)
    VD = 8
    if k3:
        a("v_lshrrev_b32 v7, 3, v1")
        a("s_lshl_b32 s16, s3, 3")
        a("v_add_u32 v7, s16, v7")
        a(f"v_lshlrev_b32 v{VD}, 12, v7")
        a("v_bfe_u32 v7, v1, 4, 1")
        a("s_and_b32 s16, s3, 1")
        a("s_lshl_b32 s16, s16, 1")
        a("v_or_b32 v7, s16, v7")
        a("v_lshlrev_b32 v7, 1, v7")
        a("v_and_b32 v12, 7, v1")
        a("v_xor_b32 v7, v7, v12")
        a("v_lshrrev_b32 v12, 2, v7")
        a(f"v_lshl_add_u32 v{VD}, v12, 9, v{VD}")
        a("v_and_b32 v12, 3, v7")
        a(f"v_lshl_add_u32 v{VD}, v12, 4, v{VD}")
        a("s_lshl_b32 s16, s5, 10")
        a("s_lshl_b32 s17, s4, 6")
        a("s_add_u32 s16, s16, s17")
        a(f"s_add_u32 s16, s16, 0x{WS['HT'][0]:x}")
        dstep = 32 * 4096
    elif k4:
        a("s_lshl_b32 s16, s7, 6")
        a("s_lshl_b32 s17, s3, 4")
        a("s_add_u32 s16, s16, s17")
        a("v_add_u32 v7, s16, v4")
        a(f"s_movk_i32 s17, {20*1024}")
        for gi, sh in enumerate((1, -1, 2, -2)):
            a(f"v_add_u32 v12, {-sh}, v7")
            a("v_ashrrev_i32 v13, 4, v12")
            a(f"v_mul_lo_u32 v{VD+gi}, v13, s17")
            a("v_and_b32 v12, 15, v12")
            a(f"v_lshl_add_u32 v{VD+gi}, v12, 4, v{VD+gi}")
            a(f"v_lshl_add_u32 v{VD+gi}, v5, 8, v{VD+gi}")
        a("s_mov_b32 s16, 0")
        dstep = 1024
    else:
        a(f"v_mov_b32 v{VD}, v6")
        a("s_lshl_b32 s16, s7, 2")
        a("s_add_u32 s16, s16, s3")
        a(f"s_mul_i32 s16, s16, {KS*1024}")
        a(f"s_add_u32 s16, s16, 0x{WS['H3F'][0]:x}")
        dstep = 1024
    a("s_lshl_b32 s18, s3, 10")
    a("s_mul_i32 s19, s6, 5")
    a("s_add_u32 s20, s19, 4")
    a("s_add_u32 s19, s19, s3")
    a(f"s_mul_i32 s21, s19, {KS*1024}")
    a(f"s_add_u32 s21, s21, 0x{WS[wname][0]:x}")
    a(f"s_mul_i32 s22, s20, {KS*1024}")
    a("s_add_u32 s22, s22, s18")
    a(f"s_add_u32 s22, s22, 0x{WS[wname][0]:x}")
    a("s_waitcnt lgkmcnt(0)")
    srd(a, 8, 40, 0, WS_TOTAL)
    if k4:
        srd(a, 12, 40, WS["H1F"][0], ACT)
    asrd = 12 if k4 else 8
    WO, WSH = 0, 4 * KS
    issued = []
    def dma(s):
        slot = s % NSLOT
        a(f"s_add_u32 m0, s18, {slot*4096}")
        vd = VD + (s // 5 if k4 else 0)
        if s:
            a(f"s_add_u32 s16, s16, {dstep}")
        else:
            a("s_nop 0")
        a(f"buffer_load_dwordx4 v{vd}, s[{asrd}:{asrd+3}], s16 offen lds")
        issued.append(("A", s))
    def wload(s):
        a(f"buffer_load_dwordx4 a[{WO+4*s}:{WO+4*s+3}], v6, s[8:11], s21 offen offset:{(s % 4)*1024}")
        if s % 4 == 3: a("s_add_u32 s21, s21, 4096")
        issued.append(("W", s))
        if s % 4 == 0:
            m = s // 4
            a(f"buffer_load_dwordx4 a[{WSH+4*m}:{WSH+4*m+3}], v6, s[8:11], s22 offen")
            a("s_add_u32 s22, s22, 4096")
            issued.append(("S", s))
    if KS == 20:
        first = 20
        stages = [2, 5, 10, 15, 20]
    else:
        first = 24
        stages = [2, 6, 12, 18, 24, 30, 36, 42, 48]
    for s in range(first):
        dma(s); wload(s)
    nxt = first
    VT = 12
    if k3:
        a("v_bfe_u32 v16, v1, 2, 2")
        a("v_lshlrev_b32 v17, 3, v5")
        a("v_add_u32 v17, v17, v16")
        a("v_lshlrev_b32 v17, 7, v17")
        a("v_and_b32 v18, 3, v1")
        a("v_lshl_add_u32 v17, v18, 3, v17")
        a("v_lshrrev_b32 v16, 1, v16")
        a("v_and_b32 v18, 1, v5")
        a("v_lshl_or_b32 v16, v18, 1, v16")
        for tl in range(4):
            a(f"s_add_u32 s23, s3, {tl}")
            a("s_and_b32 s23, s23, 3")
            a("v_xor_b32 v18, s23, v16")
            a(f"v_lshl_add_u32 v{VT+tl}, v18, 5, v17")
    else:
        for tl in range(4):
            a(f"s_add_u32 s23, s3, {tl}")
            a("s_and_b32 s23, s23, 3")
            a("s_lshl_b32 s23, s23, 10")
            a(f"v_add_u32 v{VT+tl}, s23, v6")
    def rowaddr(dst, vtt, t0, t1):
        if k3:
            a(f"v_and_b32 v{t0}, 1, v{vtt}")
            a(f"v_lshlrev_b32 v{t0}, 3, v{t0}")
            a(f"v_lshrrev_b32 v{t1}, 2, v4")
            a(f"v_lshl_add_u32 v{t0}, v{t1}, 1, v{t0}")
            a("s_lshl_b32 s23, s4, 4")
            a("s_lshr_b32 s24, s5, 1")
            a("s_add_u32 s23, s23, s24")
            a(f"v_add_u32 v{t0}, s23, v{t0}")
            a(f"v_mul_u32_u24 v{dst}, {20*1024}, v{t0}")
            a(f"v_lshrrev_b32 v{t0}, 1, v{vtt}")
            a(f"v_lshlrev_b32 v{t0}, 2, v{t0}")
            a(f"v_and_b32 v{t1}, 3, v4")
            a(f"v_add_u32 v{t0}, v{t0}, v{t1}")
            a("s_and_b32 s23, s5, 1")
            a("s_lshl_b32 s23, s23, 3")
            a(f"v_add_u32 v{t0}, s23, v{t0}")
            a(f"v_lshl_add_u32 v{dst}, v{t0}, 4, v{dst}")
        else:
            a("s_lshl_b32 s23, s7, 2")
            a(f"v_add_u32 v{t0}, s23, v{vtt}")
            a(f"v_mul_u32_u24 v{dst}, {20*1024}, v{t0}")
            a(f"v_lshl_add_u32 v{dst}, v4, 4, v{dst}")
    VP = 20
    for pr in range(2):
        a("v_and_b32 v16, 1, v5")
        a(f"s_add_u32 s25, s3, {2*pr}")
        a("v_add_u32 v16, s25, v16")
        a("v_and_b32 v16, 3, v16")
        rowaddr(VP + pr, 16, 17, 18)
        a("v_lshrrev_b32 v17, 1, v5")
        a(f"v_lshl_add_u32 v{VP+pr}, v17, 8, v{VP+pr}")
        if k6:
            a("s_lshl_b32 s23, s7, 6")
            a("v_lshl_add_u32 v18, v16, 4, v4")
            a("v_add_u32 v18, s23, v18")
            a(f"v_mul_u32_u24 v{24+pr}, 1280, v18")
            a(f"v_lshl_add_u32 v{24+pr}, v17, 4, v{24+pr}")
    a("v_mov_b32 v16, s3")
    rowaddr(23, 16, 17, 18)
    a("v_lshrrev_b32 v17, 1, v5")
    a("v_lshl_add_u32 v22, v17, 8, v23")
    a("v_and_b32 v17, 1, v5")
    a("v_lshl_add_u32 v22, v17, 3, v22")
    if k6:
        a("s_lshl_b32 s23, s7, 6")
        a("s_lshl_b32 s24, s3, 4")
        a("s_add_u32 s23, s23, s24")
        a("v_add_u32 v18, s23, v4")
        a("v_mul_u32_u24 v26, 1280, v18")
        a("v_lshl_add_u32 v26, v5, 3, v26")
    a("s_lshl_b32 s26, s19, 9")
    a("s_lshl_b32 s27, s20, 9")
    EX = 28
    nextra = 0
    if k3:
        a("v_lshlrev_b32 v16, 4, v5")
        a("s_lshl_b32 s23, s19, 6")
        a(f"s_add_u32 s23, s23, 0x{WS['CS'][0]:x}")
        a(f"buffer_load_dwordx4 v[{EX}:{EX+3}], v16, s[8:11], s23 offen")
        a("s_lshl_b32 s23, s20, 6")
        a(f"s_add_u32 s23, s23, 0x{WS['CS'][0]:x}")
        a(f"buffer_load_dwordx4 v[{EX+4}:{EX+7}], v16, s[8:11], s23 offen")
        issued += [("X", 0)] * 2
    def extra_loads(arrs):
        for ai, arr in enumerate(arrs):
            b = EX + 12 * ai
            a(f"s_add_u32 s23, s26, 0x{WS[arr][0]:x}")
            a(f"buffer_load_dwordx4 v[{b}:{b+3}], v{VP}, s[8:11], s23 offen")
            a(f"buffer_load_dwordx4 v[{b+4}:{b+7}], v{VP+1}, s[8:11], s23 offen")
            a(f"s_add_u32 s23, s27, 0x{WS[arr][0]:x}")
            a(f"buffer_load_dwordx2 v[{b+8}:{b+9}], v22, s[8:11], s23 offen")
            issued.extend([("X", 0)] * 3)
    if k4: extra_loads(["XBF"])
    ACC, ACS, S1, S2, ONES, FR = 56, 72, 88, 92, 96, 100
    CG = 52
    if k3:
        for r in range(4): a(f"v_mov_b32 v{ONES+r}, 0x3f803f80")
        gelu_consts(a, CG)
    for r in range(16): a(f"v_mov_b32 v{ACS+r}, 0")
    rdbase = [0]
    def frag_reads(s):
        slot = s % NSLOT
        b = FR + 16 * (s & 1)
        out = []
        off = slot * 4096 - rdbase[0]
        for tl in range(4):
            if k3:
                out.append(f"ds_read_b64_tr_b16 v[{b+4*tl}:{b+4*tl+1}], v{VT+tl} offset:{off}\n"
                           f"ds_read_b64_tr_b16 v[{b+4*tl+2}:{b+4*tl+3}], v{VT+tl} offset:{off+512}")
            else:
                out.append(f"ds_read_b128 v[{b+4*tl}:{b+4*tl+3}], v{VT+tl} offset:{off}")
        return out
    def rebase(s):
        slot = s % NSLOT
        want = (slot // 12) * 12 * 4096
        if want != rdbase[0]:
            d = want - rdbase[0]
            for tl in range(4):
                a(f"v_add_u32 v{VT+tl}, {d & 0xffffffff}, v{VT+tl}")
            rdbase[0] = want
    s0 = 0
    for st, s1 in enumerate(stages):
        last = max(idx for idx, tg in enumerate(issued) if tg[0] in "AWS" and tg[1] <= s1 - 1)
        a(f"s_waitcnt vmcnt({len(issued) - 1 - last})")
        a("s_barrier")
        if KS > 20:
            lim = min(KS, s0 + 24)
            while nxt < lim:
                assert nxt < NSLOT or (nxt - NSLOT) < s0
                dma(nxt); wload(nxt); nxt += 1
            if nxt == KS and not any(t[0] == "X" for t in issued):
                extra_loads(["X1F", "HF"])
        rebase(s0)
        for r in frag_reads(s0): a(r)
        for s in range(s0, s1):
            b = FR + 16 * (s & 1)
            a("s_waitcnt lgkmcnt(0)")
            pre = []
            if s + 1 < s1:
                rebase(s + 1)
                pre = frag_reads(s + 1)
            for tl in range(4):
                c = "0" if s == 0 else f"v[{ACC+4*tl}:{ACC+4*tl+3}]"
                a(f"v_mfma_f32_16x16x32_bf16 v[{ACC+4*tl}:{ACC+4*tl+3}], a[{WO+4*s}:{WO+4*s+3}], v[{b+4*tl}:{b+4*tl+3}], {c}")
                if pre: a(pre[tl])
            if k3:
                c1 = "0" if s == 0 else f"v[{S1}:{S1+3}]"
                c2 = "0" if s == 0 else f"v[{S2}:{S2+3}]"
                a(f"v_mfma_f32_16x16x32_bf16 v[{S1}:{S1+3}], v[{ONES}:{ONES+3}], v[{b}:{b+3}], {c1}")
                a(f"v_mfma_f32_16x16x32_bf16 v[{S2}:{S2+3}], v[{b}:{b+3}], v[{b}:{b+3}], {c2}")
            lb = a.newlabel(f"{K}_SK")
            a(f"s_cmp_lg_u32 s3, {s & 3}")
            a(f"s_cbranch_scc1 {lb}")
            m = s // 4
            for tl in range(4):
                a(f"v_mfma_f32_16x16x32_bf16 v[{ACS+4*tl}:{ACS+4*tl+3}], a[{WSH+4*m}:{WSH+4*m+3}], v[{b+4*tl}:{b+4*tl+3}], v[{ACS+4*tl}:{ACS+4*tl+3}]")
            a.label(lb)
        s0 = s1
    T = FR
    if k6:
        SCR = 16 * 4096
    STAT = SCR + 16384
    a("s_nop 7")
    for tl in range(4):
        a(f"s_add_u32 s23, s3, {tl}")
        a("s_and_b32 s23, s23, 3")
        a("s_lshl_b32 s23, s23, 12")
        a("s_add_u32 s23, s23, s18")
        a(f"s_add_u32 s23, s23, {SCR}")
        a(f"v_add_u32 v16, s23, v6")
        a(f"ds_write_b128 v16, v[{ACS+4*tl}:{ACS+4*tl+3}]")
    if k3:
        a("s_lshl_b32 s23, s3, 8")
        a(f"s_add_u32 s23, s23, {STAT}")
        a("v_lshl_add_u32 v16, v4, 4, s23")
        stats_calc(a, S1, S2, 4, 5, T, True, 16)
    a("s_waitcnt lgkmcnt(0)")
    a("s_barrier")
    a("s_lshl_b32 s23, s3, 12")
    a(f"s_add_u32 s23, s23, {SCR}")
    a("v_add_u32 v16, s23, v6")
    for w in range(4):
        a(f"ds_read_b128 v[{ACS+4*w}:{ACS+4*w+3}], v16 offset:{1024*w}")
    AB = S1
    if k3:
        for tl in range(4):
            a(f"s_add_u32 s23, s3, {tl}")
            a("s_and_b32 s23, s23, 3")
            a("s_lshl_b32 s23, s23, 8")
            a(f"s_add_u32 s23, s23, {STAT}")
            a("v_lshl_add_u32 v16, v4, 4, s23")
            a(f"ds_read_b64 v[{AB+2*tl}:{AB+2*tl+1}], v16")
            if tl == 0:
                a(f"ds_read_b64 v[{ONES}:{ONES+1}], v16 offset:8")
        a("s_lshl_b32 s23, s6, 12")
        a(f"s_sub_u32 s23, s23, {rdbase[0]}")
        a(f"v_add_u32 v16, s23, v{VT}")
        a(f"v_add_u32 v17, 0x10000, v16")
        HR = FR + 16
        for m in range(3):
            va, off = (16, 32768 * m) if m < 2 else (17, 0)
            a(f"ds_read_b64_tr_b16 v[{HR+4*m}:{HR+4*m+1}], v{va} offset:{off}")
            a(f"ds_read_b64_tr_b16 v[{HR+4*m+2}:{HR+4*m+3}], v{va} offset:{off+512}")
    a("s_waitcnt vmcnt(0) lgkmcnt(0)")
    for r in range(4):
        a(f"v_add_f32 v{ACS+r}, v{ACS+r}, v{ACS+4+r}")
        a(f"v_add_f32 v{ACS+8+r}, v{ACS+8+r}, v{ACS+12+r}")
    for r in range(4):
        a(f"v_add_f32 v{ACS+r}, v{ACS+r}, v{ACS+8+r}")
    O = ACS + 4
    def unpack(dst, src, n):
        for m in range(n):
            a(f"v_lshlrev_b32 v{dst+2*m}, 16, v{src+m}")
            a(f"v_and_b32 v{dst+2*m+1}, s{MASK}, v{src+m}")
    def addres(P, n, res):
        unpack(T, P, n)
        unpack(T + 8, res, n)
        for m in range(n):
            a(f"v_pk_add_f32 v[{T+2*m}:{T+2*m+1}], v[{T+2*m}:{T+2*m+1}], v[{T+8+2*m}:{T+8+2*m+1}]")
        for m in range(n):
            a(f"v_cvt_pk_bf16_f32 v{P+m}, v{T+2*m}, v{T+2*m+1}")
    outarr = {'k3': 'H1F', 'k4': 'X1F'}.get(mode)
    if k6:
        srd(a, 12, 38, 0, ACT)
        a("s_lshl_b32 s26, s19, 5")
        a("s_lshl_b32 s27, s20, 5")
    else:
        a(f"s_add_u32 s26, s26, 0x{WS[outarr][0]:x}")
        a(f"s_add_u32 s27, s27, 0x{WS[outarr][0]:x}")
    for pr in range(2):
        P = O + 4 * pr
        for h in range(2):
            tl = 2 * pr + h
            X = ACC + 4 * tl
            if k3:
                ln_apply_gelu(a, X, AB + 2 * tl, EX, T, CG, P + 2 * h)
            else:
                a(f"v_cvt_pk_bf16_f32 v{P+2*h}, v{X}, v{X+1}")
                a(f"v_cvt_pk_bf16_f32 v{P+2*h+1}, v{X+2}, v{X+3}")
        swap_pair(a, P)
        if k4: addres(P, 4, EX + 4 * pr)
        if k6:
            addres(P, 4, EX + 4 * pr)
            addres(P, 4, EX + 12 + 4 * pr)
            a(f"buffer_store_dwordx4 v[{P}:{P+3}], v{24+pr}, s[12:15], s26 offen")
        else:
            a(f"buffer_store_dwordx4 v[{P}:{P+3}], v{VP+pr}, s[8:11], s26 offen")
    P = O + 8
    if k3:
        ln_apply_gelu(a, ACS, AB, EX + 4, T, CG, P)
    else:
        a(f"v_cvt_pk_bf16_f32 v{P}, v{ACS}, v{ACS+1}")
        a(f"v_cvt_pk_bf16_f32 v{P+1}, v{ACS+2}, v{ACS+3}")
    if k4: addres(P, 2, EX + 8)
    if k6:
        addres(P, 2, EX + 8)
        addres(P, 2, EX + 12 + 8)
        a(f"buffer_store_dwordx2 v[{P}:{P+1}], v26, s[12:15], s27 offen")
    else:
        a(f"buffer_store_dwordx2 v[{P}:{P+1}], v22, s[8:11], s27 offen")
    if k3:
        a("v_lshl_add_u32 v16, v5, 8, v23")
        a("s_lshl_b32 s23, s6, 10")
        a(f"s_add_u32 s24, s23, 0x{WS['XBF'][0]:x}")
        a(f"s_add_u32 s23, s23, 0x{WS['HF'][0]:x}")
        for m in range(3):
            if m == 2:
                a("s_cmp_ge_u32 s6, 4")
                a(f"s_cbranch_scc1 {K}_END")
            H = HR + 4 * m
            a(f"buffer_store_dwordx4 v[{H}:{H+3}], v16, s[8:11], s23 offen")
            unpack(T, H, 4)
            for p in range(0, 8, 2):
                a(f"v_pk_add_f32 v[{T+p}:{T+p+1}], v[{T+p}:{T+p+1}], v[{ONES}:{ONES+1}] op_sel_hi:[1,0] neg_lo:[0,1] neg_hi:[0,1]")
            for p in range(0, 8, 2):
                rbf2(a, T + p, T + p + 1, T + 8)
            for p in range(0, 8, 2):
                a(f"v_pk_mul_f32 v[{T+p}:{T+p+1}], v[{T+p}:{T+p+1}], v[{ONES}:{ONES+1}] op_sel:[0,1] op_sel_hi:[1,1]")
            XO = ACC + 4 * m
            for p in range(4):
                a(f"v_cvt_pk_bf16_f32 v{XO+p}, v{T+2*p}, v{T+2*p+1}")
            a(f"buffer_store_dwordx4 v[{XO}:{XO+3}], v16, s[8:11], s24 offen")
            a("s_add_u32 s23, s23, 8192")
            a("s_add_u32 s24, s24, 8192")
    a.label(f"{K}_END")
    a("s_endpgm")
    nagpr = 4 * KS + KS
    return dict(name=name, grid=256, block=256, lds=LDS, vgpr=132 + nagpr, accum=132)

def gen_k5(a, name):
    K = "K5"
    KS = 20
    common_head(a, name, K)
    SCR = KS * 4096
    STAT = SCR
    LDS = SCR + 1024
    a("s_lshl_b32 s16, s7, 2")
    a("s_add_u32 s16, s16, s3")
    a(f"s_mul_i32 s16, s16, {KS*1024}")
    a(f"s_add_u32 s16, s16, 0x{WS['X1F'][0]:x}")
    a("s_lshl_b32 s18, s3, 10")
    a("s_mul_i32 s19, s6, 12")
    a("s_mul_i32 s20, s3, 3")
    a("s_add_u32 s19, s19, s20")
    a(f"s_mul_i32 s21, s19, {KS*1024}")
    a(f"s_add_u32 s21, s21, 0x{WS['WP3'][0]:x}")
    a(f"s_add_u32 s22, s21, {KS*1024}")
    a(f"s_add_u32 s28, s22, {KS*1024}")
    a("s_waitcnt lgkmcnt(0)")
    srd(a, 8, 40, 0, WS_TOTAL)
    issued = []
    def dma(s):
        a(f"s_add_u32 m0, s18, {s*4096}")
        if s: a("s_add_u32 s16, s16, 1024")
        else: a("s_nop 0")
        a("buffer_load_dwordx4 v6, s[8:11], s16 offen lds")
        issued.append(("A", s))
    def wload(jj, s):
        sg = (21, 22, 28)[jj]
        b = 80 * jj + 4 * s
        a(f"buffer_load_dwordx4 a[{b}:{b+3}], v6, s[8:11], s{sg} offen offset:{(s % 4)*1024}")
        if s % 4 == 3: a(f"s_add_u32 s{sg}, s{sg}, 4096")
        issued.append(("W" if jj < 2 else "V", s))
    for s in range(KS):
        dma(s); wload(0, s); wload(1, s)
    VT = 12
    for tl in range(4):
        a(f"s_add_u32 s23, s3, {tl}")
        a("s_and_b32 s23, s23, 3")
        a("s_lshl_b32 s23, s23, 10")
        a(f"v_add_u32 v{VT+tl}, s23, v6")
    VP = 20
    for pr in range(2):
        a("v_and_b32 v16, 1, v5")
        a(f"s_add_u32 s25, s3, {2*pr}")
        a("v_add_u32 v16, s25, v16")
        a("v_and_b32 v16, 3, v16")
        a("s_lshl_b32 s23, s7, 2")
        a("v_add_u32 v17, s23, v16")
        a(f"v_mul_u32_u24 v{VP+pr}, {48*1024}, v17")
        a(f"v_lshl_add_u32 v{VP+pr}, v4, 4, v{VP+pr}")
        a("v_lshrrev_b32 v17, 1, v5")
        a(f"v_lshl_add_u32 v{VP+pr}, v17, 8, v{VP+pr}")
    a("s_lshl_b32 s26, s19, 9")
    a(f"s_add_u32 s26, s26, 0x{WS['H3F'][0]:x}")
    EX = 28
    CG = 24
    ACC, S1, S2, ONES, FR, T, O = 40, 88, 92, 96, 100, 132, 148
    a("v_lshlrev_b32 v16, 4, v5")
    a("s_lshl_b32 s23, s19, 6")
    a(f"s_add_u32 s23, s23, 0x{WS['CS'][0] + 640*4:x}")
    for jj in range(3):
        a(f"buffer_load_dwordx4 v[{EX+4*jj}:{EX+4*jj+3}], v16, s[8:11], s23 offen offset:{64*jj}")
        issued.append(("X", 0))
    for r in range(4): a(f"v_mov_b32 v{ONES+r}, 0x3f803f80")
    gelu_consts(a, CG)
    rdbase = [0]
    def frag_reads(s):
        b = FR + 16 * (s & 1)
        off = s * 4096 - rdbase[0]
        return [f"ds_read_b128 v[{b+4*tl}:{b+4*tl+3}], v{VT+tl} offset:{off}" for tl in range(4)]
    def rebase(s):
        want = (s // 12) * 12 * 4096
        if want != rdbase[0]:
            d = want - rdbase[0]
            for tl in range(4):
                a(f"v_add_u32 v{VT+tl}, {d & 0xffffffff}, v{VT+tl}")
            rdbase[0] = want
    stages = [2, 5, 10, 15, 20]
    s0 = 0
    nv = 0
    for st, s1 in enumerate(stages):
        last = max(idx for idx, tg in enumerate(issued) if tg[0] in "AW" and tg[1] <= s1 - 1)
        a(f"s_waitcnt vmcnt({len(issued) - 1 - last})")
        a("s_barrier")
        lim = min(KS, 3 * s1)
        while nv < lim:
            wload(2, nv); nv += 1
        rebase(s0)
        for r in frag_reads(s0): a(r)
        for s in range(s0, s1):
            b = FR + 16 * (s & 1)
            a("s_waitcnt lgkmcnt(0)")
            pre = []
            if s + 1 < s1:
                rebase(s + 1)
                pre = frag_reads(s + 1)
            for jj in range(2):
                for tl in range(4):
                    d = ACC + 16 * jj + 4 * tl
                    c = "0" if s == 0 else f"v[{d}:{d+3}]"
                    a(f"v_mfma_f32_16x16x32_bf16 v[{d}:{d+3}], a[{80*jj+4*s}:{80*jj+4*s+3}], v[{b+4*tl}:{b+4*tl+3}], {c}")
                    if pre and jj == 0: a(pre[tl])
            c1 = "0" if s == 0 else f"v[{S1}:{S1+3}]"
            c2 = "0" if s == 0 else f"v[{S2}:{S2+3}]"
            a(f"v_mfma_f32_16x16x32_bf16 v[{S1}:{S1+3}], v[{ONES}:{ONES+3}], v[{b}:{b+3}], {c1}")
            a(f"v_mfma_f32_16x16x32_bf16 v[{S2}:{S2+3}], v[{b}:{b+3}], v[{b}:{b+3}], {c2}")
        s0 = s1
    a("s_lshl_b32 s23, s3, 8")
    a(f"s_add_u32 s23, s23, {STAT}")
    a("v_lshl_add_u32 v16, v4, 4, s23")
    a("s_nop 6")
    stats_calc(a, S1, S2, 4, 5, T, False, 16)
    a("s_waitcnt lgkmcnt(0)")
    a("s_barrier")
    AB = S1
    for tl in range(4):
        a(f"s_add_u32 s23, s3, {tl}")
        a("s_and_b32 s23, s23, 3")
        a("s_lshl_b32 s23, s23, 8")
        a(f"s_add_u32 s23, s23, {STAT}")
        a("v_lshl_add_u32 v16, v4, 4, s23")
        a(f"ds_read_b64 v[{AB+2*tl}:{AB+2*tl+1}], v16")
    rebase(0)
    for r in frag_reads(0): a(r)
    a("s_waitcnt vmcnt(0)")
    def epi(jj):
        for pr in range(2):
            P = O + 4 * pr
            for h in range(2):
                tl = 2 * pr + h
                ln_apply_gelu(a, ACC + 16 * jj + 4 * tl, AB + 2 * tl, EX + 4 * jj, T, CG, P + 2 * h)
            swap_pair(a, P)
            a(f"buffer_store_dwordx4 v[{P}:{P+3}], v{VP+pr}, s[8:11], s26 offen offset:{512*jj}")
    for s in range(KS):
        b = FR + 16 * (s & 1)
        a("s_waitcnt lgkmcnt(0)")
        pre = []
        if s + 1 < KS:
            rebase(s + 1)
            pre = frag_reads(s + 1)
        for tl in range(4):
            d = ACC + 32 + 4 * tl
            c = "0" if s == 0 else f"v[{d}:{d+3}]"
            a(f"v_mfma_f32_16x16x32_bf16 v[{d}:{d+3}], a[{160+4*s}:{160+4*s+3}], v[{b+4*tl}:{b+4*tl+3}], {c}")
            if pre: a(pre[tl])
    epi(0); epi(1); epi(2)
    a.label(f"{K}_END")
    a("s_endpgm")
    return dict(name=name, grid=256, block=256, lds=LDS, vgpr=156 + 240, accum=156)
```

```python
L, D, N, F = 2048, 640, 192, 1536
def _al(x, a=4096): return (x + a - 1) // a * a
_off = 0
WS = {}
def _alloc(name, size):
    global _off
    WS[name] = (_off, size)
    _off = _al(_off + size)
ACT = L * D * 2
GH = 4160
GS = 2 * GH
NT = 2816
_alloc("UT", ACT)
_alloc("XT", ACT)
_alloc("G", D * GS)
_alloc("HT", ACT)
_alloc("WP1", D * D * 2)
_alloc("WP2", D * D * 2)
_alloc("WP3", D * F * 2)
_alloc("WP4", D * F * 2)
_alloc("CSP", 20 * NT * 4)
_alloc("CS", NT * 4)
_alloc("HF", ACT)
_alloc("XBF", ACT)
_alloc("H1F", ACT)
_alloc("X1F", ACT)
_alloc("H3F", L * F * 2)
WS_TOTAL = _off
if __name__ == "__main__":
    for k, v in WS.items(): print(k, hex(v[0]), v[1])
    print(hex(WS_TOTAL))
```

```python
import sys
from asmlib import *
from layout import *
import k1, k2, kg
NAME = "sequential_preLN__ssm_conv_s4__mixer_s_mlp__prompt"
def build(nk=6):
    a = Asm()
    ks = []
    ks.append(k1.gen_k1(a, "k1_kernel"))
    ks.append(k2.gen_k2(a, "k2_kernel"))
    ks.append(kg.gen_gemm5(a, "k3_kernel", "K3", 20, "WP1", "k3"))
    ks.append(kg.gen_gemm5(a, "k4_kernel", "K4", 20, "WP2", "k4"))
    ks.append(kg.gen_k5(a, "k5_kernel"))
    ks.append(kg.gen_gemm5(a, "k6_kernel", "K6", 48, "WP4", "k6"))
    ref = open(f"cdna_kernels/{NAME}.s.ref").read().split("\n")
    head = [l for l in ref if l.startswith(";") and "@launch" not in l and "Override launch" not in l and "grid=ceil" not in l]
    out = "\n".join(head) + "\n"
    for k in ks[:nk]:
        out += f"; @launch kernel={k['name']} grid=({k['grid']},1,1) block=({k['block']},1,1) lds={k['lds']}\n"
    out += '.amdgcn_target "amdgcn-amd-amdhsa--gfx950"\n.text\n'
    out += a.text()
    out += '.section .rodata,"a"\n'
    for k in ks:
        out += ".p2align 6\n" + kernel_desc(k["name"], k["vgpr"], k["accum"])
    return out
if __name__ == "__main__":
    dst = sys.argv[1] if len(sys.argv) > 1 else f"cdna_kernels/{NAME}.s"
    open(dst, "w").write(build())
    print("wrote", dst)
```

```python
class Asm:
    def __init__(self):
        self.lines = []
        self._lbl = 0
    def __call__(self, s):
        for ln in s.strip("\n").split("\n"):
            self.lines.append("    " + ln.strip())
    def raw(self, s):
        self.lines.append(s)
    def label(self, l):
        self.lines.append(l + ":")
    def newlabel(self, p="L"):
        self._lbl += 1
        return f"{p}_{self._lbl}"
    def comment(self, s):
        self.lines.append("    ; " + s)
    diag = False
    kidx = 0
    def stamp(self, slot, real=False):
        if not self.diag: return
        self("s_memrealtime s[76:77]" if real else "s_memtime s[76:77]")
        self("s_waitcnt lgkmcnt(0)")
        self(f"s_mov_b32 s{80+slot}, s76")
    def start(self):
        if not self.diag: return
        for i in range(16): self(f"s_mov_b32 s{80+i}, 0")
        self.stamp(0, True)
        self.stamp(2)
    def endk(self):
        if self.diag:
            self("s_waitcnt vmcnt(0) lgkmcnt(0)")
            self.stamp(3)
            self.stamp(1, True)
            self("s_mov_b64 exec, -1")
            self("s_add_u32 s72, s40, 0x8000000")
            self("s_addc_u32 s73, s41, 0")
            self("s_mov_b32 s74, 0x1000000")
            self("s_mov_b32 s75, 0x00020000")
            for i in range(16): self(f"v_writelane_b32 v2, s{80+i}, {i}")
            self(f"s_add_u32 s76, s2, {self.kidx*1024}")
            self("s_lshl_b32 s76, s76, 2")
            self("s_add_u32 s76, s76, s3")
            self("s_lshl_b32 s76, s76, 6")
            self("v_mbcnt_lo_u32_b32 v3, -1, 0")
            self("v_mbcnt_hi_u32_b32 v3, -1, v3")
            self("v_cmp_gt_u32 vcc, 16, v3")
            self("v_lshlrev_b32 v3, 2, v3")
            self("s_and_saveexec_b64 s[78:79], vcc")
            self("buffer_store_dword v2, v3, s[72:75], s76 offen")
        self("s_endpgm")
    def text(self):
        return "\n".join(self.lines) + "\n"

def vr(b, n=1):
    return f"v{b}" if n == 1 else f"v[{b}:{b+n-1}]"
def ar(b, n=1):
    return f"a{b}" if n == 1 else f"a[{b}:{b+n-1}]"
def sr(b, n=1):
    return f"s{b}" if n == 1 else f"s[{b}:{b+n-1}]"

import struct
def f2u(x):
    return struct.unpack("<I", struct.pack("<f", x))[0]
def fhex(x):
    return "0x%08x" % f2u(x)

def srd(a, d, base, off, size):
    if off:
        a(f"s_add_u32 s{d}, s{base}, 0x{off:x}")
        a(f"s_addc_u32 s{d+1}, s{base+1}, 0")
    else:
        a(f"s_mov_b32 s{d}, s{base}")
        a(f"s_mov_b32 s{d+1}, s{base+1}")
    a(f"s_mov_b32 s{d+2}, 0x{size:x}")
    a(f"s_mov_b32 s{d+3}, 0x00020000")

def kernel_begin(a, name):
    a.raw(f".globl {name}")
    a.raw(".p2align 8")
    a.raw(f".type {name},@function")
    a.label(name)

def kernel_desc(name, vgpr, accum, sgpr=102):
    return f""".amdhsa_kernel {name}
  .amdhsa_next_free_vgpr {vgpr}
  .amdhsa_next_free_sgpr {sgpr}
  .amdhsa_accum_offset {accum}
  .amdhsa_group_segment_fixed_size 0
  .amdhsa_kernarg_size 136
  .amdhsa_user_sgpr_count 2
  .amdhsa_user_sgpr_kernarg_segment_ptr 1
  .amdhsa_system_sgpr_workgroup_id_x 1
.end_amdhsa_kernel
"""
```

```python
from asmlib import *
from layout import *
import math
LOG2E = 1.4426950408889634

def pack_common(a, B, sb, ns, magic):
    t0, t1 = B + 9, B + 10
    a(f"s_mul_hi_u32 s{t0}, s{sb}, s{magic}")
    a(f"s_mul_i32 s{t1}, s{t0}, s{ns}")
    a(f"s_sub_u32 s{t1}, s{sb}, s{t1}")
    a(f"s_mul_i32 s{B+5}, s{t0}, s{B+4}")
    a(f"s_lshl_b32 s{B+5}, s{B+5}, 5")
    a(f"s_lshl_b32 s{sb}, s{t1}, 7")
    a(f"s_add_u32 s{B+5}, s{B+5}, s{sb}")
    a(f"s_mul_i32 s{sb}, s{t1}, s{B+7}")
    a(f"s_lshl_b32 s{sb}, s{sb}, 2")
    a(f"s_add_u32 s{B+6}, s{B+6}, s{sb}")
    a(f"s_lshl_b32 s{sb}, s{t0}, 10")
    a(f"s_add_u32 s{B+6}, s{B+6}, s{sb}")
    a(f"s_mul_i32 s{sb}, s{t0}, {NT*4}")
    a(f"s_add_u32 s{B+8}, s{B+8}, s{sb}")
    a(f"s_lshl_b32 s{sb}, s{t1}, 8")
    a(f"s_add_u32 s{B+8}, s{B+8}, s{sb}")

def pack_issue(a, B, vlane, vtmp, ldsbase_s, ldsoff):
    a(f"v_lshrrev_b32 v{vtmp}, 3, v{vlane}")
    a(f"v_mul_lo_u32 v{vtmp}, v{vtmp}, s{B+4}")
    a(f"v_and_b32 v{vtmp+1}, 7, v{vlane}")
    a(f"v_lshl_add_u32 v{vtmp}, v{vtmp+1}, 4, v{vtmp}")
    a(f"s_lshl_b32 s{B+9}, s{B+4}, 3")
    for m in range(4):
        a(f"s_add_u32 m0, s{ldsbase_s}, {ldsoff + m*1024}")
        if m:
            a(f"s_add_u32 s{B+5}, s{B+5}, s{B+9}")
        else:
            a("s_nop 0")
        a(f"buffer_load_dwordx4 v{vtmp}, s[{B}:{B+3}], s{B+5} offen lds")

def pack_finish(a, B, vrd, vst, vF, wssrd, ldsoff, colsum=None):
    for jj in range(4):
        for h in range(2):
            a(f"ds_read_b64_tr_b16 v[{vF+4*jj+2*h}:{vF+4*jj+2*h+1}], v{vrd} offset:{ldsoff + h*512 + jj*32}")
    for jj in range(4):
        a(f"s_waitcnt lgkmcnt({6-2*jj})")
        a(f"buffer_store_dwordx4 v[{vF+4*jj}:{vF+4*jj+3}], v{vst}, s[{wssrd}:{wssrd+3}], s{B+6} offen")
        if colsum:
            vsel, vD, vcs = colsum
            c = "0" if jj == 0 else f"v[{vD}:{vD+3}]"
            a(f"v_mfma_f32_16x16x32_bf16 v[{vD}:{vD+3}], v[{vF+4*jj}:{vF+4*jj+3}], v[{vsel+4*jj}:{vsel+4*jj+3}], {c}")
        if jj < 3:
            a(f"s_add_u32 s{B+6}, s{B+6}, s{B+7}")
    if colsum:
        vsel, vD, vcs = colsum
        a("s_nop 7")
        a(f"buffer_store_dwordx4 v[{vD}:{vD+3}], v{vcs}, s[{wssrd}:{wssrd+3}], s{B+8} offen")
        a("s_nop 1")

def pack_lane_setup(a, vlane, vrd, vst, vt, ldsbase_s):
    a(f"v_lshrrev_b32 v{vt}, 4, v{vlane}")
    a(f"v_lshlrev_b32 v{vrd}, 10, v{vt}")
    a(f"v_bfe_u32 v{vt}, v{vlane}, 2, 2")
    a(f"v_lshl_add_u32 v{vrd}, v{vt}, 7, v{vrd}")
    a(f"v_and_b32 v{vt}, 3, v{vlane}")
    a(f"v_lshl_add_u32 v{vrd}, v{vt}, 3, v{vrd}")
    a(f"v_add_u32 v{vrd}, s{ldsbase_s}, v{vrd}")
    a(f"v_lshlrev_b32 v{vst}, 4, v{vlane}")

K1_WGS = 768
KG_ROW = 272
KG_WAVE = 53 * KG_ROW
K1_LDS = 3 * KG_WAVE + 8192
LN_ROW = 2624

def red32(a, ra, rb, ta, tb):
    a("s_nop 1")
    for ctrl in ("quad_perm:[1,0,3,2]", "quad_perm:[2,3,0,1]", "row_half_mirror", "row_mirror"):
        a(f"v_add_f32_dpp v{ra}, v{ra}, v{ra} {ctrl} row_mask:0xf bank_mask:0xf")
        a(f"v_add_f32_dpp v{rb}, v{rb}, v{rb} {ctrl} row_mask:0xf bank_mask:0xf")
        a("s_nop 0")
    a(f"v_mov_b32 v{ta}, v{ra}")
    a(f"v_mov_b32 v{tb}, v{rb}")
    a("s_nop 1")
    a(f"v_permlane16_swap_b32 v{ra}, v{ta}")
    a(f"v_permlane16_swap_b32 v{rb}, v{tb}")
    a("s_nop 0")
    a(f"v_add_f32 v{ra}, v{ra}, v{ta}")
    a(f"v_add_f32 v{rb}, v{rb}, v{tb}")

def gen_k1(a, name):
    kernel_begin(a, name)
    a(f"s_cmp_ge_u32 s2, {K1_WGS}")
    a("s_cbranch_scc1 K1_EXIT")
    a.start()
    a("s_load_dwordx16 s[16:31], s[0:1], 0")
    a("s_load_dwordx8 s[32:39], s[0:1], 80")
    a("s_load_dwordx2 s[40:41], s[0:1], 128")
    a("v_and_b32 v1, 63, v0")
    a("v_lshrrev_b32 v2, 6, v0")
    a("s_mov_b32 s42, 0xffff0000")
    a("v_readfirstlane_b32 s3, v2")
    a("s_cmp_lt_u32 s2, 128")
    a("s_cbranch_scc0 K1_KGEN")
    a("s_and_b32 s4, s2, 7")
    a("s_lshr_b32 s5, s2, 3")
    a("s_lshl_b32 s4, s4, 2")
    a("s_and_b32 s6, s5, 3")
    a("s_add_u32 s4, s4, s6")
    a("s_lshr_b32 s5, s5, 2")
    a("s_lshl_b32 s6, s4, 6")
    a("s_lshl_b32 s7, s5, 3")
    a("s_add_u32 s6, s6, s7")
    a("v_lshrrev_b32 v3, 5, v0")
    a("v_and_b32 v4, 31, v0")
    a("v_add_u32 v5, s6, v3")
    a("s_movk_i32 s7, 1280")
    a("v_mul_lo_u32 v5, v5, s7")
    a("v_lshl_add_u32 v5, v4, 3, v5")
    a("s_mov_b32 s7, 40960")
    a("s_waitcnt lgkmcnt(0)")
    srd(a, 8, 16, 0, ACT)
    XA, XB, FA, FB = 10, 20, 30, 50
    for i in range(5):
        a(f"buffer_load_dwordx2 v[{XA+2*i}:{XA+2*i+1}], v5, s[8:11], 0 offen offset:{256*i}")
    for i in range(5):
        a(f"buffer_load_dwordx2 v[{XB+2*i}:{XB+2*i+1}], v5, s[8:11], s7 offen offset:{256*i}")
    srd(a, 12, 40, WS["UT"][0], 2 * ACT)
    a(f"s_movk_i32 s7, {LN_ROW}")
    a("v_mul_lo_u32 v6, v3, s7")
    a("v_lshl_add_u32 v6, v4, 4, v6")
    a("v_bfe_u32 v8, v1, 2, 2")
    a("v_mul_lo_u32 v7, v8, s7")
    a("v_lshrrev_b32 v8, 4, v1")
    a("v_lshl_add_u32 v7, v8, 5, v7")
    a("v_and_b32 v8, 3, v1")
    a("v_lshl_add_u32 v7, v8, 3, v7")
    a("s_mul_i32 s7, s3, 640")
    a("v_add_u32 v7, s7, v7")
    a("v_lshrrev_b32 v8, 1, v1")
    a("s_mul_i32 s7, s3, 160")
    a("v_add_u32 v8, s7, v8")
    a("v_lshlrev_b32 v9, 12, v8")
    a("v_and_b32 v8, 1, v1")
    a("v_lshl_add_u32 v9, v8, 4, v9")
    a("s_lshl_b32 s7, s5, 10")
    a("s_lshl_b32 s43, s4, 5")
    a("s_add_u32 s7, s7, s43")
    a("v_add_u32 v9, s7, v9")
    a("s_mov_b32 s44, 0x05040100")
    a("s_mov_b32 s45, 0x07060302")
    SA, SB, TA, TB = 70, 72, 74, 76
    for (X, Fr, S, cnt) in ((XA, FA, SA, 5), (XB, FB, SB, 0)):
        a(f"s_waitcnt vmcnt({cnt})")
        for m in range(10):
            a(f"v_lshlrev_b32 v{Fr+2*m}, 16, v{X+m}")
            a(f"v_and_b32 v{Fr+2*m+1}, s42, v{X+m}")
        a(f"v_pk_add_f32 v[{S}:{S+1}], v[{Fr}:{Fr+1}], v[{Fr+2}:{Fr+3}]")
        for m in range(2, 10):
            a(f"v_pk_add_f32 v[{S}:{S+1}], v[{S}:{S+1}], v[{Fr+2*m}:{Fr+2*m+1}]")
        a(f"v_add_f32 v{S}, v{S}, v{S+1}")
    a.stamp(4)
    red32(a, SA, SB, TA, TB)
    a(f"s_mov_b32 s46, {fhex(1.0/640)}")
    a(f"v_mul_f32 v{SA}, s46, v{SA}")
    a(f"v_mul_f32 v{SB}, s46, v{SB}")
    QA, QB = 78, 80
    for (Fr, S, Q, T) in ((FA, SA, QA, TA), (FB, SB, QB, TB)):
        for m in range(10):
            a(f"v_pk_add_f32 v[{T}:{T+1}], v[{Fr+2*m}:{Fr+2*m+1}], v[{S}:{S+1}] op_sel_hi:[1,0] neg_lo:[0,1] neg_hi:[0,1]")
            if m == 0:
                a(f"v_pk_mul_f32 v[{Q}:{Q+1}], v[{T}:{T+1}], v[{T}:{T+1}]")
            else:
                a(f"v_pk_fma_f32 v[{Q}:{Q+1}], v[{T}:{T+1}], v[{T}:{T+1}], v[{Q}:{Q+1}]")
        a(f"v_add_f32 v{Q}, v{Q}, v{Q+1}")
    red32(a, QA, QB, TA, TB)
    a(f"v_mul_f32 v{QA}, s46, v{QA}")
    a(f"v_mul_f32 v{QB}, s46, v{QB}")
    a(f"v_cvt_pk_bf16_f32 v{TA}, v{SA}, v{SB}")
    a(f"v_lshlrev_b32 v{SA}, 16, v{TA}")
    a(f"v_and_b32 v{SB}, s42, v{TA}")
    a(f"v_cvt_pk_bf16_f32 v{TA}, v{QA}, v{QB}")
    a(f"v_lshlrev_b32 v{QA}, 16, v{TA}")
    a(f"v_and_b32 v{QB}, s42, v{TA}")
    a(f"v_add_f32 v{QA}, {fhex(1e-5)}, v{QA}")
    a(f"v_add_f32 v{QB}, {fhex(1e-5)}, v{QB}")
    a(f"v_cvt_pk_bf16_f32 v{TA}, v{QA}, v{QB}")
    a(f"v_lshlrev_b32 v{QA}, 16, v{TA}")
    a(f"v_and_b32 v{QB}, s42, v{TA}")
    a(f"v_sqrt_f32 v{QA}, v{QA}")
    a(f"v_sqrt_f32 v{QB}, v{QB}")
    a("s_nop 0")
    a(f"v_cvt_pk_bf16_f32 v{TA}, v{QA}, v{QB}")
    a(f"v_lshlrev_b32 v{QA}, 16, v{TA}")
    a(f"v_and_b32 v{QB}, s42, v{TA}")
    INV = 82
    a(f"v_rcp_f32 v{INV}, v{QA}")
    a(f"v_rcp_f32 v{INV+1}, v{QB}")
    for (Fr, S) in ((FA, SA), (FB, SB)):
        for m in range(10):
            a(f"v_pk_add_f32 v[{Fr+2*m}:{Fr+2*m+1}], v[{Fr+2*m}:{Fr+2*m+1}], v[{S}:{S+1}] op_sel_hi:[1,0] neg_lo:[0,1] neg_hi:[0,1]")
    UO, XO = 84, 104
    for e in range(20):
        t = TA + 2 * (e & 1)
        a(f"v_cvt_pk_bf16_f32 v{UO+e}, v{FA+e}, v{FB+e}")
        a(f"v_lshlrev_b32 v{t}, 16, v{UO+e}")
        a(f"v_and_b32 v{t+1}, s42, v{UO+e}")
        a(f"v_pk_mul_f32 v[{t}:{t+1}], v[{t}:{t+1}], v[{INV}:{INV+1}]")
        a(f"v_cvt_pk_bf16_f32 v{UO+e}, v{t}, v{t+1}")
        if e % 4 == 3:
            i = e // 4
            a(f"ds_write_b128 v6, v[{UO+4*i}:{UO+4*i+3}] offset:{512*i}")
    for m in range(10):
        a(f"v_perm_b32 v{XO+2*m}, v{XB+m}, v{XA+m}, s44")
        a(f"v_perm_b32 v{XO+2*m+1}, v{XB+m}, v{XA+m}, s45")
        if m % 2 == 1:
            i = m // 2
            a(f"ds_write_b128 v6, v[{XO+4*i}:{XO+4*i+3}] offset:{8*LN_ROW + 512*i}")
    a("s_waitcnt lgkmcnt(0)")
    a.stamp(5)
    a("s_barrier")
    a.stamp(6)
    R = 10
    for arr in range(2):
        for p in range(5):
            for h in range(2):
                d = R + (arr * 5 + p) * 4 + 2 * h
                a(f"ds_read_b64_tr_b16 v[{d}:{d+1}], v7 offset:{arr*8*LN_ROW + h*4*LN_ROW + p*128}")
        a(f"s_mov_b32 s7, {arr*ACT}")
        for p in range(5):
            d = R + (arr * 5 + p) * 4
            a(f"s_waitcnt lgkmcnt({8-2*p})")
            a(f"buffer_store_dwordx4 v[{d}:{d+3}], v9, s[12:15], s7 offen")
            if p < 4:
                a(f"s_add_u32 s7, s7, {32*4096}")
    a.endk()

    a.label("K1_KGEN")
    a("s_sub_u32 s4, s2, 128")
    a("s_cmp_eq_u32 s3, 3")
    a("s_cbranch_scc1 K1_PACK")
    a("s_mul_i32 s5, s4, 384")
    a("v_lshl_add_u32 v3, v0, 1, s5")
    a("s_lshl_b32 s5, s4, 1")
    a("v_mov_b32 v4, s5")
    a("s_waitcnt lgkmcnt(0)")
    P = 10
    a(f"global_load_ushort v{P+6}, v4, s[30:31]")
    for i in range(6):
        a(f"global_load_ushort v{P+i}, v3, s[{18+2*i}:{19+2*i}]")
    srd(a, 12, 40, WS["G"][0], WS["G"][1])
    a(f"s_mul_i32 s6, s3, {KG_WAVE}")
    a("v_lshl_add_u32 v5, v1, 2, s6")
    a("v_and_b32 v6, 31, v1")
    a("v_lshrrev_b32 v7, 5, v1")
    a(f"s_movk_i32 s7, {KG_ROW}")
    a("v_mul_lo_u32 v8, v6, s7")
    a("v_lshl_add_u32 v8, v7, 4, v8")
    a("v_add_u32 v8, s6, v8")
    PW0, PW1, PW2, PW3 = 20, 21, 22, 23
    a(f"v_lshlrev_b32 v{PW0}, 5, v6")
    a(f"v_lshl_add_u32 v{PW0}, v7, 4, v{PW0}")
    a(f"v_add_u32 v{PW0}, s6, v{PW0}")
    a("v_cmp_eq_u32 vcc, 1, v7")
    a(f"v_lshlrev_b32 v{PW3}, 4, v6")
    a(f"v_add_u32 v{PW1}, {256*4}, v{PW3}")
    a(f"v_add_u32 v{PW2}, {258*4}, v{PW3}")
    a(f"v_lshlrev_b32 v{PW3}, 3, v6")
    a(f"v_add_u32 v9, {384*4}, v{PW3}")
    a(f"v_cndmask_b32 v{PW1}, v{PW1}, v9, vcc")
    a(f"v_add_u32 v9, {448*4}, v{PW3}")
    a(f"v_cndmask_b32 v{PW2}, v{PW2}, v9, vcc")
    a(f"v_add_u32 v{PW1}, s6, v{PW1}")
    a(f"v_add_u32 v{PW2}, s6, v{PW2}")
    a(f"v_lshlrev_b32 v{PW3}, 2, v6")
    a(f"v_lshl_add_u32 v{PW3}, v7, 9, v{PW3}")
    a(f"v_add_u32 v{PW3}, s6, v{PW3}")
    TB0 = 4096 + 32
    GA = 24
    code128 = (f2u(128.0) >> 16)
    for rnd in range(2):
        g = GA + 9 * rnd
        a(f"v_lshlrev_b32 v9, 3, v0")
        a(f"v_sub_u32 v9, {2047 - 8*192*rnd}, v9")
        a("v_cvt_f32_i32 v42, v9")
        a("v_cmp_gt_i32 vcc, 256, v9")
        a(f"v_lshlrev_b32 v9, 1, v9")
        a(f"v_add_u32 v9, {TB0}, v9")
        for i in range(0, 9, 2):
            a(f"v_add_f32 v43, {fhex(-float(i))}, v42")
            a(f"v_add_f32 v44, {fhex(-float(i+1))}, v42")
            a("v_cvt_pk_bf16_f32 v45, v43, v44")
            for k in range(2):
                if i + k > 8: continue
                if k == 0:
                    a("v_and_b32 v43, 0xffff, v45")
                else:
                    a("v_lshrrev_b32 v43, 16, v45")
                a(f"v_lshlrev_b32 v43, 1, v43")
                a(f"v_add_u32 v43, {(TB0 + 2*(128 - code128)) & 0xffffffff}, v43")
                a(f"v_add_u32 v44, {(-2*(i+k)) & 0xffffffff}, v9") if (i + k) else a("v_mov_b32 v44, v9")
                a(f"v_cndmask_b32 v{g+i+k}, v43, v44, vcc")
    a.stamp(7)
    a("s_waitcnt vmcnt(0)")
    a.stamp(4)
    for i in range(7):
        a(f"v_lshlrev_b32 v{P+i}, 16, v{P+i}")
    ARE, AIM, BRE, BIM, CRE, CIM, LDT = range(P, P + 7)
    a(f"s_mov_b32 s43, {fhex(LOG2E)}")
    a(f"v_mul_f32 v{LDT}, s43, v{LDT}")
    a(f"v_exp_f32 v{LDT}, v{LDT}")
    a("s_nop 0")
    a(f"v_cvt_pk_bf16_f32 v{LDT}, v{LDT}, v{LDT}")
    a(f"v_lshlrev_b32 v{LDT}, 16, v{LDT}")
    a(f"v_mul_f32 v{ARE}, v{LDT}, v{ARE}")
    a(f"v_mul_f32 v{ARE}, s43, v{ARE}")
    a(f"v_mul_f32 v{AIM}, v{LDT}, v{AIM}")
    a(f"v_mul_f32 v{AIM}, 0.15915494, v{AIM}")
    a(f"v_mul_f32 v{BRE}, v{LDT}, v{BRE}")
    a(f"v_mul_f32 v{BIM}, v{LDT}, v{BIM}")
    Wr, Wi = 46, 47
    a(f"v_mul_f32 v42, v{CIM}, v{BIM}")
    a(f"v_fma_f32 v{Wr}, v{CRE}, v{BRE}, -v42")
    a(f"v_mul_f32 v42, v{CIM}, v{BRE}")
    a(f"v_fma_f32 v{Wi}, v{CRE}, v{BIM}, v42")
    Z1, Z8, Z256, Z2, Z4 = 48, 50, 52, 54, 56
    for (z, m) in ((Z1, 1.0), (Z8, 8.0), (Z256, 256.0)):
        a(f"v_mul_f32 v42, {fhex(m)}, v{ARE}")
        a(f"v_mul_f32 v43, {fhex(m)}, v{AIM}")
        a("v_exp_f32 v42, v42")
        a("v_fract_f32 v43, v43")
        a("v_cos_f32 v44, v43")
        a("v_sin_f32 v45, v43")
        a("s_nop 0")
        a(f"v_mul_f32 v{z}, v42, v44")
        a(f"v_mul_f32 v{z+1}, v42, v45")
    def cmul(d, x, y):
        a(f"v_mul_f32 v42, v{x+1}, v{y+1}")
        a(f"v_mul_f32 v43, v{x+1}, v{y}")
        a(f"v_fma_f32 v44, v{x}, v{y}, -v42") if d == x else a(f"v_fma_f32 v{d}, v{x}, v{y}, -v42")
        a(f"v_fma_f32 v{d+1}, v{x}, v{y+1}, v43")
        if d == x:
            a(f"v_mov_b32 v{d}, v44")
    wt = [0]
    def put(row, x, negim):
        t = 60 + (wt[0] & 3); wt[0] += 1
        a(f"v_cvt_pk_bf16_f32 v{t}, v{x}, {'-' if negim else ''}v{x+1}")
        a(f"ds_write_b32 v5, v{t} offset:{row*KG_ROW}")
    Pa, Pb, Qa, Qb = 64, 66, 68, 70
    cmul(Z2, Z1, Z1)
    cmul(Z4, Z2, Z2)
    a(f"v_mov_b32 v60, 0x00003f80")
    a(f"ds_write_b32 v5, v60 offset:{21*KG_ROW}")
    wt[0] = 1
    put(22, Z8, True)
    cur = Z8
    for j in range(2, 32):
        nxt = Pa if cur != Pa else Pb
        cmul(nxt, cur, Z8)
        put(21 + j, nxt, True)
        cur = nxt
    put(0, Wr, False)
    cur = Wr
    for p in range(1, 8):
        nxt = Pa if cur != Pa else Pb
        cmul(nxt, cur, Z1)
        put(p, nxt, False)
        cur = nxt
    cur = Wr
    for i in range(1, 9):
        nxt = Qa if cur != Qa else Qb
        cmul(nxt, cur, Z256)
        cur = nxt
        if i == 1:
            put(8, cur, False)
            c2 = cur
            for p in range(1, 4):
                n2 = Pa if c2 != Pa else Pb
                cmul(n2, c2, Z2)
                put(8 + p, n2, False)
                c2 = n2
        elif i in (2, 3):
            put(12 + 2 * (i - 2), cur, False)
            cmul(Pa, cur, Z4)
            put(13 + 2 * (i - 2), Pa, False)
        else:
            put(16 + (i - 4), cur, False)
    a.stamp(5)
    FR = 72
    ACC = 136
    for s in range(8):
        a(f"ds_read_b128 v[{FR+8*s}:{FR+8*s+3}], v8 offset:{32*s}")
        a(f"ds_read_b128 v[{FR+8*s+4}:{FR+8*s+7}], v8 offset:{21*KG_ROW + 32*s}")
        if s == 5:
            pass
    for s in range(8):
        a(f"s_waitcnt lgkmcnt({min(15, 14-2*s)})")
        c = "0" if s == 0 else f"v[{ACC}:{ACC+15}]"
        a(f"v_mfma_f32_32x32x16_bf16 v[{ACC}:{ACC+15}], v[{FR+8*s}:{FR+8*s+3}], v[{FR+8*s+4}:{FR+8*s+7}], {c}")
    a("v_mov_b32 v42, 0")
    a("v_mov_b32 v43, 0")
    a(f"v_lshlrev_b32 v44, 3, v1")
    a(f"v_and_b32 v44, 31, v44")
    a("s_nop 9")
    a(f"ds_write_b128 v{PW0}, v[{ACC}:{ACC+3}]")
    a(f"ds_write_b64 v{PW1}, v[{ACC+4}:{ACC+5}]")
    a(f"ds_write_b64 v{PW2}, v[{ACC+6}:{ACC+7}]")
    for r in range(4):
        a(f"ds_write_b32 v{PW3}, v{ACC+8+r} offset:{(512+32*r)*4}")
    a("s_waitcnt lgkmcnt(0)")
    a.stamp(8)
    a("s_barrier")
    a.stamp(6)
    a(f"ds_write_b64 v44, v[42:43] offset:4096")
    a("v_lshlrev_b32 v9, 4, v0")
    for w in range(3):
        a(f"ds_read_b128 v[{FR+4*w}:{FR+4*w+3}], v9 offset:{w*KG_WAVE}")
    a("v_lshlrev_b32 v9, 3, v0")
    a("s_waitcnt lgkmcnt(0)")
    for r in range(4):
        a(f"v_add_f32 v{FR+r}, v{FR+r}, v{FR+4+r}")
    for r in range(4):
        a(f"v_add_f32 v{FR+r}, v{FR+r}, v{FR+8+r}")
    a(f"v_cvt_pk_bf16_f32 v{FR+4}, v{FR}, v{FR+1}")
    a(f"v_cvt_pk_bf16_f32 v{FR+5}, v{FR+2}, v{FR+3}")
    a(f"ds_write_b64 v9, v[{FR+4}:{FR+5}] offset:{TB0}")
    a("s_waitcnt lgkmcnt(0)")
    a("s_barrier")
    a.stamp(9)
    a(f"s_mul_i32 s5, s4, {GS}")
    a(f"s_add_u32 s7, s5, {GH}")
    a("v_lshlrev_b32 v9, 4, v0")
    for rnd in range(2):
        g = GA + 9 * rnd
        if rnd == 1:
            a("v_cmp_gt_u32 vcc, 65, v0")
            a("s_and_saveexec_b64 s[44:45], vcc")
            a("s_cbranch_execz K1_END")
        V = FR + 20 * rnd
        for i in range(9):
            a(f"ds_read_u16 v{V+i}, v{g+i}")
        a("s_waitcnt lgkmcnt(0)")
        O0, O1 = V + 12, V + 16
        for m in range(4):
            a(f"v_lshl_or_b32 v{O0+m}, v{V+2*m+1}, 16, v{V+2*m}")
        for m in range(4):
            a(f"v_lshl_or_b32 v{O1+m}, v{V+2*m+2}, 16, v{V+2*m+1}")
        a(f"buffer_store_dwordx4 v[{O0}:{O0+3}], v9, s[12:15], s5 offen offset:{3072*rnd}")
        a(f"buffer_store_dwordx4 v[{O1}:{O1+3}], v9, s[12:15], s7 offen offset:{3072*rnd}")
    a.endk()

    a.label("K1_PACK")
    a("s_waitcnt lgkmcnt(0)")
    srd(a, 12, 40, 0, WS_TOTAL)
    a(f"s_mov_b32 s6, {3*KG_WAVE}")
    pack_lane_setup(a, 1, 5, 6, 7, 6)
    a("v_and_b32 v9, 15, v1")
    a("v_mov_b32 v10, 0x3f803f80")
    for jj in range(4):
        a(f"v_cmp_eq_u32 vcc, {jj}, v9")
        a("s_nop 1")
        for r in range(4):
            a(f"v_cndmask_b32 v{16+4*jj+r}, 0, v10, vcc")
    a("v_lshrrev_b32 v10, 4, v1")
    a("v_lshlrev_b32 v8, 6, v9")
    a("v_lshl_add_u32 v8, v10, 4, v8")
    a("v_cmp_gt_u32 vcc, 4, v9")
    a("v_mov_b32 v10, 0x7fffffff")
    a("s_nop 0")
    a("v_cndmask_b32 v8, v10, v8, vcc")
    def decode(B, sb):
        l3, lc = a.newlabel("K1_P3"), a.newlabel("K1_PC")
        ns, mg = B + 11, B + 12
        a(f"s_mov_b32 s{B+3}, 0x00020000")
        a(f"s_mov_b32 s{B+7}, {20*1024}")
        a(f"s_cmp_ge_u32 s{sb}, 400")
        a(f"s_cbranch_scc1 {l3}")
        a(f"s_cmp_ge_u32 s{sb}, 200")
        a(f"s_cselect_b32 s{B}, s34, s32")
        a(f"s_cselect_b32 s{B+1}, s35, s33")
        a(f"s_cselect_b32 s{B+6}, 0x{WS['WP2'][0]:x}, 0x0")
        a(f"s_cselect_b32 s{B+8}, {WS['CSP'][0] + 2176*4}, 0")
        a(f"s_cselect_b32 s{ns}, 200, 0")
        a(f"s_sub_u32 s{sb}, s{sb}, s{ns}")
        a(f"s_max_u32 s{B+6}, s{B+6}, 0x{WS['WP1'][0]:x}")
        a(f"s_max_u32 s{B+8}, s{B+8}, {WS['CSP'][0]}")
        a(f"s_mov_b32 s{B+2}, {D*D*2}")
        a(f"s_movk_i32 s{B+4}, 1280")
        a(f"s_movk_i32 s{ns}, 10")
        a(f"s_mov_b32 s{mg}, 0x{(2**32 + 9)//10:x}")
        a(f"s_branch {lc}")
        a.label(l3)
        a(f"s_sub_u32 s{sb}, s{sb}, 400")
        a(f"s_mov_b32 s{B}, s36")
        a(f"s_mov_b32 s{B+1}, s37")
        a(f"s_mov_b32 s{B+2}, {D*F*2}")
        a(f"s_movk_i32 s{B+4}, 3072")
        a(f"s_mov_b32 s{B+6}, 0x{WS['WP3'][0]:x}")
        a(f"s_mov_b32 s{B+8}, {WS['CSP'][0] + 640*4}")
        a(f"s_movk_i32 s{ns}, 24")
        a(f"s_mov_b32 s{mg}, 0x{(2**32 + 23)//24:x}")
        a.label(lc)
        pack_common(a, B, sb, ns, mg)
    B0, B1 = 48, 64
    a("s_mov_b32 s5, s4")
    decode(B0, 5)
    pack_issue(a, B0, 1, 11, 6, 0)
    a("s_cmp_lt_u32 s4, 240")
    a("s_cbranch_scc1 K1_PACK2")
    a("s_waitcnt vmcnt(0)")
    pack_finish(a, B0, 5, 6, 32, 12, 0, colsum=(16, 48, 8))
    a.endk()
    a.label("K1_PACK2")
    a("s_add_u32 s5, s4, 640")
    decode(B1, 5)
    pack_issue(a, B1, 1, 13, 6, 4096)
    a("s_waitcnt vmcnt(4)")
    pack_finish(a, B0, 5, 6, 32, 12, 0, colsum=(16, 48, 8))
    a("s_waitcnt vmcnt(5)")
    pack_finish(a, B1, 5, 6, 52, 12, 4096, colsum=(16, 68, 8))
    a.label("K1_END")
    a.endk()
    a.label("K1_EXIT")
    a("s_endpgm")
    return dict(name=name, grid=K1_WGS, block=256, lds=K1_LDS, vgpr=152, accum=152)
```

```python
from asmlib import *
from layout import *
from k1 import pack_common, pack_issue, pack_finish, pack_lane_setup

K2_CONV = 256
K2_PACK = 120
K2_CS = 9
K2_WGS = K2_CONV + K2_PACK + K2_CS
KC = 4160
SLOT = 4 * KC + 4 * 1280
UOFF = 4 * KC
RED = 3 * SLOT
K2_LDS = RED + 16384

def conv_steps(a, steps, vA, vB, ACC, FR, first_zero):
    def loads(i):
        d0 = steps[i]
        base = FR + 32 * (i & 1)
        def lb(c): a(f"ds_read_b128 v[{base+16+4*c}:{base+16+4*c+3}], v{vB} offset:{16*(15-d0) + 256*c}")
        def la(q):
            o = 64 * (15 - d0) + 1024 * (3 - q)
            a(f"ds_read_b64 v[{base+4*q}:{base+4*q+1}], v{vA} offset:{o}")
            a(f"ds_read_b64 v[{base+4*q+2}:{base+4*q+3}], v{vA} offset:{o+8}")
        return [lambda: lb(0), lambda: la(0), lambda: lb(1), lambda: lb(2), lambda: lb(3), lambda: la(1), lambda: la(2), lambda: la(3)]
    for f in loads(0): f()
    n = len(steps)
    for i in range(n):
        base = FR + 32 * (i & 1)
        a("s_waitcnt lgkmcnt(0)")
        nxt = loads(i + 1) if i + 1 < n else []
        k = 0
        for q in range(4):
            for c in range(q, 4):
                cc = "0" if (first_zero and i == 0 and q == 0) else f"v[{ACC+4*c}:{ACC+4*c+3}]"
                a(f"v_mfma_f32_16x16x32_bf16 v[{ACC+4*c}:{ACC+4*c+3}], v[{base+4*q}:{base+4*q+3}], v[{base+16+4*(c-q)}:{base+16+4*(c-q)+3}], {cc}")
                if k < len(nxt): nxt[k]()
                k += 1

def conv_epi(a, Y, U, X, DS, T, smask):
    a(f"v_lshlrev_b32 v{T}, 16, v{U}")
    a(f"v_and_b32 v{T+1}, s{smask}, v{U}")
    a(f"v_lshlrev_b32 v{T+2}, 16, v{U+1}")
    a(f"v_and_b32 v{T+3}, s{smask}, v{U+1}")
    for r in range(4):
        a(f"v_mul_f32 v{T+r}, v{DS}, v{T+r}")
    a(f"v_cvt_pk_bf16_f32 v{T+4}, v{T}, v{T+1}")
    a(f"v_cvt_pk_bf16_f32 v{T+5}, v{T+2}, v{T+3}")
    a(f"v_cvt_pk_bf16_f32 v{T+6}, v{Y}, v{Y+1}")
    a(f"v_cvt_pk_bf16_f32 v{T+7}, v{Y+2}, v{Y+3}")
    for m in range(2):
        a(f"v_lshlrev_b32 v{T+2*m}, 16, v{T+4+m}")
        a(f"v_and_b32 v{T+2*m+1}, s{smask}, v{T+4+m}")
        a(f"v_lshlrev_b32 v{Y+2*m}, 16, v{T+6+m}")
        a(f"v_and_b32 v{Y+2*m+1}, s{smask}, v{T+6+m}")
    for r in range(4):
        a(f"v_add_f32 v{Y+r}, v{Y+r}, v{T+r}")
    a(f"v_cvt_pk_bf16_f32 v{T+4}, v{Y}, v{Y+1}")
    a(f"v_cvt_pk_bf16_f32 v{T+5}, v{Y+2}, v{Y+3}")
    for m in range(2):
        a(f"v_lshlrev_b32 v{T+2*m}, 16, v{T+4+m}")
        a(f"v_and_b32 v{T+2*m+1}, s{smask}, v{T+4+m}")
        a(f"v_lshlrev_b32 v{Y+2*m}, 16, v{X+m}")
        a(f"v_and_b32 v{Y+2*m+1}, s{smask}, v{X+m}")
    for r in range(4):
        a(f"v_add_f32 v{Y+r}, v{Y+r}, v{T+r}")
    a(f"v_cvt_pk_bf16_f32 v{Y}, v{Y}, v{Y+1}")
    a(f"v_cvt_pk_bf16_f32 v{Y+1}, v{Y+2}, v{Y+3}")

def gen_k2(a, name):
    kernel_begin(a, name)
    a(f"s_cmp_ge_u32 s2, {K2_WGS}")
    a("s_cbranch_scc1 K2_EXIT")
    a.start()
    a("s_load_dwordx2 s[40:41], s[0:1], 128")
    a("s_load_dwordx2 s[38:39], s[0:1], 64")
    a("s_load_dwordx2 s[36:37], s[0:1], 104")
    a("v_and_b32 v1, 63, v0")
    a("v_lshrrev_b32 v2, 6, v0")
    a("s_mov_b32 s42, 0xffff0000")
    a("v_readfirstlane_b32 s3, v2")
    a(f"s_cmp_lt_u32 s2, {K2_CONV}")
    a("s_cbranch_scc0 K2_AUX")
    a("s_lshr_b32 s4, s2, 1")
    a("s_and_b32 s5, s2, 1")
    a("s_mul_i32 s4, s4, 5")
    a("s_mul_i32 s6, s5, 3")
    a("s_add_u32 s16, s4, s6")
    a("s_add_u32 s17, s16, 1")
    a("s_add_u32 s18, s4, 2")
    a("v_lshlrev_b32 v3, 4, v0")
    a("s_lshl_b32 s19, s3, 10")
    a("s_mul_i32 s20, s3, 1280")
    a("s_waitcnt lgkmcnt(0)")
    srd(a, 8, 40, 0, WS_TOTAL)
    for sl in range(3):
        a(f"s_mul_i32 s21, s{16+sl}, {GS}")
        a(f"s_add_u32 s21, s21, 0x{WS['G'][0]:x}")
        for c in range(4):
            a(f"s_add_u32 m0, s19, {sl*SLOT + c*KC}")
            a(f"s_add_u32 s22, s21, {(c & 1)*GH + (c >> 1)*4}")
            a(f"buffer_load_dwordx4 v3, s[8:11], s22 offen lds")
        a(f"s_add_u32 m0, s20, {sl*SLOT + UOFF + 256}")
        a(f"s_lshl_b32 s22, s{16+sl}, 12")
        a(f"buffer_load_dwordx4 v3, s[8:11], s22 offen lds")
    a("v_and_b32 v4, 15, v1")
    a("v_lshrrev_b32 v5, 4, v1")
    a("s_lshr_b32 s23, s3, 1")
    a("s_and_b32 s24, s3, 1")
    a("s_cmp_eq_u32 s23, 0")
    a("s_cselect_b32 s25, s16, s17")
    a("v_lshrrev_b32 v6, 1, v5")
    a("v_lshlrev_b32 v6, 10, v6")
    a("v_lshl_add_u32 v6, v4, 4, v6")
    a("v_and_b32 v7, 1, v5")
    a("v_lshl_add_u32 v6, v7, 3, v6")
    a("s_lshl_b32 s26, s25, 12")
    a("s_lshl_b32 s27, s24, 11")
    a("s_add_u32 s26, s26, s27")
    a(f"s_add_u32 s26, s26, 0x{WS['XT'][0]:x}")
    XR = 12
    for nt in range(4):
        a(f"buffer_load_dwordx2 v[{XR+2*nt}:{XR+2*nt+1}], v6, s[8:11], s26 offen offset:{256*nt}")
    a("s_lshl_b32 s26, s18, 12")
    a("s_lshl_b32 s27, s5, 11")
    a("s_add_u32 s26, s26, s27")
    a("s_lshl_b32 s27, s3, 8")
    a("s_add_u32 s26, s26, s27")
    a(f"s_add_u32 s26, s26, 0x{WS['XT'][0]:x}")
    a(f"buffer_load_dwordx2 v[{XR+8}:{XR+9}], v6, s[8:11], s26 offen")
    a("s_lshl_b32 s26, s25, 1")
    a("v_mov_b32 v8, s26")
    a("s_lshl_b32 s26, s18, 1")
    a("v_mov_b32 v9, s26")
    a("global_load_ushort v22, v8, s[38:39]")
    a("global_load_ushort v23, v9, s[38:39]")
    a("v_mul_u32_u24 v8, 205, v0")
    a("v_lshrrev_b32 v8, 14, v8")
    a("v_mul_u32_u24 v9, 80, v8")
    a("v_sub_u32 v9, v0, v9")
    a(f"v_mul_u32_u24 v8, {SLOT}, v8")
    a("v_lshrrev_b32 v10, 2, v9")
    a(f"v_mul_u32_u24 v10, {KC}, v10")
    a("v_and_b32 v11, 3, v9")
    a("v_lshl_add_u32 v10, v11, 4, v10")
    a("v_add_u32 v10, 4096, v10")
    a("v_subrev_u32 v11, 16, v9")
    a("v_lshrrev_b32 v24, 4, v11")
    a("v_mul_u32_u24 v24, 1280, v24")
    a("v_and_b32 v11, 15, v11")
    a("v_lshl_add_u32 v24, v11, 4, v24")
    a(f"v_add_u32 v24, {UOFF}, v24")
    a("v_cmp_gt_u32 vcc, 16, v9")
    a("v_mov_b32 v28, 0")
    a("v_mov_b32 v29, 0")
    a("v_cndmask_b32 v10, v24, v10, vcc")
    a("v_add_u32 v10, v8, v10")
    a("v_mov_b32 v30, 0")
    a("v_mov_b32 v31, 0")
    a("ds_write_b128 v10, v[28:31]")
    a("v_sub_u32 v8, 3, v4")
    a("v_and_b32 v8, 3, v8")
    a(f"v_mul_u32_u24 v8, {KC}, v8")
    a("v_lshl_add_u32 v8, v5, 4, v8")
    a("v_lshrrev_b32 v9, 2, v4")
    a("v_lshlrev_b32 v9, 3, v9")
    a("v_sub_u32 v8, v8, v9")
    a(f"v_add_u32 v8, {2*2044 - 64*15 - 1024*3}, v8")
    a("v_mul_u32_u24 v9, 1280, v5")
    a("v_lshl_add_u32 v9, v4, 4, v9")
    a(f"v_add_u32 v9, {UOFF + 256 - 16*15}, v9")
    a(f"s_mul_i32 s26, s23, {SLOT}")
    a("s_lshl_b32 s27, s24, 5")
    a("s_sub_u32 s27, s26, s27")
    a("v_add_u32 v24, s27, v8")
    a("v_add_u32 v25, s26, v9")
    a("s_lshl_b32 s27, s5, 5")
    a("s_lshl_b32 s28, s3, 8")
    a("s_add_u32 s27, s27, s28")
    a(f"s_sub_u32 s27, {2*SLOT}, s27")
    a("v_add_u32 v26, s27, v8")
    a("s_lshl_b32 s28, s3, 6")
    a(f"s_sub_u32 s28, {2*SLOT}, s28")
    a("v_add_u32 v27, s28, v9")
    ACC, ACC2, FR = 32, 48, 64
    a.stamp(4)
    a("s_waitcnt vmcnt(0) lgkmcnt(0)")
    a.stamp(5)
    a("s_barrier")
    a.stamp(6)
    conv_steps(a, [0, 1, 2, 3], 26, 27, ACC2, FR, True)
    conv_steps(a, list(range(16)), 24, 25, ACC, FR, True)
    a.stamp(7)
    a("v_lshlrev_b32 v8, 4, v1")
    a("s_lshl_b32 s26, s3, 12")
    a(f"s_add_u32 s26, s26, {RED}")
    a("v_add_u32 v8, s26, v8")
    for nt in range(4):
        a(f"ds_write_b128 v8, v[{ACC2+4*nt}:{ACC2+4*nt+3}] offset:{1024*nt}")
    a("v_lshrrev_b32 v9, 1, v5")
    a("v_mul_u32_u24 v9, 1280, v9")
    a("v_lshl_add_u32 v9, v4, 4, v9")
    a("v_lshl_add_u32 v9, v7, 3, v9")
    a(f"s_mul_i32 s26, s23, {SLOT}")
    a("s_mul_i32 s27, s24, 2560")
    a("s_add_u32 s26, s26, s27")
    a("v_add_u32 v10, s26, v9")
    UR = FR
    for nt in range(4):
        a(f"ds_read_b64 v[{UR+2*nt}:{UR+2*nt+1}], v10 offset:{UOFF + 256 + 256*nt}")
    a("s_mul_i32 s27, s5, 2560")
    a("s_lshl_b32 s28, s3, 8")
    a("s_add_u32 s27, s27, s28")
    a("v_add_u32 v10, s27, v9")
    a(f"ds_read_b64 v[{UR+8}:{UR+9}], v10 offset:{2*SLOT + UOFF + 256}")
    a("v_lshlrev_b32 v11, 9, v5")
    a("v_lshl_add_u32 v11, v4, 3, v11")
    a("s_lshl_b32 s26, s25, 12")
    a("s_lshl_b32 s27, s24, 11")
    a("s_add_u32 s26, s26, s27")
    a(f"s_add_u32 s26, s26, 0x{WS['HT'][0]:x}")
    a("v_lshlrev_b32 v22, 16, v22")
    a("v_lshlrev_b32 v23, 16, v23")
    a("s_waitcnt lgkmcnt(0)")
    a("s_barrier")
    a("v_lshlrev_b32 v8, 4, v1")
    a("s_lshl_b32 s27, s3, 10")
    a(f"s_add_u32 s27, s27, {RED}")
    a("v_add_u32 v8, s27, v8")
    for w in range(4):
        a(f"ds_read_b128 v[{ACC2+4*w}:{ACC2+4*w+3}], v8 offset:{4096*w}")
    T = FR + 16
    for nt in range(4):
        conv_epi(a, ACC + 4 * nt, UR + 2 * nt, XR + 2 * nt, 22, T, 42)
        a(f"buffer_store_dwordx2 v[{ACC+4*nt}:{ACC+4*nt+1}], v11, s[8:11], s26 offen offset:{128*nt}")
    a("s_waitcnt lgkmcnt(0)")
    for r in range(4):
        a(f"v_add_f32 v{ACC2+r}, v{ACC2+r}, v{ACC2+4+r}")
        a(f"v_add_f32 v{ACC2+8+r}, v{ACC2+8+r}, v{ACC2+12+r}")
    for r in range(4):
        a(f"v_add_f32 v{ACC2+r}, v{ACC2+r}, v{ACC2+8+r}")
    conv_epi(a, ACC2, UR + 8, XR + 8, 23, T, 42)
    a("s_lshl_b32 s26, s18, 12")
    a("s_lshl_b32 s27, s5, 11")
    a("s_add_u32 s26, s26, s27")
    a("s_lshl_b32 s27, s3, 7")
    a("s_add_u32 s26, s26, s27")
    a(f"s_add_u32 s26, s26, 0x{WS['HT'][0]:x}")
    a(f"buffer_store_dwordx2 v[{ACC2}:{ACC2+1}], v11, s[8:11], s26 offen")
    a.endk()
    a.label("K2_AUX")
    a("s_waitcnt lgkmcnt(0)")
    srd(a, 12, 40, 0, WS_TOTAL)
    a(f"s_cmp_lt_u32 s2, {K2_CONV + K2_PACK}")
    a("s_cbranch_scc0 K2_CS")
    B = 48
    a(f"s_sub_u32 s5, s2, {K2_CONV}")
    a("s_lshl_b32 s5, s5, 2")
    a("s_add_u32 s5, s5, s3")
    a("s_lshl_b32 s6, s3, 12")
    pack_lane_setup(a, 1, 5, 6, 7, 6)
    srd(a, B, 36, 0, D * F * 2)
    a(f"s_movk_i32 s{B+4}, 1280")
    a(f"s_mov_b32 s{B+6}, 0x{WS['WP4'][0]:x}")
    a(f"s_mov_b32 s{B+7}, {48*1024}")
    a(f"s_mov_b32 s{B+8}, 0")
    a(f"s_movk_i32 s{B+11}, 10")
    a(f"s_mov_b32 s{B+12}, 0x{(2**32 + 9)//10:x}")
    pack_common(a, B, 5, B + 11, B + 12)
    pack_issue(a, B, 1, 11, 6, 0)
    a("s_waitcnt vmcnt(0)")
    pack_finish(a, B, 5, 6, 32, 12, 0)
    a.endk()
    a.label("K2_CS")
    a(f"s_sub_u32 s5, s2, {K2_CONV + K2_PACK}")
    a("s_lshl_b32 s5, s5, 10")
    a("v_lshl_add_u32 v3, v0, 2, s5")
    a(f"s_mov_b32 s6, 0x{WS['CSP'][0]:x}")
    for s in range(20):
        a(f"buffer_load_dword v{8+s}, v3, s[12:15], s6 offen")
        if s < 19: a(f"s_add_u32 s6, s6, {NT*4}")
    a(f"s_mov_b32 s6, 0x{WS['CS'][0]:x}")
    for s in range(1, 20):
        a(f"s_waitcnt vmcnt({19-s})")
        a(f"v_add_f32 v8, v8, v{8+s}")
    a("buffer_store_dword v8, v3, s[12:15], s6 offen")
    a.label("K2_END")
    a.endk()
    a.label("K2_EXIT")
    a("s_endpgm")
    return dict(name=name, grid=K2_WGS, block=256, lds=K2_LDS, vgpr=128, accum=128)
```

```python
from asmlib import *
from layout import *
import math
LOG2E = 1.4426950408889634
GC0 = -2.0 * math.sqrt(2.0 / math.pi) * LOG2E
GC1 = GC0 * 0.044715
MASK = 42

def rbf2(a, x, y, t):
    a(f"v_cvt_pk_bf16_f32 v{t}, v{x}, v{y}")
    a(f"v_lshlrev_b32 v{x}, 16, v{t}")
    a(f"v_and_b32 v{y}, s{MASK}, v{t}")

def rbf1(a, x):
    a(f"v_cvt_pk_bf16_f32 v{x}, v{x}, v{x}")
    a(f"v_and_b32 v{x}, s{MASK}, v{x}")

def gelu_regs(a, X, T, n, CG):
    for p in range(0, n, 2):
        a(f"v_pk_mul_f32 v[{T+p}:{T+p+1}], v[{X+p}:{X+p+1}], v[{X+p}:{X+p+1}]")
    for p in range(0, n, 2):
        a(f"v_pk_fma_f32 v[{T+p}:{T+p+1}], v[{T+p}:{T+p+1}], v[{CG}:{CG+1}], v[{CG+2}:{CG+3}]")
    for p in range(0, n, 2):
        a(f"v_pk_mul_f32 v[{T+p}:{T+p+1}], v[{T+p}:{T+p+1}], v[{X+p}:{X+p+1}]")
    for p in range(n):
        a(f"v_exp_f32 v{T+p}, v{T+p}")
    a("s_nop 0")
    for p in range(0, n, 2):
        a(f"v_pk_add_f32 v[{T+p}:{T+p+1}], v[{T+p}:{T+p+1}], 1.0 op_sel_hi:[1,0]")
    for p in range(n):
        a(f"v_rcp_f32 v{T+p}, v{T+p}")
    a("s_nop 0")
    for p in range(0, n, 2):
        a(f"v_pk_mul_f32 v[{X+p}:{X+p+1}], v[{X+p}:{X+p+1}], v[{T+p}:{T+p+1}]")

def ln_apply_gelu(a, X, AB, CS, T, CG, out):
    for p in (0, 2):
        a(f"v_pk_mul_f32 v[{T+p}:{T+p+1}], v[{CS+p}:{CS+p+1}], v[{AB}:{AB+1}] op_sel:[0,1] op_sel_hi:[1,1]")
    for p in (0, 2):
        a(f"v_pk_fma_f32 v[{X+p}:{X+p+1}], v[{X+p}:{X+p+1}], v[{AB}:{AB+1}], v[{T+p}:{T+p+1}] op_sel_hi:[1,0,1] neg_lo:[0,0,1] neg_hi:[0,0,1]")
    rbf2(a, X, X + 1, T)
    rbf2(a, X + 2, X + 3, T + 1)
    gelu_regs(a, X, T, 4, CG)
    a(f"v_cvt_pk_bf16_f32 v{out}, v{X}, v{X+1}")
    a(f"v_cvt_pk_bf16_f32 v{out+1}, v{X+2}, v{X+3}")

def swap_pair(a, P):
    a("s_nop 1")
    a(f"v_permlane16_swap_b32 v{P}, v{P+2}")
    a(f"v_permlane16_swap_b32 v{P+1}, v{P+3}")

def stats_calc(a, S1, S2, vi, vq, T, double_ln, vaddr, extra=None):
    sm, sq = T + 4, T + 5
    a(f"v_and_b32 v{T+6}, 3, v{vi}")
    a(f"v_cmp_eq_u32 vcc, 1, v{T+6}")
    a(f"s_mov_b32 s46, {fhex(1.0/640)}")
    a("s_nop 0")
    a(f"v_cndmask_b32 v{sq}, v{S2}, v{S2+1}, vcc")
    a(f"v_cmp_eq_u32 vcc, 2, v{T+6}")
    a(f"v_mul_f32 v{sm}, s46, v{S1}")
    a("s_nop 0")
    a(f"v_cndmask_b32 v{sq}, v{sq}, v{S2+2}, vcc")
    a(f"v_cmp_eq_u32 vcc, 3, v{T+6}")
    a(f"v_lshrrev_b32 v{T+7}, 2, v{vi}")
    a("s_nop 0")
    a(f"v_cndmask_b32 v{sq}, v{sq}, v{S2+3}, vcc")
    a(f"v_mul_f32 v{sq}, s46, v{sq}")
    a(f"v_fma_f32 v{sq}, -v{sm}, v{sm}, v{sq}")
    a(f"v_max_f32 v{sq}, 0, v{sq}")
    m1r, i1 = T + 2, T + 3
    a(f"v_mov_b32 v{m1r}, v{sm}")
    a(f"v_mov_b32 v{i1}, v{sq}")
    rbf2(a, m1r, i1, T + 6)
    a(f"v_add_f32 v{i1}, {fhex(1e-5)}, v{i1}")
    rbf1(a, i1)
    a(f"v_sqrt_f32 v{i1}, v{i1}")
    a("s_nop 0")
    rbf1(a, i1)
    a(f"v_rcp_f32 v{i1}, v{i1}")
    a(f"v_cmp_eq_u32 vcc, v{T+7}, v{vq}")
    if double_ln:
        a(f"v_sub_f32 v{T}, v{sm}, v{m1r}")
        a(f"v_mul_f32 v{T}, v{T}, v{i1}")
        a(f"v_mul_f32 v{T+1}, v{sq}, v{i1}")
        a(f"v_mul_f32 v{T+1}, v{T+1}, v{i1}")
        rbf2(a, T, T + 1, T + 6)
        a(f"v_add_f32 v{T+1}, {fhex(1e-5)}, v{T+1}")
        rbf1(a, T + 1)
        a(f"v_sqrt_f32 v{T+1}, v{T+1}")
        a("s_nop 0")
        rbf1(a, T + 1)
        a(f"v_rcp_f32 v{T+6}, v{T+1}")
        a("s_nop 0")
        a(f"v_mul_f32 v{T+1}, v{T}, v{T+6}")
        a(f"v_mul_f32 v{T}, v{i1}, v{T+6}")
        a(f"v_fma_f32 v{T+1}, v{m1r}, v{T}, v{T+1}")
    else:
        a(f"v_mov_b32 v{T}, v{i1}")
        a(f"v_mul_f32 v{T+1}, v{m1r}, v{i1}")
    a("s_and_saveexec_b64 s[44:45], vcc")
    a(f"ds_write_b128 v{vaddr}, v[{T}:{T+3}]")
    if extra: a(extra)
    a("s_mov_b64 exec, s[44:45]")

def common_head(a, name, K, extra_loads=()):
    kernel_begin(a, name)
    a("s_cmp_ge_u32 s2, 256")
    a(f"s_cbranch_scc1 {K}_EXIT")
    a.start()
    a("s_load_dwordx2 s[40:41], s[0:1], 128")
    for l in extra_loads: a(l)
    a("v_and_b32 v1, 63, v0")
    a("v_lshrrev_b32 v2, 6, v0")
    a(f"s_mov_b32 s{MASK}, 0xffff0000")
    a("v_readfirstlane_b32 s3, v2")
    a("s_and_b32 s4, s2, 7")
    a("s_lshr_b32 s5, s2, 6")
    a("s_lshr_b32 s6, s2, 3")
    a("s_and_b32 s6, s6, 7")
    a("s_lshl_b32 s7, s4, 2")
    a("s_add_u32 s7, s7, s5")
    a("v_and_b32 v4, 15, v1")
    a("v_lshrrev_b32 v5, 4, v1")
    a("v_lshlrev_b32 v6, 4, v1")

def gelu_consts(a, CG):
    a(f"v_mov_b32 v{CG}, {fhex(GC1)}")
    a(f"v_mov_b32 v{CG+1}, {fhex(GC1)}")
    a(f"v_mov_b32 v{CG+2}, {fhex(GC0)}")
    a(f"v_mov_b32 v{CG+3}, {fhex(GC0)}")

def gen_gemm5(a, name, K, KS, wname, mode):
    k3, k4, k6 = mode == 'k3', mode == 'k4', mode == 'k6'
    common_head(a, name, K, ["s_load_dwordx2 s[38:39], s[0:1], 112"] if k6 else [])
    NSLOT = KS if KS <= 20 else 36
    SCR = NSLOT * 4096
    if k6: SCR = 0
    LDS = NSLOT * 4096 + (16384 + 1024 if not k6 else 0)
    VD = 8
    if k3:
        a("v_lshrrev_b32 v7, 3, v1")
        a("s_lshl_b32 s16, s3, 3")
        a("v_add_u32 v7, s16, v7")
        a(f"v_lshlrev_b32 v{VD}, 12, v7")
        a("v_bfe_u32 v7, v1, 4, 1")
        a("s_and_b32 s16, s3, 1")
        a("s_lshl_b32 s16, s16, 1")
        a("v_or_b32 v7, s16, v7")
        a("v_lshlrev_b32 v7, 1, v7")
        a("v_and_b32 v12, 7, v1")
        a("v_xor_b32 v7, v7, v12")
        a("v_lshrrev_b32 v12, 2, v7")
        a(f"v_lshl_add_u32 v{VD}, v12, 9, v{VD}")
        a("v_and_b32 v12, 3, v7")
        a(f"v_lshl_add_u32 v{VD}, v12, 4, v{VD}")
        a("s_lshl_b32 s16, s5, 10")
        a("s_lshl_b32 s17, s4, 6")
        a("s_add_u32 s16, s16, s17")
        a(f"s_add_u32 s16, s16, 0x{WS['HT'][0]:x}")
        dstep = 32 * 4096
    elif k4:
        a("s_lshl_b32 s16, s7, 6")
        a("s_lshl_b32 s17, s3, 4")
        a("s_add_u32 s16, s16, s17")
        a("v_add_u32 v7, s16, v4")
        a(f"s_movk_i32 s17, {20*1024}")
        for gi, sh in enumerate((1, -1, 2, -2)):
            a(f"v_add_u32 v12, {-sh}, v7")
            a("v_ashrrev_i32 v13, 4, v12")
            a(f"v_mul_lo_u32 v{VD+gi}, v13, s17")
            a("v_and_b32 v12, 15, v12")
            a(f"v_lshl_add_u32 v{VD+gi}, v12, 4, v{VD+gi}")
            a(f"v_lshl_add_u32 v{VD+gi}, v5, 8, v{VD+gi}")
        a("s_mov_b32 s16, 0")
        dstep = 1024
    else:
        a(f"v_mov_b32 v{VD}, v6")
        a("s_lshl_b32 s16, s7, 2")
        a("s_add_u32 s16, s16, s3")
        a(f"s_mul_i32 s16, s16, {KS*1024}")
        a(f"s_add_u32 s16, s16, 0x{WS['H3F'][0]:x}")
        dstep = 1024
    a("s_lshl_b32 s18, s3, 10")
    a("s_mul_i32 s19, s6, 5")
    a("s_add_u32 s20, s19, 4")
    a("s_add_u32 s19, s19, s3")
    a(f"s_mul_i32 s21, s19, {KS*1024}")
    a(f"s_add_u32 s21, s21, 0x{WS[wname][0]:x}")
    a(f"s_mul_i32 s22, s20, {KS*1024}")
    a("s_add_u32 s22, s22, s18")
    a(f"s_add_u32 s22, s22, 0x{WS[wname][0]:x}")
    a("s_waitcnt lgkmcnt(0)")
    a.stamp(15)
    srd(a, 8, 40, 0, WS_TOTAL)
    if k4:
        srd(a, 12, 40, WS["H1F"][0], ACT)
    asrd = 12 if k4 else 8
    WO, WSH = 0, 4 * KS
    issued = []
    def dma(s):
        slot = s % NSLOT
        a(f"s_add_u32 m0, s18, {slot*4096}")
        vd = VD + (s // 5 if k4 else 0)
        if s:
            a(f"s_add_u32 s16, s16, {dstep}")
        else:
            a("s_nop 0")
        a(f"buffer_load_dwordx4 v{vd}, s[{asrd}:{asrd+3}], s16 offen lds")
        issued.append(("A", s))
    def wload(s):
        a(f"buffer_load_dwordx4 a[{WO+4*s}:{WO+4*s+3}], v6, s[8:11], s21 offen offset:{(s % 4)*1024}")
        if s % 4 == 3: a("s_add_u32 s21, s21, 4096")
        issued.append(("W", s))
        if s % 4 == 0:
            m = s // 4
            a(f"buffer_load_dwordx4 a[{WSH+4*m}:{WSH+4*m+3}], v6, s[8:11], s22 offen")
            a("s_add_u32 s22, s22, 4096")
            issued.append(("S", s))
    if KS == 20:
        first = 20
        stages = [2, 5, 10, 15, 20]
    else:
        first = 24
        stages = [2, 6, 12, 18, 24, 30, 36, 42, 48]
    for s in range(first):
        dma(s); wload(s)
        if KS == 20 and s in (1, 4, 9, 19): a.stamp({1: 10, 4: 11, 9: 12, 19: 13}[s])
    nxt = first
    VT = 12
    if k3:
        a("v_bfe_u32 v16, v1, 2, 2")
        a("v_lshlrev_b32 v17, 3, v5")
        a("v_add_u32 v17, v17, v16")
        a("v_lshlrev_b32 v17, 7, v17")
        a("v_and_b32 v18, 3, v1")
        a("v_lshl_add_u32 v17, v18, 3, v17")
        a("v_lshrrev_b32 v16, 1, v16")
        a("v_and_b32 v18, 1, v5")
        a("v_lshl_or_b32 v16, v18, 1, v16")
        for tl in range(4):
            a(f"s_add_u32 s23, s3, {tl}")
            a("s_and_b32 s23, s23, 3")
            a("v_xor_b32 v18, s23, v16")
            a(f"v_lshl_add_u32 v{VT+tl}, v18, 5, v17")
    else:
        for tl in range(4):
            a(f"s_add_u32 s23, s3, {tl}")
            a("s_and_b32 s23, s23, 3")
            a("s_lshl_b32 s23, s23, 10")
            a(f"v_add_u32 v{VT+tl}, s23, v6")
    def rowaddr(dst, vtt, t0, t1):
        if k3:
            a(f"v_and_b32 v{t0}, 1, v{vtt}")
            a(f"v_lshlrev_b32 v{t0}, 3, v{t0}")
            a(f"v_lshrrev_b32 v{t1}, 2, v4")
            a(f"v_lshl_add_u32 v{t0}, v{t1}, 1, v{t0}")
            a("s_lshl_b32 s23, s4, 4")
            a("s_lshr_b32 s24, s5, 1")
            a("s_add_u32 s23, s23, s24")
            a(f"v_add_u32 v{t0}, s23, v{t0}")
            a(f"v_mul_u32_u24 v{dst}, {20*1024}, v{t0}")
            a(f"v_lshrrev_b32 v{t0}, 1, v{vtt}")
            a(f"v_lshlrev_b32 v{t0}, 2, v{t0}")
            a(f"v_and_b32 v{t1}, 3, v4")
            a(f"v_add_u32 v{t0}, v{t0}, v{t1}")
            a("s_and_b32 s23, s5, 1")
            a("s_lshl_b32 s23, s23, 3")
            a(f"v_add_u32 v{t0}, s23, v{t0}")
            a(f"v_lshl_add_u32 v{dst}, v{t0}, 4, v{dst}")
        else:
            a("s_lshl_b32 s23, s7, 2")
            a(f"v_add_u32 v{t0}, s23, v{vtt}")
            a(f"v_mul_u32_u24 v{dst}, {20*1024}, v{t0}")
            a(f"v_lshl_add_u32 v{dst}, v4, 4, v{dst}")
    VP = 20
    for pr in range(2):
        a("v_and_b32 v16, 1, v5")
        a(f"s_add_u32 s25, s3, {2*pr}")
        a("v_add_u32 v16, s25, v16")
        a("v_and_b32 v16, 3, v16")
        rowaddr(VP + pr, 16, 17, 18)
        a("v_lshrrev_b32 v17, 1, v5")
        a(f"v_lshl_add_u32 v{VP+pr}, v17, 8, v{VP+pr}")
        if k6:
            a("s_lshl_b32 s23, s7, 6")
            a("v_lshl_add_u32 v18, v16, 4, v4")
            a("v_add_u32 v18, s23, v18")
            a(f"v_mul_u32_u24 v{24+pr}, 1280, v18")
            a(f"v_lshl_add_u32 v{24+pr}, v17, 4, v{24+pr}")
    a("v_mov_b32 v16, s3")
    rowaddr(23, 16, 17, 18)
    a("v_lshrrev_b32 v17, 1, v5")
    a("v_lshl_add_u32 v22, v17, 8, v23")
    a("v_and_b32 v17, 1, v5")
    a("v_lshl_add_u32 v22, v17, 3, v22")
    if k6:
        a("s_lshl_b32 s23, s7, 6")
        a("s_lshl_b32 s24, s3, 4")
        a("s_add_u32 s23, s23, s24")
        a("v_add_u32 v18, s23, v4")
        a("v_mul_u32_u24 v26, 1280, v18")
        a("v_lshl_add_u32 v26, v5, 3, v26")
    a("s_lshl_b32 s26, s19, 9")
    a("s_lshl_b32 s27, s20, 9")
    EX = 28
    nextra = 0
    if k3:
        a("v_lshlrev_b32 v16, 4, v5")
        a("s_lshl_b32 s23, s19, 6")
        a(f"s_add_u32 s23, s23, 0x{WS['CS'][0]:x}")
        a(f"buffer_load_dwordx4 v[{EX}:{EX+3}], v16, s[8:11], s23 offen")
        a("s_lshl_b32 s23, s20, 6")
        a(f"s_add_u32 s23, s23, 0x{WS['CS'][0]:x}")
        a(f"buffer_load_dwordx4 v[{EX+4}:{EX+7}], v16, s[8:11], s23 offen")
        issued += [("X", 0)] * 2
    def extra_loads(arrs):
        for ai, arr in enumerate(arrs):
            b = EX + 12 * ai
            a(f"s_add_u32 s23, s26, 0x{WS[arr][0]:x}")
            a(f"buffer_load_dwordx4 v[{b}:{b+3}], v{VP}, s[8:11], s23 offen")
            a(f"buffer_load_dwordx4 v[{b+4}:{b+7}], v{VP+1}, s[8:11], s23 offen")
            a(f"s_add_u32 s23, s27, 0x{WS[arr][0]:x}")
            a(f"buffer_load_dwordx2 v[{b+8}:{b+9}], v22, s[8:11], s23 offen")
            issued.extend([("X", 0)] * 3)
    if k4: extra_loads(["XBF"])
    ACC, ACS, S1, S2, ONES, FR = 56, 72, 88, 92, 96, 100
    CG = 52
    if k3:
        for r in range(4): a(f"v_mov_b32 v{ONES+r}, 0x3f803f80")
        gelu_consts(a, CG)
    for r in range(16): a(f"v_mov_b32 v{ACS+r}, 0")
    rdbase = [0]
    def frag_reads(s):
        slot = s % NSLOT
        b = FR + 16 * (s & 1)
        out = []
        off = slot * 4096 - rdbase[0]
        for tl in range(4):
            if k3:
                out.append(f"ds_read_b64_tr_b16 v[{b+4*tl}:{b+4*tl+1}], v{VT+tl} offset:{off}\n"
                           f"ds_read_b64_tr_b16 v[{b+4*tl+2}:{b+4*tl+3}], v{VT+tl} offset:{off+512}")
            else:
                out.append(f"ds_read_b128 v[{b+4*tl}:{b+4*tl+3}], v{VT+tl} offset:{off}")
        return out
    def rebase(s):
        slot = s % NSLOT
        want = (slot // 12) * 12 * 4096
        if want != rdbase[0]:
            d = want - rdbase[0]
            for tl in range(4):
                a(f"v_add_u32 v{VT+tl}, {d & 0xffffffff}, v{VT+tl}")
            rdbase[0] = want
    s0 = 0
    for st, s1 in enumerate(stages):
        last = max(idx for idx, tg in enumerate(issued) if tg[0] in "AWS" and tg[1] <= s1 - 1)
        if st == 0: a.stamp(4)
        a(f"s_waitcnt vmcnt({len(issued) - 1 - last})")
        a("s_barrier")
        if st < 9: a.stamp(5 + st)
        if KS > 20:
            lim = min(KS, s0 + 24)
            while nxt < lim:
                assert nxt < NSLOT or (nxt - NSLOT) < s0
                dma(nxt); wload(nxt); nxt += 1
            if nxt == KS and not any(t[0] == "X" for t in issued):
                extra_loads(["X1F", "HF"])
        rebase(s0)
        for r in frag_reads(s0): a(r)
        for s in range(s0, s1):
            b = FR + 16 * (s & 1)
            a("s_waitcnt lgkmcnt(0)")
            pre = []
            if s + 1 < s1:
                rebase(s + 1)
                pre = frag_reads(s + 1)
            for tl in range(4):
                c = "0" if s == 0 else f"v[{ACC+4*tl}:{ACC+4*tl+3}]"
                a(f"v_mfma_f32_16x16x32_bf16 v[{ACC+4*tl}:{ACC+4*tl+3}], a[{WO+4*s}:{WO+4*s+3}], v[{b+4*tl}:{b+4*tl+3}], {c}")
                if pre: a(pre[tl])
            if k3:
                c1 = "0" if s == 0 else f"v[{S1}:{S1+3}]"
                c2 = "0" if s == 0 else f"v[{S2}:{S2+3}]"
                a(f"v_mfma_f32_16x16x32_bf16 v[{S1}:{S1+3}], v[{ONES}:{ONES+3}], v[{b}:{b+3}], {c1}")
                a(f"v_mfma_f32_16x16x32_bf16 v[{S2}:{S2+3}], v[{b}:{b+3}], v[{b}:{b+3}], {c2}")
            lb = a.newlabel(f"{K}_SK")
            a(f"s_cmp_lg_u32 s3, {s & 3}")
            a(f"s_cbranch_scc1 {lb}")
            m = s // 4
            for tl in range(4):
                a(f"v_mfma_f32_16x16x32_bf16 v[{ACS+4*tl}:{ACS+4*tl+3}], a[{WSH+4*m}:{WSH+4*m+3}], v[{b+4*tl}:{b+4*tl+3}], v[{ACS+4*tl}:{ACS+4*tl+3}]")
            a.label(lb)
        s0 = s1
    a.stamp(14)
    T = FR
    if k6:
        SCR = 16 * 4096
    STAT = SCR + 16384
    a("s_nop 7")
    for tl in range(4):
        a(f"s_add_u32 s23, s3, {tl}")
        a("s_and_b32 s23, s23, 3")
        a("s_lshl_b32 s23, s23, 12")
        a("s_add_u32 s23, s23, s18")
        a(f"s_add_u32 s23, s23, {SCR}")
        a(f"v_add_u32 v16, s23, v6")
        a(f"ds_write_b128 v16, v[{ACS+4*tl}:{ACS+4*tl+3}]")
    if k3:
        a("s_lshl_b32 s23, s3, 8")
        a(f"s_add_u32 s23, s23, {STAT}")
        a("v_lshl_add_u32 v16, v4, 4, s23")
        stats_calc(a, S1, S2, 4, 5, T, True, 16)
    a("s_waitcnt lgkmcnt(0)")
    a("s_barrier")
    a("s_lshl_b32 s23, s3, 12")
    a(f"s_add_u32 s23, s23, {SCR}")
    a("v_add_u32 v16, s23, v6")
    for w in range(4):
        a(f"ds_read_b128 v[{ACS+4*w}:{ACS+4*w+3}], v16 offset:{1024*w}")
    AB = S1
    if k3:
        for tl in range(4):
            a(f"s_add_u32 s23, s3, {tl}")
            a("s_and_b32 s23, s23, 3")
            a("s_lshl_b32 s23, s23, 8")
            a(f"s_add_u32 s23, s23, {STAT}")
            a("v_lshl_add_u32 v16, v4, 4, s23")
            a(f"ds_read_b64 v[{AB+2*tl}:{AB+2*tl+1}], v16")
            if tl == 0:
                a(f"ds_read_b64 v[{ONES}:{ONES+1}], v16 offset:8")
        a("s_lshl_b32 s23, s6, 12")
        a(f"s_sub_u32 s23, s23, {rdbase[0]}")
        a(f"v_add_u32 v16, s23, v{VT}")
        a(f"v_add_u32 v17, 0x10000, v16")
        HR = FR + 16
        for m in range(3):
            va, off = (16, 32768 * m) if m < 2 else (17, 0)
            a(f"ds_read_b64_tr_b16 v[{HR+4*m}:{HR+4*m+1}], v{va} offset:{off}")
            a(f"ds_read_b64_tr_b16 v[{HR+4*m+2}:{HR+4*m+3}], v{va} offset:{off+512}")
    a("s_waitcnt vmcnt(0) lgkmcnt(0)")
    for r in range(4):
        a(f"v_add_f32 v{ACS+r}, v{ACS+r}, v{ACS+4+r}")
        a(f"v_add_f32 v{ACS+8+r}, v{ACS+8+r}, v{ACS+12+r}")
    for r in range(4):
        a(f"v_add_f32 v{ACS+r}, v{ACS+r}, v{ACS+8+r}")
    O = ACS + 4
    def unpack(dst, src, n):
        for m in range(n):
            a(f"v_lshlrev_b32 v{dst+2*m}, 16, v{src+m}")
            a(f"v_and_b32 v{dst+2*m+1}, s{MASK}, v{src+m}")
    def addres(P, n, res):
        unpack(T, P, n)
        unpack(T + 8, res, n)
        for m in range(n):
            a(f"v_pk_add_f32 v[{T+2*m}:{T+2*m+1}], v[{T+2*m}:{T+2*m+1}], v[{T+8+2*m}:{T+8+2*m+1}]")
        for m in range(n):
            a(f"v_cvt_pk_bf16_f32 v{P+m}, v{T+2*m}, v{T+2*m+1}")
    outarr = {'k3': 'H1F', 'k4': 'X1F'}.get(mode)
    if k6:
        srd(a, 12, 38, 0, ACT)
        a("s_lshl_b32 s26, s19, 5")
        a("s_lshl_b32 s27, s20, 5")
    else:
        a(f"s_add_u32 s26, s26, 0x{WS[outarr][0]:x}")
        a(f"s_add_u32 s27, s27, 0x{WS[outarr][0]:x}")
    for pr in range(2):
        P = O + 4 * pr
        for h in range(2):
            tl = 2 * pr + h
            X = ACC + 4 * tl
            if k3:
                ln_apply_gelu(a, X, AB + 2 * tl, EX, T, CG, P + 2 * h)
            else:
                a(f"v_cvt_pk_bf16_f32 v{P+2*h}, v{X}, v{X+1}")
                a(f"v_cvt_pk_bf16_f32 v{P+2*h+1}, v{X+2}, v{X+3}")
        swap_pair(a, P)
        if k4: addres(P, 4, EX + 4 * pr)
        if k6:
            addres(P, 4, EX + 4 * pr)
            addres(P, 4, EX + 12 + 4 * pr)
            a(f"buffer_store_dwordx4 v[{P}:{P+3}], v{24+pr}, s[12:15], s26 offen")
        else:
            a(f"buffer_store_dwordx4 v[{P}:{P+3}], v{VP+pr}, s[8:11], s26 offen")
    P = O + 8
    if k3:
        ln_apply_gelu(a, ACS, AB, EX + 4, T, CG, P)
    else:
        a(f"v_cvt_pk_bf16_f32 v{P}, v{ACS}, v{ACS+1}")
        a(f"v_cvt_pk_bf16_f32 v{P+1}, v{ACS+2}, v{ACS+3}")
    if k4: addres(P, 2, EX + 8)
    if k6:
        addres(P, 2, EX + 8)
        addres(P, 2, EX + 12 + 8)
        a(f"buffer_store_dwordx2 v[{P}:{P+1}], v26, s[12:15], s27 offen")
    else:
        a(f"buffer_store_dwordx2 v[{P}:{P+1}], v22, s[8:11], s27 offen")
    if k3:
        a("v_lshl_add_u32 v16, v5, 8, v23")
        a("s_lshl_b32 s23, s6, 10")
        a(f"s_add_u32 s24, s23, 0x{WS['XBF'][0]:x}")
        a(f"s_add_u32 s23, s23, 0x{WS['HF'][0]:x}")
        for m in range(3):
            if m == 2:
                a("s_cmp_ge_u32 s6, 4")
                a(f"s_cbranch_scc1 {K}_END")
            H = HR + 4 * m
            a(f"buffer_store_dwordx4 v[{H}:{H+3}], v16, s[8:11], s23 offen")
            unpack(T, H, 4)
            for p in range(0, 8, 2):
                a(f"v_pk_add_f32 v[{T+p}:{T+p+1}], v[{T+p}:{T+p+1}], v[{ONES}:{ONES+1}] op_sel_hi:[1,0] neg_lo:[0,1] neg_hi:[0,1]")
            for p in range(0, 8, 2):
                rbf2(a, T + p, T + p + 1, T + 8)
            for p in range(0, 8, 2):
                a(f"v_pk_mul_f32 v[{T+p}:{T+p+1}], v[{T+p}:{T+p+1}], v[{ONES}:{ONES+1}] op_sel:[0,1] op_sel_hi:[1,1]")
            XO = ACC + 4 * m
            for p in range(4):
                a(f"v_cvt_pk_bf16_f32 v{XO+p}, v{T+2*p}, v{T+2*p+1}")
            a(f"buffer_store_dwordx4 v[{XO}:{XO+3}], v16, s[8:11], s24 offen")
            a("s_add_u32 s23, s23, 8192")
            a("s_add_u32 s24, s24, 8192")
    a.label(f"{K}_END")
    a.endk()
    a.label(f"{K}_EXIT")
    a("s_endpgm")
    nagpr = 4 * KS + KS
    return dict(name=name, grid=256, block=256, lds=LDS, vgpr=132 + nagpr, accum=132)

def gen_k5(a, name):
    K = "K5"
    KS = 20
    common_head(a, name, K)
    SCR = KS * 4096
    STAT = SCR
    LDS = SCR + 1024
    a("s_lshl_b32 s16, s7, 2")
    a("s_add_u32 s16, s16, s3")
    a(f"s_mul_i32 s16, s16, {KS*1024}")
    a(f"s_add_u32 s16, s16, 0x{WS['X1F'][0]:x}")
    a("s_lshl_b32 s18, s3, 10")
    a("s_mul_i32 s19, s6, 12")
    a("s_mul_i32 s20, s3, 3")
    a("s_add_u32 s19, s19, s20")
    a(f"s_mul_i32 s21, s19, {KS*1024}")
    a(f"s_add_u32 s21, s21, 0x{WS['WP3'][0]:x}")
    a(f"s_add_u32 s22, s21, {KS*1024}")
    a(f"s_add_u32 s28, s22, {KS*1024}")
    a("s_waitcnt lgkmcnt(0)")
    srd(a, 8, 40, 0, WS_TOTAL)
    issued = []
    def dma(s):
        a(f"s_add_u32 m0, s18, {s*4096}")
        if s: a("s_add_u32 s16, s16, 1024")
        else: a("s_nop 0")
        a("buffer_load_dwordx4 v6, s[8:11], s16 offen lds")
        issued.append(("A", s))
    def wload(jj, s):
        sg = (21, 22, 28)[jj]
        b = 80 * jj + 4 * s
        a(f"buffer_load_dwordx4 a[{b}:{b+3}], v6, s[8:11], s{sg} offen offset:{(s % 4)*1024}")
        if s % 4 == 3: a(f"s_add_u32 s{sg}, s{sg}, 4096")
        issued.append(("W" if jj < 2 else "V", s))
    for s in range(KS):
        dma(s); wload(0, s); wload(1, s)
    VT = 12
    for tl in range(4):
        a(f"s_add_u32 s23, s3, {tl}")
        a("s_and_b32 s23, s23, 3")
        a("s_lshl_b32 s23, s23, 10")
        a(f"v_add_u32 v{VT+tl}, s23, v6")
    VP = 20
    for pr in range(2):
        a("v_and_b32 v16, 1, v5")
        a(f"s_add_u32 s25, s3, {2*pr}")
        a("v_add_u32 v16, s25, v16")
        a("v_and_b32 v16, 3, v16")
        a("s_lshl_b32 s23, s7, 2")
        a("v_add_u32 v17, s23, v16")
        a(f"v_mul_u32_u24 v{VP+pr}, {48*1024}, v17")
        a(f"v_lshl_add_u32 v{VP+pr}, v4, 4, v{VP+pr}")
        a("v_lshrrev_b32 v17, 1, v5")
        a(f"v_lshl_add_u32 v{VP+pr}, v17, 8, v{VP+pr}")
    a("s_lshl_b32 s26, s19, 9")
    a(f"s_add_u32 s26, s26, 0x{WS['H3F'][0]:x}")
    EX = 28
    CG = 24
    ACC, S1, S2, ONES, FR, T, O = 40, 88, 92, 96, 100, 132, 148
    a("v_lshlrev_b32 v16, 4, v5")
    a("s_lshl_b32 s23, s19, 6")
    a(f"s_add_u32 s23, s23, 0x{WS['CS'][0] + 640*4:x}")
    for jj in range(3):
        a(f"buffer_load_dwordx4 v[{EX+4*jj}:{EX+4*jj+3}], v16, s[8:11], s23 offen offset:{64*jj}")
        issued.append(("X", 0))
    for r in range(4): a(f"v_mov_b32 v{ONES+r}, 0x3f803f80")
    gelu_consts(a, CG)
    rdbase = [0]
    def frag_reads(s):
        b = FR + 16 * (s & 1)
        off = s * 4096 - rdbase[0]
        return [f"ds_read_b128 v[{b+4*tl}:{b+4*tl+3}], v{VT+tl} offset:{off}" for tl in range(4)]
    def rebase(s):
        want = (s // 12) * 12 * 4096
        if want != rdbase[0]:
            d = want - rdbase[0]
            for tl in range(4):
                a(f"v_add_u32 v{VT+tl}, {d & 0xffffffff}, v{VT+tl}")
            rdbase[0] = want
    stages = [2, 5, 10, 15, 20]
    s0 = 0
    nv = 0
    for st, s1 in enumerate(stages):
        last = max(idx for idx, tg in enumerate(issued) if tg[0] in "AW" and tg[1] <= s1 - 1)
        if st == 0: a.stamp(4)
        a(f"s_waitcnt vmcnt({len(issued) - 1 - last})")
        a("s_barrier")
        if st < 9: a.stamp(5 + st)
        lim = min(KS, 3 * s1)
        while nv < lim:
            wload(2, nv); nv += 1
        rebase(s0)
        for r in frag_reads(s0): a(r)
        for s in range(s0, s1):
            b = FR + 16 * (s & 1)
            a("s_waitcnt lgkmcnt(0)")
            pre = []
            if s + 1 < s1:
                rebase(s + 1)
                pre = frag_reads(s + 1)
            for jj in range(2):
                for tl in range(4):
                    d = ACC + 16 * jj + 4 * tl
                    c = "0" if s == 0 else f"v[{d}:{d+3}]"
                    a(f"v_mfma_f32_16x16x32_bf16 v[{d}:{d+3}], a[{80*jj+4*s}:{80*jj+4*s+3}], v[{b+4*tl}:{b+4*tl+3}], {c}")
                    if pre and jj == 0: a(pre[tl])
            c1 = "0" if s == 0 else f"v[{S1}:{S1+3}]"
            c2 = "0" if s == 0 else f"v[{S2}:{S2+3}]"
            a(f"v_mfma_f32_16x16x32_bf16 v[{S1}:{S1+3}], v[{ONES}:{ONES+3}], v[{b}:{b+3}], {c1}")
            a(f"v_mfma_f32_16x16x32_bf16 v[{S2}:{S2+3}], v[{b}:{b+3}], v[{b}:{b+3}], {c2}")
        s0 = s1
    a.stamp(10)
    a("s_lshl_b32 s23, s3, 8")
    a(f"s_add_u32 s23, s23, {STAT}")
    a("v_lshl_add_u32 v16, v4, 4, s23")
    a("s_nop 6")
    stats_calc(a, S1, S2, 4, 5, T, False, 16)
    a("s_waitcnt lgkmcnt(0)")
    a("s_barrier")
    AB = S1
    for tl in range(4):
        a(f"s_add_u32 s23, s3, {tl}")
        a("s_and_b32 s23, s23, 3")
        a("s_lshl_b32 s23, s23, 8")
        a(f"s_add_u32 s23, s23, {STAT}")
        a("v_lshl_add_u32 v16, v4, 4, s23")
        a(f"ds_read_b64 v[{AB+2*tl}:{AB+2*tl+1}], v16")
    rebase(0)
    for r in frag_reads(0): a(r)
    a("s_waitcnt vmcnt(0)")
    a.stamp(11)
    def epi(jj):
        for pr in range(2):
            P = O + 4 * pr
            for h in range(2):
                tl = 2 * pr + h
                ln_apply_gelu(a, ACC + 16 * jj + 4 * tl, AB + 2 * tl, EX + 4 * jj, T, CG, P + 2 * h)
            swap_pair(a, P)
            a(f"buffer_store_dwordx4 v[{P}:{P+3}], v{VP+pr}, s[8:11], s26 offen offset:{512*jj}")
    for s in range(KS):
        b = FR + 16 * (s & 1)
        a("s_waitcnt lgkmcnt(0)")
        pre = []
        if s + 1 < KS:
            rebase(s + 1)
            pre = frag_reads(s + 1)
        for tl in range(4):
            d = ACC + 32 + 4 * tl
            c = "0" if s == 0 else f"v[{d}:{d+3}]"
            a(f"v_mfma_f32_16x16x32_bf16 v[{d}:{d+3}], a[{160+4*s}:{160+4*s+3}], v[{b+4*tl}:{b+4*tl+3}], {c}")
            if pre: a(pre[tl])
    a.stamp(14)
    epi(0); epi(1); epi(2)
    a.label(f"{K}_END")
    a.endk()
    a.label(f"{K}_EXIT")
    a("s_endpgm")
    return dict(name=name, grid=256, block=256, lds=LDS, vgpr=156 + 240, accum=156)
```

```python
import sys
from asmlib import *
from layout import *
import k1, k2, kg
NAME = "sequential_preLN__ssm_conv_s4__mixer_s_mlp__prompt"
def build(nk=6, diag=False):
    a = Asm()
    a.diag = diag
    ks = []
    a.kidx = len(ks); ks.append(k1.gen_k1(a, "k1_kernel"))
    a.kidx = len(ks); ks.append(k2.gen_k2(a, "k2_kernel"))
    a.kidx = len(ks); ks.append(kg.gen_gemm5(a, "k3_kernel", "K3", 20, "WP1", "k3"))
    a.kidx = len(ks); ks.append(kg.gen_gemm5(a, "k4_kernel", "K4", 20, "WP2", "k4"))
    a.kidx = len(ks); ks.append(kg.gen_k5(a, "k5_kernel"))
    a.kidx = len(ks); ks.append(kg.gen_gemm5(a, "k6_kernel", "K6", 48, "WP4", "k6"))
    ref = open(f"cdna_kernels/{NAME}.s.ref").read().split("\n")
    head = [l for l in ref if l.startswith(";") and "@launch" not in l and "Override launch" not in l and "grid=ceil" not in l]
    out = "\n".join(head) + "\n"
    for k in ks[:nk]:
        out += f"; @launch kernel={k['name']} grid=({k['grid']},1,1) block=({k['block']},1,1) lds={k['lds']}\n"
    out += '.amdgcn_target "amdgcn-amd-amdhsa--gfx950"\n.text\n'
    out += a.text()
    out += '.section .rodata,"a"\n'
    for k in ks:
        out += ".p2align 6\n" + kernel_desc(k["name"], k["vgpr"], k["accum"])
    return out
if __name__ == "__main__":
    dst = sys.argv[1] if len(sys.argv) > 1 else f"cdna_kernels/{NAME}.s"
    open(dst, "w").write(build())
    open("diag.s", "w").write(build(diag=True))
    print("wrote", dst)
```

```python
class Asm:
    def __init__(self):
        self.lines = []
        self._lbl = 0
    def __call__(self, s):
        for ln in s.strip("\n").split("\n"):
            self.lines.append("    " + ln.strip())
    def raw(self, s):
        self.lines.append(s)
    def label(self, l):
        self.lines.append(l + ":")
    def newlabel(self, p="L"):
        self._lbl += 1
        return f"{p}_{self._lbl}"
    def comment(self, s):
        self.lines.append("    ; " + s)
    diag = False
    kidx = 0
    def stamp(self, slot, real=False):
        if not self.diag: return
        self("s_memrealtime s[76:77]" if real else "s_memtime s[76:77]")
        self("s_waitcnt lgkmcnt(0)")
        self(f"s_mov_b32 s{80+slot}, s76")
    big = False
    def stamp2(self, slot):
        if not self.diag: return
        self("s_memtime s[76:77]")
        self("s_waitcnt lgkmcnt(0)")
        self(f"v_writelane_b32 v191, s76, {16+slot}")
    def start(self):
        if not self.diag: return
        for i in range(16): self(f"s_mov_b32 s{80+i}, 0")
        self.stamp(0, True)
        self.stamp(2)
    def endk(self):
        if self.diag:
            self("s_waitcnt vmcnt(0) lgkmcnt(0)")
            self.stamp(3)
            self.stamp(1, True)
            self("s_mov_b64 exec, -1")
            self("s_add_u32 s72, s40, 0x8000000")
            self("s_addc_u32 s73, s41, 0")
            self("s_mov_b32 s74, 0x1000000")
            self("s_mov_b32 s75, 0x00020000")
            vo = 191 if self.big else 2
            for i in range(16): self(f"v_writelane_b32 v{vo}, s{80+i}, {i}")
            self(f"s_add_u32 s76, s2, {self.kidx*1024}")
            self("s_lshl_b32 s76, s76, 2")
            self("s_add_u32 s76, s76, s3")
            self(f"s_lshl_b32 s76, s76, {7 if self.big else 6}")
            self("v_mbcnt_lo_u32_b32 v3, -1, 0")
            self("v_mbcnt_hi_u32_b32 v3, -1, v3")
            self(f"v_cmp_gt_u32 vcc, {32 if self.big else 16}, v3")
            self("v_lshlrev_b32 v3, 2, v3")
            self("s_and_saveexec_b64 s[78:79], vcc")
            self(f"buffer_store_dword v{vo}, v3, s[72:75], s76 offen")
        self("s_endpgm")
    def text(self):
        return "\n".join(self.lines) + "\n"

def vr(b, n=1):
    return f"v{b}" if n == 1 else f"v[{b}:{b+n-1}]"
def ar(b, n=1):
    return f"a{b}" if n == 1 else f"a[{b}:{b+n-1}]"
def sr(b, n=1):
    return f"s{b}" if n == 1 else f"s[{b}:{b+n-1}]"

import struct
def f2u(x):
    return struct.unpack("<I", struct.pack("<f", x))[0]
def fhex(x):
    return "0x%08x" % f2u(x)

def srd(a, d, base, off, size):
    if off:
        a(f"s_add_u32 s{d}, s{base}, 0x{off:x}")
        a(f"s_addc_u32 s{d+1}, s{base+1}, 0")
    else:
        a(f"s_mov_b32 s{d}, s{base}")
        a(f"s_mov_b32 s{d+1}, s{base+1}")
    a(f"s_mov_b32 s{d+2}, 0x{size:x}")
    a(f"s_mov_b32 s{d+3}, 0x00020000")

def kernel_begin(a, name):
    a.raw(f".globl {name}")
    a.raw(".p2align 8")
    a.raw(f".type {name},@function")
    a.label(name)

def kernel_desc(name, vgpr, accum, sgpr=102):
    return f""".amdhsa_kernel {name}
  .amdhsa_next_free_vgpr {vgpr}
  .amdhsa_next_free_sgpr {sgpr}
  .amdhsa_accum_offset {accum}
  .amdhsa_group_segment_fixed_size 0
  .amdhsa_kernarg_size 136
  .amdhsa_user_sgpr_count 2
  .amdhsa_user_sgpr_kernarg_segment_ptr 1
  .amdhsa_system_sgpr_workgroup_id_x 1
.end_amdhsa_kernel
"""
```

```python
from asmlib import *
from layout_d import *
import math
import kg
from kg import rbf1, rbf2, gelu_regs, ln_apply_gelu, swap_pair, stats_calc, gelu_consts, MASK
from k2 import conv_epi
LOG2E = 1.4426950408889634
SPIN = 20000

KC = 4160
SLOT = 4 * KC
LN_ROW = 1344
LN_U, LN_X = 0, 8 * LN_ROW
PK = 21504
UPL = 3 * SLOT
UPS = 3840
XPL = UPL + 4 * UPS
XPS = 3072
KGT = XPL + 4 * XPS
KG_ROW = 272
KG_WAVE = 53 * KG_ROW
TT = KGT + 3 * KG_WAVE + 16
TTS = 1664
RED = KGT
LDS_TOTAL = 163840
SCR = 20 * 4096
STAT = SCR + 20480

def Q(q):
    return f"a[{4*q}:{4*q+3}]" if q < 64 else f"v[{192+4*(q-64)}:{192+4*(q-64)+3}]"

class Gen:
    def __init__(self, a):
        self.a = a
        self.wstate = None
    def wl(self, q, base, const):
        out = []
        hi = const >> 12
        if self.wstate != (base, hi):
            out.append(f"s_add_u32 s62, s{base}, {hi << 12}")
            self.wstate = (base, hi)
        out.append(f"buffer_load_dwordx4 {Q(q)}, v6, s[8:11], s62 offen offset:{const & 4095}")
        return "\n".join(out)

def arrive(a, soff, va=2, vb=3):
    a(f"v_mov_b32 v{va}, 0")
    a(f"v_mov_b32 v{vb}, 1")
    a("s_mov_b64 exec, 1")
    a(f"buffer_atomic_add v{vb}, v{va}, s[8:11], s{soff} offen sc1")
    a("s_mov_b64 exec, -1")

def poll(a, voff, vthr, vv, srd="s[8:11]"):
    l, d = a.newlabel("POLL"), a.newlabel("POLLD")
    a(f"s_mov_b32 s63, {SPIN}")
    a.label(l)
    a(f"buffer_load_dword v{vv}, v{voff}, {srd}, 0 offen sc1")
    a("s_waitcnt vmcnt(0)")
    a(f"v_cmp_ge_u32 vcc, v{vv}, v{vthr}")
    a("s_cmp_eq_u64 vcc, -1")
    a(f"s_cbranch_scc1 {d}")
    a("s_sub_u32 s63, s63, 1")
    a("s_cmp_lg_u32 s63, 0")
    a(f"s_cbranch_scc1 {l}")
    a.label(d)

def red32_1(a, ra, ta):
    a("s_nop 1")
    for ctrl in ("quad_perm:[1,0,3,2]", "quad_perm:[2,3,0,1]", "row_half_mirror", "row_mirror"):
        a(f"v_add_f32_dpp v{ra}, v{ra}, v{ra} {ctrl} row_mask:0xf bank_mask:0xf")
        a("s_nop 1")
    a(f"v_mov_b32 v{ta}, v{ra}")
    a("s_nop 1")
    a(f"v_permlane16_swap_b32 v{ra}, v{ta}")
    a("s_nop 0")
    a(f"v_add_f32 v{ra}, v{ra}, v{ta}")

def pack_decode(a):
    a("s_mov_b32 s68, s32\ns_mov_b32 s69, s33")
    a(f"s_mov_b32 s70, {D*D*2}\ns_mov_b32 s71, 0x00020000")
    a("s_movk_i32 s65, 1280\ns_movk_i32 s97, 10")
    a(f"s_mov_b32 s98, 0x{(2**32+9)//10:x}\ns_movk_i32 s96, {20*1024}")
    a(f"s_mov_b32 s67, 0x{WS['WP1'][0]:x}\ns_mov_b32 s99, 0")
    a("s_cmp_ge_u32 s64, 200")
    a("s_cselect_b32 s68, s34, s68\ns_cselect_b32 s69, s35, s69")
    a(f"s_cselect_b32 s67, 0x{WS['WP2'][0]:x}, s67\ns_cselect_b32 s99, 200, s99")
    a("s_cmp_ge_u32 s64, 400")
    a("s_cselect_b32 s68, s36, s68\ns_cselect_b32 s69, s37, s69")
    a(f"s_cselect_b32 s67, 0x{WS['WP3'][0]:x}, s67\ns_cselect_b32 s99, 400, s99")
    a(f"s_cselect_b32 s70, {D*F*2}, s70\ns_cselect_b32 s65, 3072, s65\ns_cselect_b32 s97, 24, s97")
    a(f"s_cselect_b32 s98, 0x{(2**32+23)//24:x}, s98")
    a("s_cmp_ge_u32 s64, 880")
    a("s_cselect_b32 s68, s38, s68\ns_cselect_b32 s69, s39, s69")
    a(f"s_cselect_b32 s67, 0x{WS['WP4'][0]:x}, s67\ns_cselect_b32 s99, 880, s99")
    a(f"s_cselect_b32 s65, 1280, s65\ns_cselect_b32 s97, 10, s97")
    a(f"s_cselect_b32 s98, 0x{(2**32+9)//10:x}, s98\ns_cselect_b32 s96, {48*1024}, s96")
    a("s_sub_u32 s99, s64, s99")
    a("s_mul_hi_u32 s100, s99, s98")
    a("s_mul_i32 s101, s100, s97")
    a("s_sub_u32 s101, s99, s101")
    a("s_mul_i32 s66, s100, s65")
    a("s_lshl_b32 s66, s66, 5")
    a("s_lshl_b32 s99, s101, 7")
    a("s_add_u32 s66, s66, s99")
    a("s_mul_i32 s99, s101, s96")
    a("s_lshl_b32 s99, s99, 2")
    a("s_add_u32 s67, s67, s99")
    a("s_lshl_b32 s99, s100, 10")
    a("s_add_u32 s67, s67, s99")

def merge(a, main, extra):
    nslots = sum(1 for _, s in main if s)
    k = 0; done = 0
    for txt, s in main:
        a(txt)
        if s:
            k += 1
            tgt = (len(extra) * k + nslots - 1) // nslots if nslots else 0
            while done < min(tgt, len(extra)):
                a(extra[done]); done += 1
    while done < len(extra):
        a(extra[done]); done += 1

class Rec:
    def __init__(self, a): self.l = []; self.a = a
    def __call__(self, s):
        for ln in s.strip("\n").split("\n"): self.l.append(ln.strip())
    def newlabel(self, p): return self.a.newlabel(p)

def conv_steps(steps, vA, vB, ACC, FR):
    main = []
    def loads(i):
        d0 = steps[i]
        base = FR + 32 * (i & 1)
        def lb(c): return f"ds_read_b128 v[{base+16+4*c}:{base+16+4*c+3}], v{vB} offset:{48*(15-d0) + 768*c}"
        def la(q):
            o = 64 * (15 - d0) + 1024 * (3 - q)
            return (f"ds_read_b64 v[{base+4*q}:{base+4*q+1}], v{vA} offset:{o}\n"
                    f"ds_read_b64 v[{base+4*q+2}:{base+4*q+3}], v{vA} offset:{o+8}")
        return [lb(0), la(0), lb(1), lb(2), lb(3), la(1), la(2), la(3)]
    for f in loads(0): main.append((f, False))
    n = len(steps)
    for i in range(n):
        base = FR + 32 * (i & 1)
        main.append(("s_waitcnt lgkmcnt(0)", False))
        nxt = loads(i + 1) if i + 1 < n else []
        k = 0
        for q in range(4):
            for c in range(q, 4):
                cc = "0" if (i == 0 and q == 0) else f"v[{ACC+4*c}:{ACC+4*c+3}]"
                main.append((f"v_mfma_f32_16x16x32_bf16 v[{ACC+4*c}:{ACC+4*c+3}], v[{base+4*q}:{base+4*q+3}], v[{base+16+4*(c-q)}:{base+16+4*(c-q)+3}], {cc}", k >= 7))
                if k < len(nxt): main.append((nxt[k], False))
                k += 1
    return main

def gen_d(a, name):
    G = Gen(a)
    kernel_begin(a, name)
    a.label("D_START")
    a("s_cmp_ge_u32 s2, 256")
    a("s_cbranch_scc1 D_EXIT")
    a.start()
    a("s_load_dwordx16 s[16:31], s[0:1], 0")
    a("s_load_dwordx8 s[32:39], s[0:1], 80")
    a("s_load_dwordx2 s[46:47], s[0:1], 64")
    a("s_load_dwordx4 s[48:51], s[0:1], 112")
    a("s_load_dwordx2 s[40:41], s[0:1], 128")
    a("s_getpc_b64 s[64:65]")
    a.label("D_PC")
    a("v_and_b32 v1, 63, v0")
    a("v_lshrrev_b32 v2, 6, v0")
    a(f"s_mov_b32 s{MASK}, 0xffff0000")
    a("v_readfirstlane_b32 s3, v2")
    a("v_lshlrev_b32 v2, 7, v0")
    a("v_min_u32 v3, D_CODE_END-D_PC-4, v2")
    a("global_load_dword v250, v3, s[64:65]")
    a("v_add_u32 v2, 0x8000, v2")
    a("v_min_u32 v3, D_CODE_END-D_PC-4, v2")
    a("global_load_dword v251, v3, s[64:65]")
    a("s_and_b32 s4, s2, 7")
    a("s_lshr_b32 s5, s2, 6")
    a("s_lshr_b32 s6, s2, 3")
    a("s_and_b32 s6, s6, 7")
    a("s_lshl_b32 s7, s4, 2")
    a("s_add_u32 s7, s7, s5")
    a("v_and_b32 v4, 15, v1")
    a("v_lshrrev_b32 v5, 4, v1")
    a("v_lshlrev_b32 v6, 4, v1")
    a("s_lshl_b32 s52, s4, 5")
    a("s_lshr_b32 s53, s2, 3")
    a("s_add_u32 s52, s52, s53")
    a("s_and_b32 s53, s52, 1")
    a("s_lshr_b32 s52, s52, 1")
    a("s_mul_i32 s52, s52, 5")
    a("s_lshl_b32 s54, s53, 1")
    a("s_add_u32 s52, s52, s54")
    a("s_and_b32 s54, s2, 63")
    a("s_lshl_b32 s54, s54, 5")
    a("s_lshl_b32 s55, s5, 3")
    a("s_add_u32 s54, s54, s55")
    a("v_lshrrev_b32 v7, 5, v0")
    a("v_and_b32 v8, 31, v0")
    a("v_add_u32 v9, s54, v7")
    a("v_mul_u32_u24 v9, 1280, v9")
    a("v_lshl_add_u32 v9, v8, 3, v9")
    a("s_add_u32 s54, s52, s3")
    a("s_mul_i32 s55, s54, 384")
    a("v_lshl_add_u32 v10, v1, 1, s55")
    a("s_lshl_b32 s55, s54, 1")
    a("v_mov_b32 v11, s55")
    a("s_waitcnt lgkmcnt(0)")
    a.stamp(4)
    srd(a, 12, 16, 0, ACT)
    srd(a, 8, 40, 0, WS_TOTAL)
    XA, FA = 12, 22
    for i in range(5):
        a(f"buffer_load_dwordx2 v[{XA+2*i}:{XA+2*i+1}], v9, s[12:15], 0 offen offset:{256*i}")
    PR = 100
    a("s_cmp_eq_u32 s3, 3")
    a("s_cbranch_scc1 D_W3_ISSUE")
    a(f"global_load_ushort v{PR+18}, v11, s[30:31]")
    for p in range(3):
        for i in range(6):
            a(f"global_load_ushort v{PR+6*p+i}, v10, s[{18+2*i}:{19+2*i}] offset:{128*p}")
    a("s_branch D_ISSUED")
    a.label("D_W3_ISSUE")
    a("s_cmp_lg_u32 s2, 0")
    a("s_cbranch_scc1 D_NOINIT")
    a("v_lshlrev_b32 v2, 8, v1")
    a("v_mov_b32 v3, 0")
    a("buffer_store_dword v3, v2, s[8:11], 0 offen sc1")
    a("v_add_u32 v2, 0x4000, v2")
    a("buffer_store_dword v3, v2, s[8:11], 0 offen sc1")
    a("s_waitcnt vmcnt(0)")
    a("v_mov_b32 v2, 1")
    a("global_store_dword v3, v2, s[50:51] sc1")
    a.label("D_NOINIT")
    a("v_lshrrev_b32 v2, 3, v1")
    a("v_and_b32 v3, 7, v1")
    a("s_mov_b32 s64, s2")
    a(f"s_mov_b32 s56, {PK}")
    a.label("D_PKI")
    pack_decode(a)
    a("v_mul_lo_u32 v10, v2, s65")
    a("v_lshl_add_u32 v10, v3, 4, v10")
    a("s_lshl_b32 s99, s65, 3")
    for m in range(4):
        a(f"s_add_u32 m0, s56, {m*1024}")
        a("s_add_u32 s66, s66, s99" if m else "s_nop 0")
        a("buffer_load_dwordx4 v10, s[68:71], s66 offen lds")
    a("s_add_u32 s56, s56, 4096")
    a("s_add_u32 s64, s64, 256")
    a("s_cmp_lt_u32 s64, 1360")
    a("s_cbranch_scc1 D_PKI")
    a.label("D_ISSUED")
    a(f"v_mul_u32_u24 v9, {LN_ROW}, v7")
    a("v_lshl_add_u32 v9, v8, 3, v9")
    a("v_mul_u32_u24 v2, 1366, v0")
    a("v_lshrrev_b32 v2, 16, v2")
    a("v_mul_u32_u24 v3, 48, v2")
    a("v_sub_u32 v3, v0, v3")
    a(f"v_mul_u32_u24 v2, {UPS}, v2")
    a("v_lshl_add_u32 v2, v3, 4, v2")
    for r in range(4): a(f"v_mov_b32 v{44+r}, 0")
    a("v_cmp_gt_u32 vcc, 192, v0")
    a("s_and_saveexec_b64 s[44:45], vcc")
    a(f"ds_write_b128 v2, v[44:47] offset:{UPL}")
    a("s_mov_b64 exec, s[44:45]")
    a("s_min_u32 s55, s3, 2")
    a(f"s_mul_i32 s55, s55, {TTS}")
    a(f"s_add_u32 s55, s55, {TT}")
    a("v_and_b32 v2, 3, v1")
    a("v_lshl_add_u32 v2, v2, 4, s55")
    a("ds_write_b128 v2, v[44:47]")
    GA = 120
    TB0 = TT + 64
    code128 = f2u(128.0) >> 16
    a("v_lshlrev_b32 v2, 3, v0")
    a("v_sub_u32 v2, 2047, v2")
    a("v_cvt_f32_i32 v42, v2")
    a("v_cmp_gt_i32 vcc, 256, v2")
    a("v_lshlrev_b32 v2, 1, v2")
    a(f"v_add_u32 v2, {TB0}, v2")
    for i in range(0, 11, 2):
        a(f"v_add_f32 v43, {fhex(-float(i))}, v42")
        a(f"v_add_f32 v44, {fhex(-float(i+1))}, v42")
        a("v_cvt_pk_bf16_f32 v45, v43, v44")
        for k in range(2):
            if i + k > 10: continue
            a("v_and_b32 v43, 0xffff, v45" if k == 0 else "v_lshrrev_b32 v43, 16, v45")
            a("v_lshlrev_b32 v43, 1, v43")
            a(f"v_add_u32 v43, {(TB0 + 2*(128 - code128)) & 0xffffffff}, v43")
            a(f"v_add_u32 v44, {(-2*(i+k)) & 0xffffffff}, v2" if (i + k) else "v_mov_b32 v44, v2")
            a(f"v_cndmask_b32 v{GA+i+k}, v43, v44, vcc")
    a("s_waitcnt vmcnt(19)")
    a.stamp(5)
    for i in range(5):
        a(f"ds_write_b64 v9, v[{XA+2*i}:{XA+2*i+1}] offset:{LN_X + 256*i}")
    S, T, Qv, INV = 42, 44, 46, 48
    for m in range(10):
        a(f"v_lshlrev_b32 v{FA+2*m}, 16, v{XA+m}")
        a(f"v_and_b32 v{FA+2*m+1}, s{MASK}, v{XA+m}")
    a(f"v_pk_add_f32 v[{S}:{S+1}], v[{FA}:{FA+1}], v[{FA+2}:{FA+3}]")
    for m in range(2, 10):
        a(f"v_pk_add_f32 v[{S}:{S+1}], v[{S}:{S+1}], v[{FA+2*m}:{FA+2*m+1}]")
    a(f"v_add_f32 v{S}, v{S}, v{S+1}")
    red32_1(a, S, T)
    a(f"s_mov_b32 s55, {fhex(1.0/640)}")
    a(f"v_mul_f32 v{S}, s55, v{S}")
    for m in range(10):
        t = T + 4 * (m & 1) * 0
        a(f"v_pk_add_f32 v[{T}:{T+1}], v[{FA+2*m}:{FA+2*m+1}], v[{S}:{S+1}] op_sel_hi:[1,0] neg_lo:[0,1] neg_hi:[0,1]")
        if m == 0: a(f"v_pk_mul_f32 v[{Qv}:{Qv+1}], v[{T}:{T+1}], v[{T}:{T+1}]")
        else: a(f"v_pk_fma_f32 v[{Qv}:{Qv+1}], v[{T}:{T+1}], v[{T}:{T+1}], v[{Qv}:{Qv+1}]")
    a(f"v_add_f32 v{Qv}, v{Qv}, v{Qv+1}")
    red32_1(a, Qv, T)
    a(f"v_mul_f32 v{Qv}, s55, v{Qv}")
    rbf2(a, S, Qv, T)
    a(f"v_add_f32 v{Qv}, {fhex(1e-5)}, v{Qv}")
    rbf1(a, Qv)
    a(f"v_sqrt_f32 v{Qv}, v{Qv}")
    a("s_nop 0")
    rbf1(a, Qv)
    a(f"v_rcp_f32 v{INV}, v{Qv}")
    for m in range(10):
        a(f"v_pk_add_f32 v[{FA+2*m}:{FA+2*m+1}], v[{FA+2*m}:{FA+2*m+1}], v[{S}:{S+1}] op_sel_hi:[1,0] neg_lo:[0,1] neg_hi:[0,1]")
    for m in range(10):
        rbf2(a, FA + 2*m, FA + 2*m + 1, T)
        a(f"v_pk_mul_f32 v[{FA+2*m}:{FA+2*m+1}], v[{FA+2*m}:{FA+2*m+1}], v[{INV}:{INV+1}] op_sel_hi:[1,0]")
        a(f"v_cvt_pk_bf16_f32 v{50+m}, v{FA+2*m}, v{FA+2*m+1}")
        if m & 1:
            a(f"ds_write_b64 v9, v[{50+m-1}:{50+m}] offset:{LN_U + 256*(m//2)}")
    a("s_waitcnt lgkmcnt(0)")
    a("s_barrier")
    a.stamp(6)
    a("s_cmp_eq_u32 s3, 3")
    a("s_cbranch_scc0 D_KGEN")
    a("v_bfe_u32 v2, v1, 2, 2")
    a(f"v_mul_u32_u24 v9, {LN_ROW}, v2")
    a("v_lshl_add_u32 v9, v5, 5, v9")
    a("v_and_b32 v2, 3, v1")
    a("v_lshl_add_u32 v9, v2, 3, v9")
    a("s_mul_i32 s55, s2, 10240")
    a(f"s_add_u32 s55, s55, 0x{WS['U2'][0]:x}")
    a("v_mov_b32 v2, 0")
    a("v_mov_b32 v3, 1")
    R = 12
    for arr in range(2):
        for half in range(2):
            for p in range(5):
                pp_ = half * 5 + p
                for h in range(2):
                    d = R + 4 * p + 2 * h + 20 * half + 40 * arr
                    a(f"ds_read_b64_tr_b16 v[{d}:{d+1}], v9 offset:{(LN_U, LN_X)[arr] + h*4*LN_ROW + pp_*128}")
            for p in range(5):
                pp_ = half * 5 + p
                d = R + 4 * p + 20 * half + 40 * arr
                a(f"s_waitcnt lgkmcnt({8-2*p})")
                if pp_ % 4 == 0:
                    a(f"s_add_u32 s56, s55, {arr*(WS['X2'][0]-WS['U2'][0]) + pp_*1024}")
                a(f"buffer_store_dwordx4 v[{d}:{d+3}], v6, s[8:11], s56 offen offset:{(pp_ % 4)*1024} sc1")
    srd(a, 12, 50, 0, 256)
    poll(a, 2, 3, 10, "s[12:15]")
    a("s_lshl_b32 s55, s4, 8")
    a(f"s_add_u32 s56, s55, {C_A*256}")
    arrive(a, 56)
    a.stamp(7)
    a("v_lshlrev_b32 v9, 10, v5")
    a("v_bfe_u32 v2, v1, 2, 2")
    a("v_lshl_add_u32 v9, v2, 7, v9")
    a("v_and_b32 v2, 3, v1")
    a("v_lshl_add_u32 v9, v2, 3, v9")
    a(f"v_add_u32 v9, {PK}, v9")
    a("s_mov_b32 s64, s2")
    a.label("D_PKF")
    for jj in range(4):
        for h in range(2):
            a(f"ds_read_b64_tr_b16 v[{12+4*jj+2*h}:{12+4*jj+2*h+1}], v9 offset:{h*512 + jj*32}")
    pack_decode(a)
    for jj in range(4):
        a(f"s_waitcnt lgkmcnt({6-2*jj})")
        a(f"buffer_store_dwordx4 v[{12+4*jj}:{12+4*jj+3}], v6, s[8:11], s67 offen sc1")
        a("s_add_u32 s67, s67, s96")
    a("v_add_u32 v9, 4096, v9")
    a("s_add_u32 s64, s64, 256")
    a("s_cmp_lt_u32 s64, 1360")
    a("s_cbranch_scc1 D_PKF")
    a("s_waitcnt vmcnt(0)")
    a(f"s_add_u32 s56, s55, {C_B*256}")
    arrive(a, 56)
    a.stamp(8)
    for m in range(3):
        a(f"v_add_u32 v2, {64*m}, v1")
        a("v_mul_u32_u24 v3, 21846, v2")
        a("v_lshrrev_b32 v3, 16, v3")
        a("v_mul_u32_u24 v10, 3, v3")
        a("v_sub_u32 v2, v2, v10")
        a("v_add_u32 v2, s52, v2")
        a(f"v_mul_u32_u24 v{12+m}, 10240, v3")
        a(f"v_lshl_add_u32 v{12+m}, v2, 4, v{12+m}")
    a("v_and_b32 v2, 7, v1")
    a("v_lshlrev_b32 v2, 8, v2")
    if C_A: a(f"v_add_u32 v2, {C_A*256}, v2")
    a("v_mov_b32 v3, 32")
    poll(a, 2, 3, 10)
    a.stamp(9)
    for arr in range(2):
        for kq in range(4):
            a(f"s_mov_b32 s56, 0x{WS[('U2','X2')[arr]][0] + kq*64*10240:x}")
            for m in range(3):
                dst = (UPL + kq*UPS + 768, XPL + kq*XPS)[arr] + m*1024
                a(f"s_mov_b32 m0, {dst}")
                a("s_nop 0")
                a(f"buffer_load_dwordx4 v{12+m}, s[8:11], s56 offen sc1 lds")
    a(f"v_add_u32 v2, {(C_B-C_A)*256}, v2")
    poll(a, 2, 3, 10)
    a.stamp(10)
    a("s_branch D_KG_DONE")
    a.label("D_KGEN")
    a(f"s_mul_i32 s55, s3, {KG_WAVE}")
    a(f"s_add_u32 s55, s55, {KGT}")
    a("v_lshl_add_u32 v9, v1, 2, s55")
    a("v_and_b32 v7, 31, v1")
    a("v_lshrrev_b32 v8, 5, v1")
    a(f"v_mul_u32_u24 v10, {KG_ROW}, v7")
    a("v_lshl_add_u32 v10, v8, 4, v10")
    a("v_add_u32 v10, s55, v10")
    FRk, ACCk = 132, 12
    for r in range(16): a(f"v_mov_b32 v{ACCk+r}, 0")
    a("s_waitcnt vmcnt(0)")
    LDT = PR + 18
    a(f"s_mov_b32 s56, {fhex(LOG2E)}")
    a(f"v_lshlrev_b32 v{LDT}, 16, v{LDT}")
    a(f"v_mul_f32 v{LDT}, s56, v{LDT}")
    a(f"v_exp_f32 v{LDT}, v{LDT}")
    a("s_nop 0")
    rbf1(a, LDT)
    a("s_mov_b32 s57, 0")
    a.label("D_KGL")
    ARE, AIM, BRE, BIM, CRE, CIM = range(28, 34)
    for i in range(6):
        a(f"v_lshlrev_b32 v{28+i}, 16, v{PR+i}")
    for i in range(12):
        a(f"v_mov_b32 v{PR+i}, v{PR+6+i}")
    a(f"v_mul_f32 v{ARE}, v{LDT}, v{ARE}")
    a(f"v_mul_f32 v{ARE}, s56, v{ARE}")
    a(f"v_mul_f32 v{AIM}, v{LDT}, v{AIM}")
    a(f"v_mul_f32 v{AIM}, 0.15915494, v{AIM}")
    a(f"v_mul_f32 v{BRE}, v{LDT}, v{BRE}")
    a(f"v_mul_f32 v{BIM}, v{LDT}, v{BIM}")
    tcnt = [0]
    def cmul(d, x, y):
        t = 34 + 2 * (tcnt[0] & 1); tcnt[0] += 1
        a(f"v_pk_mul_f32 v[{t}:{t+1}], v[{x}:{x+1}], v[{y}:{y+1}] op_sel:[1,1] op_sel_hi:[1,0] neg_lo:[1,0]")
        a(f"v_pk_fma_f32 v[{d}:{d+1}], v[{x}:{x+1}], v[{y}:{y+1}], v[{t}:{t+1}] op_sel:[0,0,0] op_sel_hi:[0,1,1]")
    Wr, Z1, Z8, Z256, Z2, Z4, Z16 = 38, 40, 42, 44, 46, 48, 50
    cmul(Wr, CRE, BRE)
    for (z, m) in ((Z1, 1.0), (Z8, 8.0), (Z256, 256.0)):
        a(f"v_mul_f32 v52, {fhex(m)}, v{ARE}")
        a(f"v_mul_f32 v53, {fhex(m)}, v{AIM}")
        a("v_exp_f32 v52, v52")
        a("v_fract_f32 v53, v53")
        a(f"v_cos_f32 v{z}, v53")
        a(f"v_sin_f32 v{z+1}, v53")
        a("s_nop 0")
        a(f"v_pk_mul_f32 v[{z}:{z+1}], v[{z}:{z+1}], v[52:53] op_sel_hi:[1,0]")
    wt = [0]
    def put(row, x, negim):
        t = 54 + (wt[0] & 3); wt[0] += 1
        a(f"v_cvt_pk_bf16_f32 v{t}, v{x}, {'-' if negim else ''}v{x+1}")
        a(f"ds_write_b32 v9, v{t} offset:{row*KG_ROW}")
    cmul(Z2, Z1, Z1)
    cmul(Z16, Z8, Z8)
    cmul(Z4, Z2, Z2)
    a("v_mov_b32 v54, 0x00003f80")
    a(f"ds_write_b32 v9, v54 offset:{21*KG_ROW}")
    wt[0] = 1
    Pe, Po, Qa, Qb, Ra = 58, 60, 62, 64, 66
    put(22, Z8, True)
    put(23, Z16, True)
    ops = []
    chB = []
    cur_o, cur_e = Z8, Z16
    for j in range(3, 32):
        if j & 1:
            chB.append((Po, cur_o, Z16, 21 + j, True)); cur_o = Po
        else:
            chB.append((Pe, cur_e, Z16, 21 + j, True)); cur_e = Pe
    chA = []
    cur = Wr
    for p in range(1, 8):
        chA.append((Qa, cur, Z1, p, False)); cur = Qa
    cur = Wr
    for i in range(1, 9):
        row = {1: 8, 2: 12, 3: 14}.get(i, 12 + i)
        chA.append((Qb, cur, Z256, row, False)); cur = Qb
        if i == 1:
            c2 = Qb
            for p in range(1, 4):
                chA.append((Ra, c2, Z2, 8 + p, False)); c2 = Ra
        elif i in (2, 3):
            chA.append((Ra, Qb, Z4, row + 1, False))
    put(0, Wr, False)
    seq = []
    ia = ib = 0
    while ia < len(chA) or ib < len(chB):
        if ib < len(chB): seq.append(chB[ib]); ib += 1
        if ia < len(chA): seq.append(chA[ia]); ia += 1
    pend = None
    for (d, x, y, row, neg) in seq:
        cmul(d, x, y)
        if pend: put(*pend)
        pend = None
        put(row, d, neg)
    for s in range(8):
        a(f"ds_read_b128 v[{FRk+8*s}:{FRk+8*s+3}], v10 offset:{32*s}")
        a(f"ds_read_b128 v[{FRk+8*s+4}:{FRk+8*s+7}], v10 offset:{21*KG_ROW + 32*s}")
    for s in range(8):
        a(f"s_waitcnt lgkmcnt({14-2*s})")
        a(f"v_mfma_f32_32x32x16_bf16 v[{ACCk}:{ACCk+15}], v[{FRk+8*s}:{FRk+8*s+3}], v[{FRk+8*s+4}:{FRk+8*s+7}], v[{ACCk}:{ACCk+15}]")
    a("s_add_u32 s57, s57, 1")
    a("s_cmp_lt_u32 s57, 3")
    a("s_cbranch_scc1 D_KGL")
    a.stamp(7)
    a(f"s_mul_i32 s55, s3, {TTS}")
    a(f"s_add_u32 s55, s55, {TB0}")
    a("v_lshlrev_b32 v28, 4, v7")
    a("v_lshl_add_u32 v28, v8, 3, v28")
    a("v_add_u32 v28, s55, v28")
    a("v_cmp_eq_u32 vcc, 1, v8")
    a("v_lshlrev_b32 v31, 3, v7")
    a(f"v_add_u32 v29, {256*2}, v31")
    a(f"v_add_u32 v30, {258*2}, v31")
    a("v_lshlrev_b32 v31, 2, v7")
    a(f"v_add_u32 v32, {384*2}, v31")
    a("v_cndmask_b32 v29, v29, v32, vcc")
    a(f"v_add_u32 v32, {448*2}, v31")
    a("v_cndmask_b32 v30, v30, v32, vcc")
    a("v_add_u32 v29, s55, v29")
    a("v_add_u32 v30, s55, v30")
    a("v_lshlrev_b32 v31, 1, v7")
    a("v_lshl_add_u32 v31, v8, 8, v31")
    a("v_add_u32 v31, s55, v31")
    for m in range(4):
        a(f"v_cvt_pk_bf16_f32 v{34+m}, v{ACCk+2*m}, v{ACCk+2*m+1}")
    for r in range(4):
        a(f"v_cvt_pk_bf16_f32 v{38+r}, v{ACCk+8+r}, v{ACCk+8+r}")
    a("ds_write_b64 v28, v[34:35]")
    a("ds_write_b32 v29, v36")
    a("ds_write_b32 v30, v37")
    for r in range(4):
        a(f"ds_write_b16 v31, v{38+r} offset:{(512+32*r)*2}")
    a.label("D_KG_DONE")
    a("s_waitcnt lgkmcnt(0)")
    a("s_barrier")
    a.stamp(11)
    a("v_lshlrev_b32 v9, 4, v0")
    for sl in range(3):
        V = 12 + 28 * sl
        for i in range(11):
            a(f"ds_read_u16 v{V+i}, v{GA+i} offset:{sl*TTS}")
        if sl == 0:
            a("v_lshrrev_b32 v2, 2, v0")
            a(f"v_mul_u32_u24 v2, {KC}, v2")
            a("v_and_b32 v3, 3, v0")
            a("v_lshl_add_u32 v2, v3, 4, v2")
            for r in range(4): a(f"v_mov_b32 v{100+r}, 0")
            a("v_cmp_gt_u32 vcc, 48, v0")
            a("s_and_saveexec_b64 s[44:45], vcc")
            a("ds_write_b128 v2, v[100:103] offset:4096")
            a("s_mov_b64 exec, s[44:45]")
        a("s_waitcnt lgkmcnt(0)")
        O = V + 12
        for c in range(4):
            for m in range(4):
                a(f"v_lshl_or_b32 v{O+4*c+m}, v{V+c+2*m+1}, 16, v{V+c+2*m}")
            a(f"ds_write_b128 v9, v[{O+4*c}:{O+4*c+3}] offset:{sl*SLOT + c*KC}")
    a("s_lshr_b32 s54, s3, 1")
    a("s_add_u32 s54, s54, s53")
    a("s_and_b32 s55, s3, 1")
    a("s_lshl_b32 s56, s53, 1")
    a("s_sub_u32 s56, 2, s56")
    a("s_add_u32 s57, s52, s54")
    a("s_add_u32 s58, s52, s56")
    a("s_lshl_b32 s59, s57, 1")
    a("v_mov_b32 v2, s59")
    a("s_lshl_b32 s59, s58, 1")
    a("v_mov_b32 v3, s59")
    a("global_load_ushort v22, v2, s[46:47]")
    a("global_load_ushort v23, v3, s[46:47]")
    a("v_sub_u32 v8, 3, v4")
    a("v_and_b32 v8, 3, v8")
    a(f"v_mul_u32_u24 v8, {KC}, v8")
    a("v_lshl_add_u32 v8, v5, 4, v8")
    a("v_lshrrev_b32 v9, 2, v4")
    a("v_lshlrev_b32 v9, 3, v9")
    a("v_sub_u32 v8, v8, v9")
    a(f"v_add_u32 v8, {2*2044 - 64*15 - 1024*3}, v8")
    a(f"v_mul_u32_u24 v9, {UPS}, v5")
    a("v_mul_u32_u24 v10, 48, v4")
    a("v_add_u32 v9, v9, v10")
    a(f"v_add_u32 v9, {UPL + 768 - 48*15}, v9")
    a(f"s_mul_i32 s59, s54, {SLOT}")
    a("s_lshl_b32 s60, s55, 5")
    a("s_sub_u32 s59, s59, s60")
    a("v_add_u32 v24, s59, v8")
    a("s_lshl_b32 s59, s54, 4")
    a("v_add_u32 v25, s59, v9")
    a(f"s_mul_i32 s59, s56, {SLOT}")
    a("s_lshl_b32 s60, s53, 5")
    a("s_sub_u32 s59, s59, s60")
    a("s_lshl_b32 s60, s3, 8")
    a("s_sub_u32 s59, s59, s60")
    a("s_add_u32 s59, s59, 768")
    a("v_add_u32 v26, s59, v8")
    a("s_lshl_b32 s59, s56, 4")
    a("s_mul_i32 s60, s3, 192")
    a("s_sub_u32 s59, s59, s60")
    a("s_add_u32 s59, s59, 576")
    a("v_add_u32 v27, s59, v9")
    a("s_mul_i32 s16, s6, 5")
    a("s_add_u32 s17, s16, 4")
    a("s_add_u32 s16, s16, s3")
    a("s_lshl_b32 s18, s3, 10")
    a(f"s_mul_i32 s19, s16, {20*1024}")
    a(f"s_mul_i32 s20, s17, {20*1024}")
    a("s_add_u32 s20, s20, s18")
    a("s_mul_i32 s21, s6, 12")
    a("s_lshl_b32 s22, s3, 1")
    a("s_add_u32 s22, s22, s21")
    a("s_add_u32 s23, s21, s3")
    a("s_add_u32 s23, s23, 8")
    a(f"s_mul_i32 s24, s22, {20*1024}")
    a(f"s_mul_i32 s25, s23, {20*1024}")
    a(f"s_mul_i32 s26, s16, {48*1024}")
    a(f"s_mul_i32 s27, s17, {48*1024}")
    a("s_lshr_b32 s28, s3, 1")
    a("s_mul_i32 s28, s28, 6")
    a("s_and_b32 s29, s3, 1")
    a("s_add_u32 s28, s28, s29")
    a("s_lshl_b32 s28, s28, 10")
    a("s_add_u32 s28, s28, s27")
    a("s_add_u32 s27, s27, s18")
    def w5(q0, wn):
        out = []
        for s in range(20): out.append(G.wl(q0 + s, 19, WS[wn][0] + s*1024))
        for m in range(5): out.append(G.wl(q0 + 20 + m, 20, WS[wn][0] + m*4096))
        return out
    def q3a(e): return 50 + e if e < 30 else e - 30
    def q3b(s): return 10 + s if s < 15 else 25 + (s - 15)
    def w3a(es):
        return [G.wl(q3a(e), 24, WS["WP3"][0] + ((e & 1)*20 + (e >> 1))*1024) for e in sorted(es, key=lambda e: (e & 1, e >> 1))]
    def w3b(ss): return [G.wl(q3b(s), 25, WS["WP3"][0] + s*1024) for s in ss]
    ord4 = [6*c + e for c in range(8) for e in range(4)] + [6*c + 4 + e for c in range(8) for e in range(2)]
    seq4 = []
    for m in range(12):
        seq4.append(("s", m))
        for e in range(4): seq4.append(("o", 4*m + e))
    q4 = {it: (30 + n if n < 50 else n - 50) for n, it in enumerate(seq4)}
    def w4(items):
        out = []
        for it in items:
            if it[0] == "o": out.append(G.wl(q4[it], 26, WS["WP4"][0] + ord4[it[1]]*1024))
            elif it[1] < 8: out.append(G.wl(q4[it], 27, WS["WP4"][0] + 6*it[1]*1024))
            else: out.append(G.wl(q4[it], 28, WS["WP4"][0] + (12*(it[1]-8) + 4)*1024))
        return out
    ACC, ACC2, FR = 28, 44, 60
    a("s_waitcnt lgkmcnt(0)")
    a("s_barrier")
    a.stamp(12)
    wl1 = w5(0, "WP1") + w5(25, "WP2")
    main = conv_steps([12, 13, 14, 15], 26, 27, ACC2, FR) + conv_steps(list(range(16)), 24, 25, ACC, FR)
    cut = int(len(main) * 0.85)
    main = main[:cut] + [(t, False) for t, _ in main[cut:]]
    merge(a, main, wl1)
    a.stamp(13)
    a("s_lshl_b32 s59, s3, 12")
    a(f"s_add_u32 s59, s59, {RED}")
    a("v_add_u32 v8, s59, v6")
    for nt in range(4):
        a(f"ds_write_b128 v8, v[{ACC2+4*nt}:{ACC2+4*nt+3}] offset:{1024*nt}")
    a("v_lshrrev_b32 v9, 1, v5")
    a("v_and_b32 v7, 1, v5")
    a("v_mul_u32_u24 v10, 48, v4")
    a("v_lshl_add_u32 v10, v7, 3, v10")
    a(f"v_mul_u32_u24 v11, {UPS}, v9")
    a("v_add_u32 v11, v11, v10")
    a(f"v_mul_u32_u24 v12, {XPS}, v9")
    a("v_add_u32 v12, v12, v10")
    UR, XR = FR, FR + 10
    def uxaddr(mt, pos, ntw):
        a(f"s_mul_i32 s59, s{mt}, {2*UPS}")
        a(f"s_lshl_b32 s60, s{pos}, 4")
        if ntw:
            a("s_mul_i32 s61, s3, 768")
            a("s_add_u32 s60, s60, s61")
        a("s_add_u32 s59, s59, s60")
        a("v_add_u32 v13, s59, v11")
        a(f"s_mul_i32 s59, s{mt}, {2*XPS}")
        a("s_add_u32 s59, s59, s60")
        a(f"s_add_u32 s59, s59, {XPL}")
        a("v_add_u32 v14, s59, v12")
    uxaddr(55, 54, False)
    for nt in range(4):
        a(f"ds_read_b64 v[{UR+2*nt}:{UR+2*nt+1}], v13 offset:{UPL + 768 + 768*nt}")
        a(f"ds_read_b64 v[{XR+2*nt}:{XR+2*nt+1}], v14 offset:{768*nt}")
    uxaddr(53, 56, True)
    a(f"ds_read_b64 v[{UR+8}:{UR+9}], v13 offset:{UPL + 768}")
    a(f"ds_read_b64 v[{XR+8}:{XR+9}], v14")
    a("v_lshlrev_b32 v11, 9, v5")
    a("v_lshl_add_u32 v11, v4, 3, v11")
    a("s_lshl_b32 s59, s57, 12")
    a("s_lshl_b32 s60, s55, 11")
    a("s_add_u32 s59, s59, s60")
    a(f"s_add_u32 s59, s59, 0x{WS['HT'][0]:x}")
    a(f"s_waitcnt vmcnt({len(wl1)}) lgkmcnt(0)")
    a("v_lshlrev_b32 v22, 16, v22")
    a("v_lshlrev_b32 v23, 16, v23")
    a("s_barrier")
    a("s_lshl_b32 s60, s3, 10")
    a(f"s_add_u32 s60, s60, {RED}")
    a("v_add_u32 v8, s60, v6")
    for w in range(4):
        a(f"ds_read_b128 v[{ACC2+4*w}:{ACC2+4*w+3}], v8 offset:{4096*w}")
    T = FR + 24
    for nt in range(4):
        conv_epi(a, ACC + 4*nt, UR + 2*nt, XR + 2*nt, 22, T, MASK)
        a(f"buffer_store_dwordx2 v[{ACC+4*nt}:{ACC+4*nt+1}], v11, s[8:11], s59 offen offset:{128*nt} sc1")
    a("s_waitcnt lgkmcnt(0)")
    for r in range(4):
        a(f"v_add_f32 v{ACC2+r}, v{ACC2+r}, v{ACC2+4+r}")
        a(f"v_add_f32 v{ACC2+8+r}, v{ACC2+8+r}, v{ACC2+12+r}")
    for r in range(4):
        a(f"v_add_f32 v{ACC2+r}, v{ACC2+r}, v{ACC2+8+r}")
    conv_epi(a, ACC2, UR + 8, XR + 8, 23, T, MASK)
    a("s_lshl_b32 s59, s58, 12")
    a("s_lshl_b32 s60, s53, 11")
    a("s_add_u32 s59, s59, s60")
    a("s_lshl_b32 s60, s3, 7")
    a("s_add_u32 s59, s59, s60")
    a(f"s_add_u32 s59, s59, 0x{WS['HT'][0]:x}")
    a(f"buffer_store_dwordx2 v[{ACC2}:{ACC2+1}], v11, s[8:11], s59 offen sc1")

    def publish(cnt_sgpr_code, waitn=0):
        a(f"s_waitcnt vmcnt({waitn})")
        a("s_barrier")
        l = a.newlabel("PUB")
        a("s_cmp_lg_u32 s3, 0")
        a(f"s_cbranch_scc1 {l}")
        a(cnt_sgpr_code)
        arrive(a, 56)
        a.label(l)
    def await_(setup):
        l = a.newlabel("AW")
        a("s_cmp_lg_u32 s3, 0")
        a(f"s_cbranch_scc1 {l}")
        a(setup)
        poll(a, 2, 3, 7)
        a.label(l)
        a("s_waitcnt vmcnt(0)")
        a("s_barrier")
    publish(f"s_lshl_b32 s56, s4, 8\ns_add_u32 s56, s56, {C_C*256}")
    a.stamp(14)
    from d_mlp import gen_mlp
    gen_mlp(a, G, dict(w3a=w3a, w3b=w3b, w4=w4, seq4=seq4, q4=q4, ord4=ord4, q3a=q3a, q3b=q3b, publish=publish, await_=await_))
    a.label("D_END")
    a.endk()
    a.label("D_EXIT")
    a("s_endpgm")
    a.label("D_CODE_END")
    return dict(name=name, grid=256, block=256, lds=LDS_TOTAL, vgpr=512, accum=256)
```

```python
from asmlib import *
from layout_d import *
from kg import rbf1, rbf2, gelu_regs, ln_apply_gelu, swap_pair, stats_calc, gelu_consts, MASK
import d as dd
from d import Q, SCR, STAT, merge, Rec, poll, arrive

VD, VT, VTH, VP = 8, 12, 16, 20
EX, CG, ACC, ACS, CSS, S1, S2, ONES, FR, T, O = 28, 52, 56, 72, 88, 104, 108, 112, 116, 164, 180
MF = "v_mfma_f32_16x16x32_bf16"

def gen_mlp(a, G, H):
    publish, await_ = H["publish"], H["await_"]
    ord4, q4, seq4 = H["ord4"], H["q4"], H["seq4"]

    def tile_sgpr(tl, shift, add=0):
        a(f"s_add_u32 s59, s3, {tl}")
        a("s_and_b32 s59, s59, 3")
        if shift: a(f"s_lshl_b32 s59, s59, {shift}")
        if add: a(f"s_add_u32 s59, s59, {add}")

    def rowaddr(dst, vtt, perm, ks):
        t0, t1 = T, T + 1
        if perm:
            a(f"v_and_b32 v{t0}, 1, v{vtt}")
            a(f"v_lshlrev_b32 v{t0}, 3, v{t0}")
            a(f"v_lshrrev_b32 v{t1}, 2, v4")
            a(f"v_lshl_add_u32 v{t0}, v{t1}, 1, v{t0}")
            a("s_lshl_b32 s59, s4, 4")
            a("s_lshr_b32 s60, s5, 1")
            a("s_add_u32 s59, s59, s60")
            a(f"v_add_u32 v{t0}, s59, v{t0}")
            a(f"v_mul_u32_u24 v{dst}, {ks*1024}, v{t0}")
            a(f"v_lshrrev_b32 v{t0}, 1, v{vtt}")
            a(f"v_lshlrev_b32 v{t0}, 2, v{t0}")
            a(f"v_and_b32 v{t1}, 3, v4")
            a(f"v_add_u32 v{t0}, v{t0}, v{t1}")
            a("s_and_b32 s59, s5, 1")
            a("s_lshl_b32 s59, s59, 3")
            a(f"v_add_u32 v{t0}, s59, v{t0}")
            a(f"v_lshl_add_u32 v{dst}, v{t0}, 4, v{dst}")
        else:
            a("s_lshl_b32 s59, s7, 2")
            a(f"v_add_u32 v{t0}, s59, v{vtt}")
            a(f"v_mul_u32_u24 v{dst}, {ks*1024}, v{t0}")
            a(f"v_lshl_add_u32 v{dst}, v4, 4, v{dst}")

    def out_addrs(perm, ks, base=VP, shared=True):
        tt = T + 2
        for pr in range(2):
            a(f"v_and_b32 v{tt}, 1, v5")
            a(f"s_add_u32 s61, s3, {2*pr}")
            a(f"v_add_u32 v{tt}, s61, v{tt}")
            a(f"v_and_b32 v{tt}, 3, v{tt}")
            rowaddr(base + pr, tt, perm, ks)
            a(f"v_lshrrev_b32 v{T}, 1, v5")
            a(f"v_lshl_add_u32 v{base+pr}, v{T}, 8, v{base+pr}")
        if shared:
            a(f"v_mov_b32 v{tt}, s3")
            rowaddr(23, tt, perm, ks)
            a(f"v_lshrrev_b32 v{T}, 1, v5")
            a(f"v_lshl_add_u32 v22, v{T}, 8, v23")
            a(f"v_and_b32 v{T}, 1, v5")
            a(f"v_lshl_add_u32 v22, v{T}, 3, v22")

    def frag_addrs(tr):
        if tr:
            a(f"v_bfe_u32 v{T}, v1, 2, 2")
            a(f"v_lshlrev_b32 v{T+1}, 3, v5")
            a(f"v_add_u32 v{T+1}, v{T+1}, v{T}")
            a(f"v_lshlrev_b32 v{T+1}, 7, v{T+1}")
            a(f"v_and_b32 v{T+2}, 3, v1")
            a(f"v_lshl_add_u32 v{T+1}, v{T+2}, 3, v{T+1}")
            a(f"v_lshrrev_b32 v{T}, 1, v{T}")
            a(f"v_and_b32 v{T+2}, 1, v5")
            a(f"v_lshl_or_b32 v{T}, v{T+2}, 1, v{T}")
            for tl in range(4):
                tile_sgpr(tl, 0)
                a(f"v_xor_b32 v{T+2}, s59, v{T}")
                a(f"v_lshl_add_u32 v{VT+tl}, v{T+2}, 5, v{T+1}")
        else:
            for tl in range(4):
                tile_sgpr(tl, 10)
                a(f"v_add_u32 v{VT+tl}, s59, v6")
        for tl in range(4):
            a(f"v_add_u32 v{VTH+tl}, 0x10000, v{VT+tl}")

    def reads(slot, p, tr):
        b = FR + 16 * (p % 3)
        off = slot * 4096
        va = VT
        if off >= 65536: off -= 65536; va = VTH
        out = []
        for tl in range(4):
            if tr:
                out.append(f"ds_read_b64_tr_b16 v[{b+4*tl}:{b+4*tl+1}], v{va+tl} offset:{off}\n"
                           f"ds_read_b64_tr_b16 v[{b+4*tl+2}:{b+4*tl+3}], v{va+tl} offset:{off+512}")
            else:
                out.append(f"ds_read_b128 v[{b+4*tl}:{b+4*tl+3}], v{va+tl} offset:{off}")
        return out

    def gphase(KS, P, NSLOT, dma, tr, mfmas, pre=None, hook=None):
        issued = []
        def do_dma(p):
            a(f"s_add_u32 m0, s18, {(p % NSLOT)*4096}")
            a(dma(p))
            issued.append(p)
        def wait_for(p):
            last = max(i for i, t in enumerate(issued) if t == p)
            a(f"s_waitcnt vmcnt({len(issued) - 1 - last})")
        for p in range(min(P, KS)): do_dma(p)
        if pre: issued.extend([-1] * pre())
        wait_for(1)
        a("s_barrier")
        for p in (0, 1):
            for r in reads(p % NSLOT, p, tr): a(r)
        nr = 8 if tr else 4
        for g in range(KS // 2):
            if g + 1 < KS // 2:
                wait_for(2 * g + 3)
                a("s_barrier")
            if hook: issued.extend([-1] * hook(g))
            for p in (2 * g + P, 2 * g + P + 1):
                if p < KS: do_dma(p)
            for p in (2 * g, 2 * g + 1):
                a(f"s_waitcnt lgkmcnt({nr if p + 1 < KS else 0})")
                pr = reads((p + 2) % NSLOT, p + 2, tr) if p + 2 < KS else []
                mfmas(p, FR + 16 * (p % 3), pr)

    def mfma5(qown, qsh, stats):
        def f(p, b, pr):
            for tl in range(4):
                c = "0" if p == 0 else f"v[{ACC+4*tl}:{ACC+4*tl+3}]"
                a(f"{MF} v[{ACC+4*tl}:{ACC+4*tl+3}], {Q(qown(p))}, v[{b+4*tl}:{b+4*tl+3}], {c}")
                if pr: a(pr[tl])
            if stats:
                c1 = "0" if p == 0 else f"v[{S1}:{S1+3}]"
                c2 = "0" if p == 0 else f"v[{S2}:{S2+3}]"
                a(f"{MF} v[{S1}:{S1+3}], v[{ONES}:{ONES+3}], v[{b}:{b+3}], {c1}")
                a(f"{MF} v[{S2}:{S2+3}], v[{b}:{b+3}], v[{b}:{b+3}], {c2}")
            lb = a.newlabel("SK")
            a(f"s_cmp_lg_u32 s3, {p & 3}")
            a(f"s_cbranch_scc1 {lb}")
            for tl in range(4):
                c = "0" if p < 4 else f"v[{ACS+4*tl}:{ACS+4*tl+3}]"
                a(f"{MF} v[{ACS+4*tl}:{ACS+4*tl+3}], {Q(qsh(p // 4))}, v[{b+4*tl}:{b+4*tl+3}], {c}")
            a.label(lb)
        return f

    def unpack(e, dst, src, n):
        for m in range(n):
            e(f"v_lshlrev_b32 v{dst+2*m}, 16, v{src+m}")
            e(f"v_and_b32 v{dst+2*m+1}, s{MASK}, v{src+m}")
    def addres(P, n, res):
        unpack(a, T, P, n)
        unpack(a, T + 8, res, n)
        for m in range(n):
            a(f"v_pk_add_f32 v[{T+2*m}:{T+2*m+1}], v[{T+2*m}:{T+2*m+1}], v[{T+8+2*m}:{T+8+2*m+1}]")
        for m in range(n):
            a(f"v_cvt_pk_bf16_f32 v{P+m}, v{T+2*m}, v{T+2*m+1}")

    def shared_write(with_cs):
        a("s_nop 7")
        for tl in range(4):
            tile_sgpr(tl, 12, SCR)
            a("s_add_u32 s59, s59, s18")
            a(f"v_add_u32 v2, s59, v6")
            a(f"ds_write_b128 v2, v[{ACS+4*tl}:{ACS+4*tl+3}]")
        if with_cs:
            a(f"s_add_u32 s59, s18, {SCR + 16384}")
            a("v_add_u32 v2, s59, v6")
            a(f"ds_write_b128 v2, v[{CSS}:{CSS+3}]")
    def shared_read(with_cs):
        a("s_lshl_b32 s59, s3, 12")
        a(f"s_add_u32 s59, s59, {SCR}")
        a("v_add_u32 v2, s59, v6")
        for w in range(4):
            a(f"ds_read_b128 v[{ACS+4*w}:{ACS+4*w+3}], v2 offset:{1024*w}")
        if with_cs:
            a(f"v_add_u32 v2, {SCR + 16384}, v6")
            for w in range(4):
                a(f"ds_read_b128 v[{CSS+4*w}:{CSS+4*w+3}], v2 offset:{1024*w}")
    def sum4(B):
        for r in (0, 2):
            a(f"v_pk_add_f32 v[{B+r}:{B+r+1}], v[{B+r}:{B+r+1}], v[{B+4+r}:{B+4+r+1}]")
            a(f"v_pk_add_f32 v[{B+8+r}:{B+8+r+1}], v[{B+8+r}:{B+8+r+1}], v[{B+12+r}:{B+12+r+1}]")
        for r in (0, 2):
            a(f"v_pk_add_f32 v[{B+r}:{B+r+1}], v[{B+r}:{B+r+1}], v[{B+8+r}:{B+8+r+1}]")
    def read_stats(AB, m1=None):
        for tl in range(4):
            tile_sgpr(tl, 8, STAT)
            a("v_lshl_add_u32 v2, v4, 4, s59")
            a(f"ds_read_b64 v[{AB+2*tl}:{AB+2*tl+1}], v2")
            if tl == 0 and m1 is not None:
                a(f"ds_read_b64 v[{m1}:{m1+1}], v2 offset:8")
    def extra_loads(arrs):
        n = 0
        for ai, arr in enumerate(arrs):
            b = EX + 12 * ai
            a(f"s_add_u32 s59, s30, 0x{WS[arr][0]:x}")
            a(f"buffer_load_dwordx4 v[{b}:{b+3}], v{VP}, s[8:11], s59 offen sc1")
            a(f"buffer_load_dwordx4 v[{b+4}:{b+7}], v{VP+1}, s[8:11], s59 offen sc1")
            a(f"s_add_u32 s59, s31, 0x{WS[arr][0]:x}")
            a(f"buffer_load_dwordx2 v[{b+8}:{b+9}], v22, s[8:11], s59 offen sc1")
            n += 3
        return n

    if a.diag: a("v_mov_b32 v191, 0")
    for t in H["w3a"](range(30)): a(t)
    a("s_lshl_b32 s30, s16, 9")
    a("s_lshl_b32 s31, s17, 9")
    for r in range(4): a(f"v_mov_b32 v{ONES+r}, 0x3f803f80")
    gelu_consts(a, CG)
    a(f"v_lshrrev_b32 v{T}, 3, v1")
    a("s_lshl_b32 s59, s3, 3")
    a(f"v_add_u32 v{T}, s59, v{T}")
    a(f"v_lshlrev_b32 v{VD}, 12, v{T}")
    a(f"v_bfe_u32 v{T}, v1, 4, 1")
    a("s_and_b32 s59, s3, 1")
    a("s_lshl_b32 s59, s59, 1")
    a(f"v_or_b32 v{T}, s59, v{T}")
    a(f"v_lshlrev_b32 v{T}, 1, v{T}")
    a(f"v_and_b32 v{T+1}, 7, v1")
    a(f"v_xor_b32 v{T}, v{T}, v{T+1}")
    a(f"v_lshrrev_b32 v{T+1}, 2, v{T}")
    a(f"v_lshl_add_u32 v{VD}, v{T+1}, 9, v{VD}")
    a(f"v_and_b32 v{T+1}, 3, v{T}")
    a(f"v_lshl_add_u32 v{VD}, v{T+1}, 4, v{VD}")
    a("s_lshl_b32 s52, s5, 10")
    a("s_lshl_b32 s59, s4, 6")
    a("s_add_u32 s52, s52, s59")
    frag_addrs(True)
    out_addrs(True, 20)
    for s in range(20):
        a(f"{MF} v[{EX}:{EX+3}], {Q(s)}, v[{ONES}:{ONES+3}], {'0' if s == 0 else f'v[{EX}:{EX+3}]'}")
    for m in range(5):
        a(f"{MF} v[{CSS}:{CSS+3}], {Q(20+m)}, v[{ONES}:{ONES+3}], {'0' if m == 0 else f'v[{CSS}:{CSS+3}]'}")
    await_(f"v_and_b32 v2, 7, v1\nv_lshlrev_b32 v2, 8, v2\nv_add_u32 v2, {C_C*256}, v2\nv_mov_b32 v3, 32")
    a.stamp(15)
    gphase(20, 10, 20,
           lambda p: f"s_add_u32 s59, s52, 0x{WS['HT'][0] + p*32*4096:x}\nbuffer_load_dwordx4 v{VD}, s[8:11], s59 offen sc1 lds",
           True, mfma5(lambda p: p, lambda m: 20 + m, True))
    a.stamp2(0)
    shared_write(True)
    a("s_lshl_b32 s59, s3, 8")
    a(f"s_add_u32 s59, s59, {STAT}")
    a("v_lshl_add_u32 v3, v4, 4, s59")
    stats_calc(a, S1, S2, 4, 5, T, True, 3)
    a("s_waitcnt lgkmcnt(0)")
    a("s_barrier")
    shared_read(True)
    AB, M1 = S1, ONES
    read_stats(AB, M1)
    a("s_lshl_b32 s59, s6, 12")
    a(f"v_add_u32 v2, s59, v{VT}")
    a(f"v_add_u32 v3, s59, v{VTH}")
    HR = FR
    a("s_waitcnt lgkmcnt(5)")
    for m in range(3):
        va, off = (2, 32768 * m) if m < 2 else (3, 0)
        a(f"ds_read_b64_tr_b16 v[{HR+4*m}:{HR+4*m+1}], v{va} offset:{off}")
        a(f"ds_read_b64_tr_b16 v[{HR+4*m+2}:{HR+4*m+3}], v{va} offset:{off+512}")
    sum4(ACS); sum4(CSS)
    a("s_waitcnt lgkmcnt(0)")
    a(f"s_add_u32 s59, s30, 0x{WS['H1F'][0]:x}")
    a(f"s_add_u32 s60, s31, 0x{WS['H1F'][0]:x}")
    for pr in range(2):
        P = O + 4 * pr
        for h in range(2):
            tl = 2 * pr + h
            ln_apply_gelu(a, ACC + 4 * tl, AB + 2 * tl, EX, T, CG, P + 2 * h)
        swap_pair(a, P)
        a(f"buffer_store_dwordx4 v[{P}:{P+3}], v{VP+pr}, s[8:11], s59 offen sc1")
    ln_apply_gelu(a, ACS, AB, CSS, T, CG, O + 8)
    a(f"buffer_store_dwordx2 v[{O+8}:{O+9}], v22, s[8:11], s60 offen sc1")
    a("v_lshl_add_u32 v2, v5, 8, v23")
    a("s_lshl_b32 s59, s6, 10")
    a(f"s_add_u32 s60, s59, 0x{WS['XBF'][0]:x}")
    a(f"s_add_u32 s59, s59, 0x{WS['HF'][0]:x}")
    for m in range(3):
        if m == 2:
            a("s_cmp_ge_u32 s6, 4")
            a("s_cbranch_scc1 G1_HX_DONE")
        Hh = HR + 4 * m
        a(f"buffer_store_dwordx4 v[{Hh}:{Hh+3}], v2, s[8:11], s59 offen sc1")
        unpack(a, T, Hh, 4)
        for p in range(0, 8, 2):
            a(f"v_pk_add_f32 v[{T+p}:{T+p+1}], v[{T+p}:{T+p+1}], v[{M1}:{M1+1}] op_sel_hi:[1,0] neg_lo:[0,1] neg_hi:[0,1]")
        for p in range(0, 8, 2):
            rbf2(a, T + p, T + p + 1, T + 8)
        for p in range(0, 8, 2):
            a(f"v_pk_mul_f32 v[{T+p}:{T+p+1}], v[{T+p}:{T+p+1}], v[{M1}:{M1+1}] op_sel:[0,1] op_sel_hi:[1,1]")
        XO = ACC + 4 * m
        for p in range(4):
            a(f"v_cvt_pk_bf16_f32 v{XO+p}, v{T+2*p}, v{T+2*p+1}")
        a(f"buffer_store_dwordx4 v[{XO}:{XO+3}], v2, s[8:11], s60 offen sc1")
        a("s_add_u32 s59, s59, 8192")
        a("s_add_u32 s60, s60, 8192")
    a.label("G1_HX_DONE")
    a.stamp2(1)
    publish(f"s_lshl_b32 s56, s4, 8\ns_add_u32 s56, s56, {C_G1*256}")
    a.stamp2(2)
    G.wstate = None
    for t in H["w3a"](range(30, 40)) + H["w3b"](range(15)): a(t)
    a("s_lshl_b32 s59, s7, 6")
    a("s_lshl_b32 s60, s3, 4")
    a("s_add_u32 s59, s59, s60")
    a(f"v_add_u32 v{T}, s59, v4")
    a(f"s_movk_i32 s60, {20*1024}")
    for gi, sh in enumerate((1, -1, 2, -2)):
        a(f"v_add_u32 v{T+1}, {-sh}, v{T}")
        a(f"v_ashrrev_i32 v{T+2}, 4, v{T+1}")
        a(f"v_mul_lo_u32 v{VD+gi}, v{T+2}, s60")
        a(f"v_and_b32 v{T+1}, 15, v{T+1}")
        a(f"v_lshl_add_u32 v{VD+gi}, v{T+1}, 4, v{VD+gi}")
        a(f"v_lshl_add_u32 v{VD+gi}, v5, 8, v{VD+gi}")
    srd(a, 12, 40, WS["H1F"][0], ACT)
    frag_addrs(False)
    out_addrs(False, 20)
    await_(f"""v_and_b32 v7, 3, v1
v_min_u32 v7, 2, v7
s_add_u32 s59, s4, {C_G1 - 1}
v_add_u32 v2, s59, v7
v_lshlrev_b32 v2, 8, v2
s_cmp_eq_u32 s7, 0
s_cselect_b32 s59, 0, 32
s_cmp_eq_u32 s5, 0
s_cselect_b32 s59, s59, 0
s_cmp_eq_u32 s7, 31
s_cselect_b32 s60, 0, 32
s_cmp_eq_u32 s5, 3
s_cselect_b32 s60, s60, 0
v_mov_b32 v3, 32
v_cmp_eq_u32 vcc, 0, v7
v_mov_b32 v{T}, s59
v_mov_b32 v{T+1}, s60
v_cndmask_b32 v3, v3, v{T}, vcc
v_cmp_eq_u32 vcc, 2, v7
s_nop 1
v_cndmask_b32 v3, v3, v{T+1}, vcc""")
    a.stamp2(3)
    gphase(20, 10, 20,
           lambda p: f"s_movk_i32 s59, {p*1024}\nbuffer_load_dwordx4 v{VD + p//5}, s[12:15], s59 offen sc1 lds",
           False, mfma5(lambda p: 25 + p, lambda m: 45 + m, False), pre=lambda: extra_loads(["XBF"]))
    a.stamp2(4)
    def epi5(res_list, final):
        shared_write(False)
        a("s_waitcnt lgkmcnt(0)")
        a("s_barrier")
        shared_read(False)
        a("s_waitcnt vmcnt(0)")
        for pr in range(2):
            P = O + 4 * pr
            for h in range(2):
                X = ACC + 4 * (2 * pr + h)
                a(f"v_cvt_pk_bf16_f32 v{P+2*h}, v{X}, v{X+1}")
                a(f"v_cvt_pk_bf16_f32 v{P+2*h+1}, v{X+2}, v{X+3}")
            swap_pair(a, P)
            for rb_ in res_list: addres(P, 4, rb_ + 4 * pr)
            if final: a(f"buffer_store_dwordx4 v[{P}:{P+3}], v{24+pr}, s[12:15], s59 offen")
            else: a(f"buffer_store_dwordx4 v[{P}:{P+3}], v{VP+pr}, s[8:11], s60 offen sc1")
        a("s_waitcnt lgkmcnt(0)")
        sum4(ACS)
        P = O + 8
        a(f"v_cvt_pk_bf16_f32 v{P}, v{ACS}, v{ACS+1}")
        a(f"v_cvt_pk_bf16_f32 v{P+1}, v{ACS+2}, v{ACS+3}")
        for rb_ in res_list: addres(P, 2, rb_ + 8)
        if final: a(f"buffer_store_dwordx2 v[{P}:{P+1}], v26, s[12:15], s61 offen")
        else: a(f"buffer_store_dwordx2 v[{P}:{P+1}], v22, s[8:11], s61 offen sc1")
    a(f"s_add_u32 s60, s30, 0x{WS['X1F'][0]:x}")
    a(f"s_add_u32 s61, s31, 0x{WS['X1F'][0]:x}")
    epi5([EX], False)
    a.stamp2(5)
    publish(f"s_lshl_b32 s56, s7, 8\ns_add_u32 s56, s56, {C_G2*256}")
    a.stamp2(6)
    G.wstate = None
    for t in H["w3b"](range(15, 20)): a(t)
    n4 = H["w4"](seq4[:20])
    for t in n4: a(t)
    VH = 24
    out_addrs(False, 48, base=VH, shared=False)
    for r in range(4): a(f"v_mov_b32 v{ONES+r}, 0x3f803f80")
    a("s_lshl_b32 s52, s7, 2")
    a("s_add_u32 s52, s52, s3")
    a(f"s_mul_i32 s53, s52, {48*1024}")
    a(f"s_mul_i32 s52, s52, {20*1024}")
    a(f"s_waitcnt vmcnt({len(n4)})")
    q3a, q3b = H["q3a"], H["q3b"]
    for s in range(20):
        for jj in range(3):
            qq = q3a(2 * s + jj) if jj < 2 else q3b(s)
            d = EX + 4 * jj
            a(f"{MF} v[{d}:{d+3}], {Q(qq)}, v[{ONES}:{ONES+3}], {'0' if s == 0 else f'v[{d}:{d+3}]'}")
    await_(f"s_lshl_b32 s59, s7, 8\ns_add_u32 s59, s59, {C_G2*256}\nv_mov_b32 v2, s59\nv_mov_b32 v3, 8")
    a.stamp2(7)
    def mf3(p, b, pr):
        for jj in range(2):
            for tl in range(4):
                d = ACC + 16 * jj + 4 * tl
                c = "0" if p == 0 else f"v[{d}:{d+3}]"
                a(f"{MF} v[{d}:{d+3}], {Q(q3a(2*p+jj))}, v[{b+4*tl}:{b+4*tl+3}], {c}")
                if pr and jj == 0: a(pr[tl])
        c1 = "0" if p == 0 else f"v[{S1}:{S1+3}]"
        c2 = "0" if p == 0 else f"v[{S2}:{S2+3}]"
        a(f"{MF} v[{S1}:{S1+3}], v[{ONES}:{ONES+3}], v[{b}:{b+3}], {c1}")
        a(f"{MF} v[{S2}:{S2+3}], v[{b}:{b+3}], v[{b}:{b+3}], {c2}")
    gphase(20, 10, 20,
           lambda p: f"s_add_u32 s59, s52, 0x{WS['X1F'][0] + p*1024:x}\nbuffer_load_dwordx4 v6, s[8:11], s59 offen sc1 lds",
           False, mf3)
    a.stamp2(8)
    a("s_lshl_b32 s59, s3, 8")
    a(f"s_add_u32 s59, s59, {STAT}")
    a("v_lshl_add_u32 v3, v4, 4, s59")
    for p in (0, 1):
        for r in reads(p, p, False): a(r)
    a("s_nop 2")
    stats_calc(a, S1, S2, 4, 5, T, False, 3)
    a("s_waitcnt lgkmcnt(0)")
    a("s_barrier")
    read_stats(AB)
    a("s_lshl_b32 s54, s22, 9")
    a(f"s_add_u32 s54, s54, 0x{WS['H3F'][0]:x}")
    a("s_lshl_b32 s55, s23, 9")
    a(f"s_add_u32 s55, s55, 0x{WS['H3F'][0]:x}")
    a("s_waitcnt lgkmcnt(0)")
    def epi3(e, jj):
        for pr in range(2):
            P = O + 4 * pr
            for h in range(2):
                tl = 2 * pr + h
                ln_apply_gelu(e, ACC + 16 * jj + 4 * tl, AB + 2 * tl, EX + 4 * jj, T, CG, P + 2 * h)
            swap_pair(e, P)
            if jj < 2: e(f"buffer_store_dwordx4 v[{P}:{P+3}], v{VH+pr}, s[8:11], s54 offen offset:{512*jj} sc1")
            else: e(f"buffer_store_dwordx4 v[{P}:{P+3}], v{VH+pr}, s[8:11], s55 offen sc1")
    rec = Rec(a)
    epi3(rec, 0); epi3(rec, 1)
    main = []
    for p in range(20):
        b = FR + 16 * (p % 3)
        main.append((f"s_waitcnt lgkmcnt({4 if p + 1 < 20 else 0})", False))
        pr = reads(p + 2, p + 2, False) if p + 2 < 20 else []
        for tl in range(4):
            d = ACC + 32 + 4 * tl
            c = "0" if p == 0 else f"v[{d}:{d+3}]"
            main.append((f"{MF} v[{d}:{d+3}], {Q(q3b(p))}, v[{b+4*tl}:{b+4*tl+3}], {c}", True))
            if pr: main.append((pr[tl], False))
    G.wstate = None
    n4b = H["w4"](seq4[20:])
    ex = []
    step = (len(rec.l) - 10) // 20
    for i, t in enumerate(rec.l):
        ex.append(t)
        if i % step == 0 and i // step < 20: ex.append(n4b[i // step])
    merge(a, main, ex)
    a.stamp2(9)
    a("s_nop 3")
    rec = Rec(a)
    epi3(rec, 2)
    half = len(rec.l) // 3
    first = n4b[20:32]
    merge(a, [(t, True) for t in rec.l[:half]], first)
    publish(f"s_lshl_b32 s56, s7, 8\ns_add_u32 s56, s56, {C_G3A*256}", waitn=len(first))
    for t in rec.l[half:]: a(t)
    a.stamp2(10)
    publish(f"s_lshl_b32 s56, s7, 8\ns_add_u32 s56, s56, {C_G3B*256}")
    a.stamp2(11)
    for pr in range(2):
        a(f"v_and_b32 v{T}, 1, v5")
        a(f"s_add_u32 s61, s3, {2*pr}")
        a(f"v_add_u32 v{T}, s61, v{T}")
        a(f"v_and_b32 v{T}, 3, v{T}")
        a("s_lshl_b32 s59, s7, 6")
        a(f"v_lshl_add_u32 v{T}, v{T}, 4, v4")
        a(f"v_add_u32 v{T}, s59, v{T}")
        a(f"v_mul_u32_u24 v{24+pr}, 1280, v{T}")
        a(f"v_lshrrev_b32 v{T}, 1, v5")
        a(f"v_lshl_add_u32 v{24+pr}, v{T}, 4, v{24+pr}")
    a("s_lshl_b32 s59, s7, 6")
    a("s_lshl_b32 s60, s3, 4")
    a("s_add_u32 s59, s59, s60")
    a(f"v_add_u32 v{T}, s59, v4")
    a(f"v_mul_u32_u24 v26, 1280, v{T}")
    a("v_lshl_add_u32 v26, v5, 3, v26")
    srd(a, 12, 48, 0, ACT)
    await_(f"s_lshl_b32 s59, s7, 8\ns_add_u32 s59, s59, {C_G3A*256}\nv_mov_b32 v2, s59\nv_mov_b32 v3, 8")
    a.stamp2(12)
    a("s_lshl_b32 s59, s7, 8")
    a(f"s_add_u32 s59, s59, {C_G3B*256}")
    a("v_mov_b32 v2, s59")
    a("v_mov_b32 v3, 8")
    def hook4(g):
        if g < 4:
            a(n4b[32 + 2*g]); a(n4b[33 + 2*g])
            return 2
        if g == 7:
            a("buffer_load_dword v7, v2, s[8:11], 0 offen sc1")
            return 1
        if g == 11:
            l = a.newlabel("L4OK")
            a("v_cmp_ge_u32 vcc, v7, v3")
            a("s_cmp_eq_u64 vcc, -1")
            a(f"s_cbranch_scc1 {l}")
            poll(a, 2, 3, 7)
            a.label(l)
        if g == 19:
            return extra_loads(["X1F", "HF"])
        return 0
    gphase(48, 10, 16,
           lambda p: f"s_add_u32 s59, s53, 0x{WS['H3F'][0] + ord4[p]*1024:x}\nbuffer_load_dwordx4 v6, s[8:11], s59 offen sc1 lds",
           False, mfma5(lambda p: q4[("o", p)], lambda m: q4[("s", m)], False), hook=hook4)
    a.stamp2(13)
    a("s_lshl_b32 s61, s17, 5")
    a("s_lshl_b32 s60, s16, 5")
    class _A: pass
    shared_write(False)
    a("s_waitcnt lgkmcnt(0)")
    a("s_barrier")
    shared_read(False)
    a("s_waitcnt vmcnt(0)")
    for pr in range(2):
        P = O + 4 * pr
        for h in range(2):
            X = ACC + 4 * (2 * pr + h)
            a(f"v_cvt_pk_bf16_f32 v{P+2*h}, v{X}, v{X+1}")
            a(f"v_cvt_pk_bf16_f32 v{P+2*h+1}, v{X+2}, v{X+3}")
        swap_pair(a, P)
        addres(P, 4, EX + 4 * pr)
        addres(P, 4, EX + 12 + 4 * pr)
        a(f"buffer_store_dwordx4 v[{P}:{P+3}], v{24+pr}, s[12:15], s60 offen")
    a("s_waitcnt lgkmcnt(0)")
    sum4(ACS)
    P = O + 8
    a(f"v_cvt_pk_bf16_f32 v{P}, v{ACS}, v{ACS+1}")
    a(f"v_cvt_pk_bf16_f32 v{P+1}, v{ACS+2}, v{ACS+3}")
    addres(P, 2, EX + 8)
    addres(P, 2, EX + 12 + 8)
    a(f"buffer_store_dwordx2 v[{P}:{P+1}], v26, s[12:15], s61 offen")
```

```python
L, D, N, F = 2048, 640, 192, 1536
def _al(x, a=4096): return (x + a - 1) // a * a
_off = 0
WS = {}
def _alloc(name, size):
    global _off
    WS[name] = (_off, size)
    _off = _al(_off + size)
ACT = L * D * 2
_alloc("CNT", 128 * 256)
_alloc("U2", ACT)
_alloc("X2", ACT)
_alloc("HT", ACT)
_alloc("WP1", D * D * 2)
_alloc("WP2", D * D * 2)
_alloc("WP3", D * F * 2)
_alloc("WP4", D * F * 2)
_alloc("HF", ACT)
_alloc("XBF", ACT)
_alloc("H1F", ACT)
_alloc("X1F", ACT)
_alloc("H3F", L * F * 2)
WS_TOTAL = _off
C_A, C_B, C_C, C_G1, C_G2, C_G3A, C_G3B = 0, 8, 16, 24, 32, 64, 96
if __name__ == "__main__":
    for k, v in WS.items(): print(k, hex(v[0]), v[1])
    print(hex(WS_TOTAL))
```

```python
import sys
from asmlib import *
import d
NAME = "sequential_preLN__ssm_conv_s4__mixer_s_mlp__prompt"
def build(diag=False):
    a = Asm()
    a.diag = diag; a.big = True
    k = d.gen_d(a, NAME + "_kernel")
    ref = open(f"cdna_kernels/{NAME}.s.ref").read().split("\n")
    head = [l for l in ref if l.startswith(";") and "@launch" not in l]
    out = "\n".join(head) + "\n"
    out += f"; @launch grid=({k['grid']},1,1) block=({k['block']},1,1) lds={k['lds']}\n"
    out += '.amdgcn_target "amdgcn-amd-amdhsa--gfx950"\n.text\n'
    out += a.text()
    out += '.section .rodata,"a"\n.p2align 6\n' + kernel_desc(k["name"], k["vgpr"], k["accum"])
    return out
if __name__ == "__main__":
    open("d.s", "w").write(build())
    open("d_diag.s", "w").write(build(True))
    import kg
    kg.PREROUND = False
    open("d_nr.s", "w").write(build())
```

```python
from asmlib import *
from layout_d import *
import math
from kg import rbf1, rbf2, MASK
from k2 import conv_epi
LOG2E = 1.4426950408889634
SPIN = 20000
MF = "v_mfma_f32_16x16x32_bf16"

KC = 4160
SLOT = 4 * KC
LN_ROW = 1344
LN_U, LN_X = 0, 8 * LN_ROW
PK = 129024
UPL = 3 * SLOT
UPS = 3840
XPL = UPL + 4 * UPS
XPS = 3072
KGT = XPL + 4 * XPS
KG_LANE = 240
KG_WAVE = 64 * KG_LANE
TT = KGT + 3 * KG_WAVE
TTS = 1664
RED = KGT
LFLAG = 128768
LDS_TOTAL = 163840
STAT = 81920
WSH = 98304

def Q(q):
    return f"a[{4*q}:{4*q+3}]" if q < 64 else f"v[{192+4*(q-64)}:{192+4*(q-64)+3}]"

class Gen:
    def __init__(self, a):
        self.a = a
        self.wstate = None
    def wl(self, q, base, const):
        out = []
        hi = const >> 12
        if self.wstate != (base, hi):
            out.append(f"s_add_u32 s62, s{base}, {hi << 12}")
            self.wstate = (base, hi)
        out.append(f"buffer_load_dwordx4 {Q(q)}, v6, s[8:11], s62 offen offset:{const & 4095}")
        return "\n".join(out)

def arrive(a, soff, va=2, vb=3):
    a(f"v_mov_b32 v{va}, 0")
    a(f"v_mov_b32 v{vb}, 1")
    a("s_mov_b64 exec, 1")
    a(f"buffer_atomic_add v{vb}, v{va}, s[8:11], s{soff} offen sc1")
    a("s_mov_b64 exec, -1")

def arrive2_issue(a, cnt, vr):
    a("s_lshl_b32 s60, s4, 8")
    if cnt: a(f"s_add_u32 s60, s60, {cnt*256}")
    a("v_mov_b32 v2, 0")
    a(f"v_mov_b32 v{vr}, 1")
    a("s_mov_b64 exec, 1")
    a(f"buffer_atomic_add v{vr}, v2, s[8:11], s60 offen sc0 sc1")
    a("s_mov_b64 exec, -1")

def arrive2_finish(a, rep, vr):
    l = a.newlabel("NOTLAST")
    a(f"v_readfirstlane_b32 s60, v{vr}")
    a("s_nop 3")
    a("s_cmp_lg_u32 s60, 31")
    a(f"s_cbranch_scc1 {l}")
    a("v_mov_b32 v3, 1")
    a(f"s_mov_b32 s60, {rep*256}")
    a("s_mov_b64 exec, 0xff")
    a("buffer_atomic_add v3, v99, s[8:11], s60 offen sc1")
    a("s_mov_b64 exec, -1")
    a.label(l)

def rep_addr(a, rep, voff, vthr):
    a("s_lshl_b32 s60, s4, 8")
    a(f"s_add_u32 s60, s60, {rep*256}")
    a(f"v_mov_b32 v{voff}, s60")
    a(f"v_mov_b32 v{vthr}, 8")

def poll(a, voff, vthr, vv, srd="s[8:11]", pre_loaded=False):
    l, d = a.newlabel("POLL"), a.newlabel("POLLD")
    if pre_loaded:
        a(f"v_cmp_ge_u32 vcc, v{vv}, v{vthr}")
        a("s_cmp_eq_u64 vcc, -1")
        a(f"s_cbranch_scc1 {d}")
    a(f"s_mov_b32 s63, {SPIN}")
    a.label(l)
    a(f"buffer_load_dword v{vv}, v{voff}, {srd}, 0 offen sc1")
    a("s_waitcnt vmcnt(0)")
    a(f"v_cmp_ge_u32 vcc, v{vv}, v{vthr}")
    a("s_cmp_eq_u64 vcc, -1")
    a(f"s_cbranch_scc1 {d}")
    a("s_sleep 2")
    a("s_sub_u32 s63, s63, 1")
    a("s_cmp_lg_u32 s63, 0")
    a(f"s_cbranch_scc1 {l}")
    a.label(d)

def red32_1(a, ra, ta):
    a("s_nop 1")
    for ctrl in ("quad_perm:[1,0,3,2]", "quad_perm:[2,3,0,1]", "row_half_mirror", "row_mirror"):
        a(f"v_add_f32_dpp v{ra}, v{ra}, v{ra} {ctrl} row_mask:0xf bank_mask:0xf")
        a("s_nop 1")
    a(f"v_mov_b32 v{ta}, v{ra}")
    a("s_nop 1")
    a(f"v_permlane16_swap_b32 v{ra}, v{ta}")
    a("s_nop 0")
    a(f"v_add_f32 v{ra}, v{ra}, v{ta}")

def pack_decode(a):
    a("s_mov_b32 s68, s32\ns_mov_b32 s69, s33")
    a(f"s_mov_b32 s70, {D*D*2}\ns_mov_b32 s71, 0x00020000")
    a("s_movk_i32 s65, 1280\ns_movk_i32 s97, 10")
    a(f"s_mov_b32 s98, 0x{(2**32+9)//10:x}\ns_movk_i32 s96, {20*1024}")
    a(f"s_mov_b32 s67, 0x{WS['WP1'][0]:x}\ns_mov_b32 s99, 0")
    a("s_cmp_ge_u32 s64, 200")
    a("s_cselect_b32 s68, s34, s68\ns_cselect_b32 s69, s35, s69")
    a(f"s_cselect_b32 s67, 0x{WS['WP2'][0]:x}, s67\ns_cselect_b32 s99, 200, s99")
    a("s_cmp_ge_u32 s64, 400")
    a("s_cselect_b32 s68, s36, s68\ns_cselect_b32 s69, s37, s69")
    a(f"s_cselect_b32 s67, 0x{WS['WP3'][0]:x}, s67\ns_cselect_b32 s99, 400, s99")
    a(f"s_cselect_b32 s70, {D*F*2}, s70\ns_cselect_b32 s65, 3072, s65\ns_cselect_b32 s97, 24, s97")
    a(f"s_cselect_b32 s98, 0x{(2**32+23)//24:x}, s98")
    a("s_cmp_ge_u32 s64, 880")
    a("s_cselect_b32 s68, s38, s68\ns_cselect_b32 s69, s39, s69")
    a(f"s_cselect_b32 s67, 0x{WS['WP4'][0]:x}, s67\ns_cselect_b32 s99, 880, s99")
    a(f"s_cselect_b32 s65, 1280, s65\ns_cselect_b32 s97, 10, s97")
    a(f"s_cselect_b32 s98, 0x{(2**32+9)//10:x}, s98\ns_cselect_b32 s96, {48*1024}, s96")
    a("s_sub_u32 s99, s64, s99")
    a("s_mul_hi_u32 s100, s99, s98")
    a("s_mul_i32 s101, s100, s97")
    a("s_sub_u32 s101, s99, s101")
    a("s_mul_i32 s66, s100, s65")
    a("s_lshl_b32 s66, s66, 5")
    a("s_lshl_b32 s99, s101, 7")
    a("s_add_u32 s66, s66, s99")
    a("s_mul_i32 s99, s101, s96")
    a("s_lshl_b32 s99, s99, 2")
    a("s_add_u32 s67, s67, s99")
    a("s_lshl_b32 s99, s100, 10")
    a("s_add_u32 s67, s67, s99")

def pack_issue(a, lds_s, guard=False):
    pack_decode(a)
    if guard:
        a("s_cmp_ge_u32 s64, 1360")
        a("s_cselect_b32 s70, 0, s70")
        a("s_cselect_b32 s67, 0x7ff00000, s67")
    a("v_lshrrev_b32 v2, 3, v1")
    a("v_mul_lo_u32 v2, v2, s65")
    a("v_and_b32 v3, 7, v1")
    a("v_lshl_add_u32 v2, v3, 4, v2")
    a("s_lshl_b32 s99, s65, 3")
    for m in range(4):
        a(f"s_add_u32 m0, s{lds_s}, {m*1024}")
        a("s_add_u32 s66, s66, s99" if m else "s_nop 0")
        a("buffer_load_dwordx4 v2, s[68:71], s66 offen lds")

def pack_finish(a, vaddr, off, R, sdst, sks):
    for jj in range(4):
        for h in range(2):
            a(f"ds_read_b64_tr_b16 v[{R+4*jj+2*h}:{R+4*jj+2*h+1}], v{vaddr} offset:{off + h*512 + jj*32}")
    for jj in range(4):
        a(f"s_waitcnt lgkmcnt({6-2*jj})")
        a(f"buffer_store_dwordx4 v[{R+4*jj}:{R+4*jj+3}], v6, s[8:11], s{sdst} offen sc1")
        if jj < 3: a(f"s_add_u32 s{sdst}, s{sdst}, s{sks}")

def l2_prefetch(a, start, size, vt, vd, nw=4):
    lines = size // 128
    per_wave = (lines + 32*nw - 1) // (32*nw)
    n = (per_wave + 63) // 64
    out = []
    out.append("s_lshr_b32 s59, s2, 3")
    out.append(f"s_mul_i32 s59, s59, {nw}")
    out.append("s_add_u32 s59, s59, s3")
    out.append(f"s_mul_i32 s59, s59, {per_wave*128}")
    out.append(f"s_add_u32 s59, s59, 0x{start:x}")
    for t in out: a(t)
    for m in range(n):
        a(f"v_add_u32 v{vt}, {64*m}, v1")
        a(f"v_min_u32 v{vt}, {per_wave-1}, v{vt}")
        a(f"v_lshlrev_b32 v{vt}, 7, v{vt}")
        a(f"buffer_load_dword v{vd}, v{vt}, s[8:11], s59 offen")
    return n

class Rec:
    def __init__(self, a): self.l = []; self.a = a
    def __call__(self, s):
        for ln in s.strip("\n").split("\n"): self.l.append(ln.strip())
    def newlabel(self, p): return self.a.newlabel(p)

def conv_loop(a, units, FR, extra, hook=None):
    def loads(i):
        d0, vA, vB, ACC, first = units[i]
        base = FR + 32 * (i & 1)
        def lb(c): return f"ds_read_b128 v[{base+16+4*c}:{base+16+4*c+3}], v{vB} offset:{48*(15-d0) + 768*c}"
        def la(q):
            o = 64 * (15 - d0) + 1024 * (3 - q)
            return (f"ds_read_b64 v[{base+4*q}:{base+4*q+1}], v{vA} offset:{o}\n"
                    f"ds_read_b64 v[{base+4*q+2}:{base+4*q+3}], v{vA} offset:{o+8}")
        return [la(0), lb(0) + "\n" + lb(1), lb(2) + "\n" + lb(3), la(1), la(2), la(3)]
    for f in loads(0): a(f)
    a("s_waitcnt lgkmcnt(4)")
    n = len(units)
    order = [(q, c) for q in range(4) for c in range(q, 4)]
    for i in range(n):
        d0, vA, vB, ACC, first = units[i]
        base = FR + 32 * (i & 1)
        if hook: hook(i)
        nx = loads(i + 1) if i + 1 < n else None
        def X():
            if extra and extra[0][0] <= i: a(extra.pop(0)[1])
        for k, (q, c) in enumerate(order):
            cc = "0" if (first and q == 0) else f"v[{ACC+4*c}:{ACC+4*c+3}]"
            a(f"{MF} v[{ACC+4*c}:{ACC+4*c+3}], v[{base+4*q}:{base+4*q+3}], v[{base+16+4*(c-q)}:{base+16+4*(c-q)+3}], {cc}")
            if k in (0, 1, 2, 3) and nx: a(nx[k])
            if k == 4: X()
            if k == 5 and nx: a(nx[4])
            if k == 6:
                a(f"s_waitcnt lgkmcnt({10 if nx else 0})")
            if k == 7 and nx: a(nx[5])
            if k == 8: X()
            if k == 9 and nx: a("s_waitcnt lgkmcnt(4)")

def gen_d(a, name):
    G = Gen(a)
    kernel_begin(a, name)
    a("s_cmp_ge_u32 s2, 256")
    a("s_cbranch_scc1 D_EXIT")
    a.start()
    a("s_load_dwordx16 s[16:31], s[0:1], 0")
    a("s_load_dwordx2 s[40:41], s[0:1], 128")
    a("s_load_dwordx8 s[32:39], s[0:1], 80")
    a("s_load_dwordx2 s[46:47], s[0:1], 64")
    a("s_load_dwordx4 s[48:51], s[0:1], 112")
    a("s_getpc_b64 s[64:65]")
    a.label("D_PC")
    a("v_and_b32 v1, 63, v0")
    a("v_lshrrev_b32 v2, 6, v0")
    a(f"s_mov_b32 s{MASK}, 0xffff0000")
    a("v_readfirstlane_b32 s3, v2")
    a("s_and_b32 s4, s2, 7")
    a("s_lshr_b32 s5, s2, 6")
    a("s_lshr_b32 s6, s2, 3")
    a("s_lshl_b32 s52, s4, 5")
    a("s_add_u32 s52, s52, s6")
    a("s_and_b32 s6, s6, 7")
    a("s_lshl_b32 s7, s4, 2")
    a("s_add_u32 s7, s7, s5")
    a("s_and_b32 s53, s52, 1")
    a("s_lshr_b32 s52, s52, 1")
    a("s_mul_i32 s52, s52, 5")
    a("s_lshl_b32 s54, s53, 1")
    a("s_add_u32 s52, s52, s54")
    a("s_and_b32 s54, s2, 63")
    a("s_lshl_b32 s54, s54, 5")
    a("s_lshl_b32 s55, s5, 3")
    a("s_add_u32 s54, s54, s55")
    a("v_lshrrev_b32 v7, 5, v0")
    a("v_and_b32 v8, 31, v0")
    a("v_add_u32 v9, s54, v7")
    a("v_mul_u32_u24 v9, 1280, v9")
    a("v_lshl_add_u32 v9, v8, 3, v9")
    a("s_add_u32 s54, s52, s3")
    a("s_mul_i32 s55, s54, 384")
    a("v_lshl_add_u32 v10, v1, 1, s55")
    a("s_lshl_b32 s55, s54, 1")
    a("v_mov_b32 v11, s55")
    a("s_waitcnt lgkmcnt(0)")
    a.stamp(4)
    XA, FA = 12, 22
    srd(a, 8, 40, 0, WS_TOTAL)
    a("s_cmp_lg_u32 s3, 3")
    a("s_cbranch_scc1 D_NOINIT")
    a("s_cmp_ge_u32 s2, 13")
    a("s_cbranch_scc1 D_NOINIT")
    a("v_lshrrev_b32 v2, 3, v1")
    a("v_lshlrev_b32 v2, 8, v2")
    a("v_and_b32 v3, 7, v1")
    a("v_lshl_add_u32 v2, v3, 4, v2")
    for r in range(4): a(f"v_mov_b32 v{44+r}, 0")
    a("s_lshl_b32 s59, s2, 12")
    a("buffer_store_dwordx4 v[44:47], v2, s[8:11], s59 offen sc1")
    a("buffer_store_dwordx4 v[44:47], v2, s[8:11], s59 offen offset:2048 sc1")
    a.label("D_NOINIT")
    for i in range(5):
        a(f"global_load_dwordx2 v[{XA+2*i}:{XA+2*i+1}], v9, s[16:17] offset:{256*i}")
    a("s_barrier")
    PR = 100
    a("s_cmp_eq_u32 s3, 3")
    a("s_cbranch_scc1 D_W3_ISSUE")
    a(f"global_load_ushort v{PR+18}, v11, s[30:31]")
    for p in range(3):
        for i in range(6):
            a(f"global_load_ushort v{PR+6*p+i}, v10, s[{18+2*i}:{19+2*i}] offset:{128*p}")
    a("s_lshl_b32 s64, s3, 8")
    a("s_add_u32 s64, s64, s2")
    a("s_cmp_lt_u32 s64, 400")
    a("s_cselect_b32 s43, 1, 0")
    a("s_cbranch_scc0 D_ISSUED")
    a("s_lshl_b32 s61, s3, 13")
    a(f"s_add_u32 s61, s61, {PK}")
    pack_issue(a, 61)
    a("s_mov_b32 s31, s67")
    a("s_mov_b32 s30, s96")
    a("s_branch D_ISSUED")
    a.label("D_W3_ISSUE")
    a("s_cmp_lg_u32 s2, 0")
    a("s_cbranch_scc1 D_W3_PF")
    a("s_waitcnt vmcnt(5)")
    a("v_mov_b32 v2, 1")
    a("v_mov_b32 v3, 0")
    a("global_store_dword v3, v2, s[50:51] sc1")
    a.stamp(15)
    a("s_branch D_ISSUED")
    a.label("D_W3_PF")
    a("s_lshr_b32 s59, s2, 3")
    a("s_sub_u32 s59, s59, 1")
    a("s_cmp_lt_u32 s59, 6")
    a("s_cselect_b32 s60, 7, 0")
    a("s_cselect_b32 s59, s59, 0")
    a("s_lshl_b32 s59, s59, 13")
    a("v_lshlrev_b32 v2, s60, v1")
    a("v_and_b32 v2, 0xffffff80, v2")
    a("v_add_u32 v2, s59, v2")
    a("v_min_u32 v2, D_CODE_END-D_PC-4, v2")
    a("global_load_dword v250, v2, s[64:65]")
    a.label("D_ISSUED")
    a("v_and_b32 v4, 15, v1")
    a("v_lshrrev_b32 v5, 4, v1")
    a("v_lshlrev_b32 v6, 4, v1")
    a(f"v_mul_u32_u24 v9, {LN_ROW}, v7")
    a("v_lshl_add_u32 v9, v8, 3, v9")
    a("v_mul_u32_u24 v2, 1366, v0")
    a("v_lshrrev_b32 v2, 16, v2")
    a("v_mul_u32_u24 v3, 48, v2")
    a("v_sub_u32 v3, v0, v3")
    a(f"v_mul_u32_u24 v2, {UPS}, v2")
    a("v_lshl_add_u32 v2, v3, 4, v2")
    for r in range(4): a(f"v_mov_b32 v{44+r}, 0")
    a("v_cmp_gt_u32 vcc, 192, v0")
    a("s_and_saveexec_b64 s[44:45], vcc")
    a(f"ds_write_b128 v2, v[44:47] offset:{UPL}")
    a("s_mov_b64 exec, s[44:45]")
    a("s_min_u32 s55, s3, 2")
    a(f"s_mul_i32 s55, s55, {TTS}")
    a(f"s_add_u32 s55, s55, {TT}")
    a("v_and_b32 v2, 3, v1")
    a("v_lshl_add_u32 v2, v2, 4, s55")
    a("ds_write_b128 v2, v[44:47]")
    a(f"v_mov_b32 v90, {LFLAG}")
    a("ds_write_b32 v90, v44")
    GA = 120
    TB0 = TT + 64
    code128 = f2u(128.0) >> 16
    a("v_lshlrev_b32 v2, 3, v0")
    a("v_sub_u32 v2, 2047, v2")
    a("v_cvt_f32_i32 v42, v2")
    a("v_cmp_gt_i32 vcc, 256, v2")
    a("v_lshlrev_b32 v2, 1, v2")
    a(f"v_add_u32 v2, {TB0}, v2")
    a(f"s_mov_b32 s55, {(TB0 + 2*(128 - code128)) & 0xffffffff}")
    for i in range(0, 11, 2):
        a(f"v_add_f32 v43, {fhex(-float(i))}, v42")
        a(f"v_add_f32 v44, {fhex(-float(i+1))}, v42")
        a("v_cvt_pk_bf16_f32 v45, v43, v44")
        for k in range(2):
            if i + k > 10: continue
            a("v_and_b32 v43, 0xffff, v45" if k == 0 else "v_lshrrev_b32 v43, 16, v45")
            a("v_lshl_add_u32 v43, v43, 1, s55")
            a(f"v_add_u32 v44, {-2*(i+k)}, v2" if (i + k) else "v_mov_b32 v44, v2")
            a(f"v_cndmask_b32 v{GA+i+k}, v43, v44, vcc")
    VA, VB, VA2, VB2 = 92, 93, 94, 95
    a("s_lshr_b32 s54, s3, 1")
    a("s_add_u32 s54, s54, s53")
    a("s_and_b32 s55, s3, 1")
    a("s_lshl_b32 s56, s53, 1")
    a("s_sub_u32 s56, 2, s56")
    a("s_add_u32 s57, s52, s54")
    a("s_add_u32 s58, s52, s56")
    a("v_sub_u32 v2, 3, v4")
    a("v_and_b32 v2, 3, v2")
    a(f"v_mul_u32_u24 v2, {KC}, v2")
    a("v_lshl_add_u32 v2, v5, 4, v2")
    a("v_lshrrev_b32 v3, 2, v4")
    a("v_lshlrev_b32 v3, 3, v3")
    a("v_sub_u32 v2, v2, v3")
    a(f"v_add_u32 v2, {2*2044 - 64*15 - 1024*3}, v2")
    a(f"v_mul_u32_u24 v3, {UPS}, v5")
    a("v_mul_u32_u24 v42, 48, v4")
    a("v_add_u32 v3, v3, v42")
    a(f"v_add_u32 v3, {UPL + 768 - 48*15}, v3")
    a(f"s_mul_i32 s59, s54, {SLOT}")
    a("s_lshl_b32 s60, s55, 5")
    a("s_sub_u32 s59, s59, s60")
    a(f"v_add_u32 v{VA}, s59, v2")
    a("s_lshl_b32 s59, s54, 4")
    a(f"v_add_u32 v{VB}, s59, v3")
    a(f"s_mul_i32 s59, s56, {SLOT}")
    a("s_lshl_b32 s60, s53, 5")
    a("s_sub_u32 s59, s59, s60")
    a("s_lshl_b32 s60, s3, 8")
    a("s_sub_u32 s59, s59, s60")
    a("s_add_u32 s59, s59, 768")
    a(f"v_add_u32 v{VA2}, s59, v2")
    a("s_lshl_b32 s59, s56, 4")
    a("s_mul_i32 s60, s3, 192")
    a("s_sub_u32 s59, s59, s60")
    a("s_add_u32 s59, s59, 576")
    a(f"v_add_u32 v{VB2}, s59, v3")
    VUX = 96
    for m in range(3):
        a(f"v_add_u32 v2, {64*m}, v1")
        a("v_mul_u32_u24 v3, 21846, v2")
        a("v_lshrrev_b32 v3, 16, v3")
        a("v_mul_u32_u24 v42, 3, v3")
        a("v_sub_u32 v2, v2, v42")
        a("v_add_u32 v2, s52, v2")
        a(f"v_mul_u32_u24 v{VUX+m}, 10240, v3")
        a(f"v_lshl_add_u32 v{VUX+m}, v2, 4, v{VUX+m}")
    a("v_lshlrev_b32 v91, 10, v5")
    a("v_bfe_u32 v2, v1, 2, 2")
    a("v_lshl_add_u32 v91, v2, 7, v91")
    a("v_and_b32 v2, 3, v1")
    a("v_lshl_add_u32 v91, v2, 3, v91")
    a("s_lshl_b32 s61, s3, 13")
    a(f"s_add_u32 s61, s61, {PK}")
    a("v_add_u32 v91, s61, v91")
    a("v_and_b32 v99, 7, v1")
    a("v_lshlrev_b32 v99, 8, v99")
    a("s_mul_i32 s16, s6, 5")
    a("s_add_u32 s17, s16, 4")
    a("s_add_u32 s16, s16, s3")
    a("s_lshl_b32 s18, s3, 10")
    a(f"s_mul_i32 s19, s16, {20*1024}")
    a(f"s_mul_i32 s20, s17, {20*1024}")
    a("s_mul_i32 s21, s3, 5120")
    a("s_add_u32 s20, s20, s21")
    a("s_mul_i32 s29, s6, 12")
    a("s_lshl_b32 s22, s3, 1")
    a("s_add_u32 s22, s22, s29")
    a("s_add_u32 s23, s29, s3")
    a("s_add_u32 s23, s23, 8")
    a(f"s_mul_i32 s24, s22, {20*1024}")
    a(f"s_mul_i32 s25, s23, {20*1024}")
    a(f"s_mul_i32 s26, s16, {48*1024}")
    a(f"s_mul_i32 s27, s17, {48*1024}")
    a("s_mul_i32 s28, s3, 12288")
    a("s_add_u32 s27, s27, s28")
    a.stamp(8)
    a("s_cmp_eq_u32 s3, 3")
    a("s_cbranch_scc0 D_XW")
    a("s_waitcnt vmcnt(1)")
    a("s_branch D_XW27")
    a.label("D_XW")
    a("s_cmp_eq_u32 s43, 1")
    a("s_cbranch_scc1 D_XW27")
    a("s_waitcnt vmcnt(19)")
    a.label("D_XW27")
    a("s_waitcnt vmcnt(23)")
    a.stamp(5)
    S, T, Qv, INV = 42, 44, 46, 48
    for m in range(10):
        a(f"v_lshlrev_b32 v{FA+2*m}, 16, v{XA+m}")
        a(f"v_and_b32 v{FA+2*m+1}, s{MASK}, v{XA+m}")
    a(f"v_pk_add_f32 v[{S}:{S+1}], v[{FA}:{FA+1}], v[{FA+2}:{FA+3}]")
    for m in range(2, 10):
        a(f"v_pk_add_f32 v[{S}:{S+1}], v[{S}:{S+1}], v[{FA+2*m}:{FA+2*m+1}]")
    a(f"v_add_f32 v{S}, v{S}, v{S+1}")
    red32_1(a, S, T)
    a(f"s_mov_b32 s59, {fhex(1.0/640)}")
    a(f"v_mul_f32 v{S}, s59, v{S}")
    for m in range(10):
        a(f"v_pk_add_f32 v[{T}:{T+1}], v[{FA+2*m}:{FA+2*m+1}], v[{S}:{S+1}] op_sel_hi:[1,0] neg_lo:[0,1] neg_hi:[0,1]")
        if m == 0: a(f"v_pk_mul_f32 v[{Qv}:{Qv+1}], v[{T}:{T+1}], v[{T}:{T+1}]")
        else: a(f"v_pk_fma_f32 v[{Qv}:{Qv+1}], v[{T}:{T+1}], v[{T}:{T+1}], v[{Qv}:{Qv+1}]")
    a(f"v_add_f32 v{Qv}, v{Qv}, v{Qv+1}")
    red32_1(a, Qv, T)
    a(f"v_mul_f32 v{Qv}, s59, v{Qv}")
    rbf2(a, S, Qv, T)
    a(f"v_add_f32 v{Qv}, {fhex(1e-5)}, v{Qv}")
    rbf1(a, Qv)
    a(f"v_sqrt_f32 v{Qv}, v{Qv}")
    for m in range(10):
        a(f"v_pk_add_f32 v[{FA+2*m}:{FA+2*m+1}], v[{FA+2*m}:{FA+2*m+1}], v[{S}:{S+1}] op_sel_hi:[1,0] neg_lo:[0,1] neg_hi:[0,1]")
    rbf1(a, Qv)
    a(f"v_rcp_f32 v{INV}, v{Qv}")
    for m in range(10):
        rbf2(a, FA + 2*m, FA + 2*m + 1, T)
        a(f"v_pk_mul_f32 v[{FA+2*m}:{FA+2*m+1}], v[{FA+2*m}:{FA+2*m+1}], v[{INV}:{INV+1}] op_sel_hi:[1,0]")
        a(f"v_cvt_pk_bf16_f32 v{50+m}, v{FA+2*m}, v{FA+2*m+1}")
        if m & 1:
            a(f"ds_write_b64 v9, v[{50+m-1}:{50+m}] offset:{LN_U + 256*(m//2)}")
    for i in range(5):
        a(f"ds_write_b64 v9, v[{XA+2*i}:{XA+2*i+1}] offset:{LN_X + 256*i}")
    a("s_waitcnt lgkmcnt(0)")
    a("s_barrier")
    a.stamp(6)
    a("s_lshl_b32 s59, s57, 1")
    a("v_mov_b32 v2, s59")
    a("s_lshl_b32 s59, s58, 1")
    a("v_mov_b32 v3, s59")
    a("global_load_ushort v87, v2, s[46:47]")
    a("global_load_ushort v88, v3, s[46:47]")
    def trstore(arr):
        R = 12
        for half in range(2):
            for p in range(5):
                pp_ = half * 5 + p
                for h in range(2):
                    d = R + 4 * p + 2 * h + 20 * half
                    a(f"ds_read_b64_tr_b16 v[{d}:{d+1}], v9 offset:{(LN_U, LN_X)[arr] + h*4*LN_ROW + pp_*128}")
            for p in range(5):
                pp_ = half * 5 + p
                d = R + 4 * p + 20 * half
                a(f"s_waitcnt lgkmcnt({8-2*p})")
                if pp_ % 4 == 0:
                    a(f"s_add_u32 s60, s59, {WS[('U2','X2')[arr]][0] + pp_*1024}")
                a(f"buffer_store_dwordx4 v[{d}:{d+3}], v6, s[8:11], s60 offen offset:{(pp_ % 4)*1024} sc1")
    a("s_cmp_eq_u32 s3, 3")
    a("s_cbranch_scc0 D_KGEN")
    srd(a, 12, 50, 0, 256)
    a("v_mov_b32 v76, 0")
    a("v_mov_b32 v77, 1")
    a("buffer_load_dword v78, v76, s[12:15], 0 offen sc1")
    a("v_bfe_u32 v2, v1, 2, 2")
    a(f"v_mul_u32_u24 v9, {LN_ROW}, v2")
    a("v_lshl_add_u32 v9, v5, 5, v9")
    a("v_and_b32 v2, 3, v1")
    a("v_lshl_add_u32 v9, v2, 3, v9")
    a("s_mul_i32 s59, s2, 10240")
    trstore(0)
    a("s_waitcnt vmcnt(0)")
    a.stamp(9)
    poll(a, 76, 77, 78, "s[12:15]", pre_loaded=True)
    arrive2_issue(a, C_A, 11)
    a.stamp(7)
    a("s_waitcnt vmcnt(0)")
    arrive2_finish(a, R_A, 11)
    trstore(1)
    rep_addr(a, R_A, 7, 8)
    poll(a, 7, 8, 11)
    a.stamp(10)
    for kq in range(4):
        a(f"s_mov_b32 s60, 0x{WS['U2'][0] + kq*64*10240:x}")
        for m in range(3):
            a(f"s_mov_b32 m0, {UPL + kq*UPS + 768 + m*1024}")
            a("s_nop 0")
            a(f"buffer_load_dwordx4 v{VUX+m}, s[8:11], s60 offen sc1 lds")
    a.label("D_JOIN")
    a("ds_read_b32 v11, v90")
    a("s_waitcnt lgkmcnt(0)")
    a("v_readfirstlane_b32 s60, v11")
    a("s_sleep 1")
    a("s_cmp_lt_u32 s60, 3")
    a("s_cbranch_scc1 D_JOIN")
    arrive2_issue(a, C_B, 11)
    a("s_waitcnt vmcnt(0)")
    arrive2_finish(a, R_B, 11)
    a("s_branch D_KG_DONE")
    a.label("D_KGEN")
    a(f"s_mul_i32 s59, s3, {KG_WAVE}")
    a(f"s_add_u32 s59, s59, {KGT}")
    a(f"v_mul_u32_u24 v9, {KG_LANE}, v1")
    a("v_add_u32 v9, s59, v9")
    a("v_lshrrev_b32 v8, 5, v1")
    a("v_bfe_u32 v2, v1, 3, 1")
    a("v_lshl_add_u32 v2, v8, 2, v2")
    a(f"v_mul_u32_u24 v10, {KG_LANE}, v2")
    a("v_bfe_u32 v2, v1, 2, 1")
    a("v_mul_u32_u24 v2, 112, v2")
    a("v_add_u32 v10, v10, v2")
    a("v_bfe_u32 v2, v1, 4, 1")
    a("v_lshl_add_u32 v10, v2, 5, v10")
    a("v_and_b32 v2, 3, v1")
    a("v_lshl_add_u32 v10, v2, 3, v10")
    a("v_add_u32 v10, s59, v10")
    a("v_and_b32 v7, 31, v1")
    FRk, ACCk = 132, 12
    for r in range(16): a(f"v_mov_b32 v{ACCk+r}, 0")
    a("s_cmp_eq_u32 s43, 1")
    a("s_cbranch_scc1 D_PW9")
    a("s_waitcnt vmcnt(2)")
    a.label("D_PW9")
    a("s_waitcnt vmcnt(6)")
    LDT = PR + 18
    a(f"s_mov_b32 s60, {fhex(LOG2E)}")
    a(f"v_lshlrev_b32 v{LDT}, 16, v{LDT}")
    a(f"v_mul_f32 v{LDT}, s60, v{LDT}")
    a(f"v_exp_f32 v{LDT}, v{LDT}")
    a("s_nop 0")
    rbf1(a, LDT)
    a("s_mov_b32 s61, 0")
    ARE, AIM, BRE, BIM, CRE, CIM = range(28, 34)
    def cmul(d, x, y):
        a(f"v_pk_mul_f32 v[34:35], v[{x}:{x+1}], v[{y}:{y+1}] op_sel:[1,1] op_sel_hi:[1,0] neg_lo:[1,0]")
        a(f"v_pk_fma_f32 v[{d}:{d+1}], v[{x}:{x+1}], v[{y}:{y+1}], v[34:35] op_sel:[0,0,0] op_sel_hi:[0,1,1]")
    Wr, Z1, Z8, Z256, Z2, Z4, Z16, Z512, E0, E1, R2 = 36, 38, 40, 42, 44, 46, 48, 50, 52, 54, 56
    def ksetup():
        o = []
        for i in range(6): o.append(f"v_lshlrev_b32 v{28+i}, 16, v{PR+i}")
        for i in range(4): o.append(f"v_mul_f32 v{28+i}, v{LDT}, v{28+i}")
        o.append(f"v_mul_f32 v{ARE}, s60, v{ARE}")
        o.append(f"v_mul_f32 v{AIM}, 0.15915494, v{AIM}")
        o.append(f"v_mul_f32 v34, v{CIM}, v{BIM}")
        o.append(f"v_mul_f32 v35, v{CIM}, v{BRE}")
        o.append(f"v_fma_f32 v{Wr}, v{CRE}, v{BRE}, -v34")
        o.append(f"v_fma_f32 v{Wr+1}, v{CRE}, v{BIM}, v35")
        mv = [f"v_mov_b32 v{PR+i}, v{PR+6+i}" for i in range(12)]
        for (z, m) in ((Z1, 1.0), (Z8, 8.0), (Z256, 256.0)):
            o.append(f"v_mul_f32 v58, {fhex(m)}, v{ARE}")
            o.append(f"v_mul_f32 v59, {fhex(m)}, v{AIM}")
            o.append("v_exp_f32 v58, v58")
            o.append("v_fract_f32 v59, v59")
            o.append(f"v_cos_f32 v{z}, v59")
            o.append(f"v_sin_f32 v{z+1}, v59")
            o += mv[:4]; mv = mv[4:]
            o.append(f"v_mul_f32 v{z}, v{z}, v58")
            o.append(f"v_mul_f32 v{z+1}, v{z+1}, v58")
        return o
    for t in ksetup(): a(t)
    a.label("D_KGL")
    PKR = 60
    def put2(e, x0, x1, neg):
        g = e // 8
        b = PKR + 8 * (g & 1)
        m = (e % 8) // 2
        n = "-" if neg else ""
        a(f"v_cvt_pk_bf16_f32 v{b+m}, v{x0}, v{x1}")
        a(f"v_cvt_pk_bf16_f32 v{b+4+m}, {n}v{x0+1}, {n}v{x1+1}")
        if m == 3 or e == 20:
            a(f"ds_write_b128 v9, v[{b}:{b+3}] offset:{16*g}")
            a(f"ds_write_b128 v9, v[{b+4}:{b+7}] offset:{112 + 16*g}")
    cmul(Z2, Z1, Z1); cmul(Z16, Z8, Z8); cmul(Z512, Z256, Z256); cmul(Z4, Z2, Z2)
    cmul(E1, Wr, Z1); put2(0, Wr, E1, False)
    cmul(E0, Wr, Z2); cmul(E1, E1, Z2); put2(2, E0, E1, False)
    for e in (4, 6):
        cmul(E0, E0, Z2); cmul(E1, E1, Z2); put2(e, E0, E1, False)
    cmul(E0, Wr, Z256); cmul(E1, E0, Z2); put2(8, E0, E1, False)
    cmul(E0, E0, Z4); cmul(E1, E1, Z4); put2(10, E0, E1, False)
    cmul(R2, Wr, Z512); cmul(E1, R2, Z4); put2(12, R2, E1, False)
    cmul(E0, R2, Z256); cmul(E1, E1, Z256); put2(14, E0, E1, False)
    cmul(E1, E0, Z512); cmul(E0, R2, Z512); put2(16, E0, E1, False)
    cmul(E0, E0, Z512); cmul(E1, E1, Z512); put2(18, E0, E1, False)
    cmul(E0, E0, Z512); put2(20, E0, E0, False)
    a(f"v_mov_b32 v{E0}, 1.0")
    a(f"v_mov_b32 v{E0+1}, 0")
    put2(24, E0, Z8, True)
    cmul(E1, Z8, Z16); put2(26, Z16, E1, True)
    cmul(E0, Z16, Z16); cmul(E1, E1, Z16); put2(28, E0, E1, True)
    for j in range(6, 32, 2):
        cmul(E0, E0, Z16); cmul(E1, E1, Z16); put2(24 + j, E0, E1, True)
    def kread(s):
        for ab in range(2):
            for h in range(2):
                d = FRk + 8*s + 4*ab + 2*h
                a(f"ds_read_b64_tr_b16 v[{d}:{d+1}], v10 offset:{1920*s + 480*h + 48*ab}")
    kread(0); kread(1); kread(2)
    ks = ksetup()
    per = (len(ks) + 7) // 8
    for s in range(8):
        a(f"s_waitcnt lgkmcnt({8 if s < 6 else (4 if s == 6 else 0)})")
        a(f"v_mfma_f32_32x32x16_bf16 v[{ACCk}:{ACCk+15}], v[{FRk+8*s}:{FRk+8*s+3}], v[{FRk+8*s+4}:{FRk+8*s+7}], v[{ACCk}:{ACCk+15}]")
        if s + 3 < 8: kread(s + 3)
        for t in ks[per*s:per*(s+1)]: a(t)
    a("s_add_u32 s61, s61, 1")
    a("s_cmp_lg_u32 s61, 1")
    a("s_cbranch_scc1 D_KGNP")
    a("s_cmp_eq_u32 s43, 0")
    a("s_cbranch_scc1 D_KGNP")
    a("s_waitcnt vmcnt(0)")
    a.stamp(9)
    pack_finish(a, 91, 0, 60, 31, 30)
    a.label("D_KGNP")
    a("s_cmp_lg_u32 s61, 2")
    a("s_cbranch_scc1 D_KGNS")
    a("s_waitcnt vmcnt(0)")
    a("v_mov_b32 v2, 1")
    a("s_mov_b64 exec, 1")
    a("ds_add_u32 v90, v2")
    a("s_mov_b64 exec, -1")
    a.label("D_KGNS")
    a("s_cmp_lt_u32 s61, 3")
    a("s_cbranch_scc1 D_KGL")
    a.stamp(7)
    a(f"s_mul_i32 s59, s3, {TTS}")
    a(f"s_add_u32 s59, s59, {TB0}")
    a("v_lshlrev_b32 v28, 4, v7")
    a("v_lshl_add_u32 v28, v8, 3, v28")
    a("v_add_u32 v28, s59, v28")
    a("v_cmp_eq_u32 vcc, 1, v8")
    a("v_lshlrev_b32 v31, 3, v7")
    a(f"v_add_u32 v29, {256*2}, v31")
    a(f"v_add_u32 v30, {258*2}, v31")
    a("v_lshlrev_b32 v31, 2, v7")
    a(f"v_add_u32 v32, {384*2}, v31")
    a("v_cndmask_b32 v29, v29, v32, vcc")
    a(f"v_add_u32 v32, {448*2}, v31")
    a("v_cndmask_b32 v30, v30, v32, vcc")
    a("v_add_u32 v29, s59, v29")
    a("v_add_u32 v30, s59, v30")
    a("v_lshlrev_b32 v31, 1, v7")
    a("v_lshl_add_u32 v31, v8, 8, v31")
    a("v_add_u32 v31, s59, v31")
    for m in range(4):
        a(f"v_cvt_pk_bf16_f32 v{34+m}, v{ACCk+2*m}, v{ACCk+2*m+1}")
    for r in range(4):
        a(f"v_cvt_pk_bf16_f32 v{38+r}, v{ACCk+8+r}, v{ACCk+8+r}")
    a("ds_write_b64 v28, v[34:35]")
    a("ds_write_b32 v29, v36")
    a("ds_write_b32 v30, v37")
    for r in range(4):
        a(f"ds_write_b16 v31, v{38+r} offset:{(512+32*r)*2}")
    a("s_waitcnt vmcnt(0)")
    a.label("D_KG_DONE")
    a("s_waitcnt lgkmcnt(0)")
    a("s_barrier")
    a.stamp(11)
    a("v_lshlrev_b32 v9, 4, v0")
    def gath(sl):
        for i in range(11):
            a(f"ds_read_u16 v{12+12*sl+i}, v{GA+i} offset:{sl*TTS}")
    gath(0)
    a("s_lshl_b32 s64, s2, 2")
    a("s_add_u32 s64, s64, s3")
    a("s_add_u32 s64, s64, 400")
    a("s_lshl_b32 s59, s3, 13")
    a(f"s_add_u32 s59, s59, {PK + 4096}")
    pack_issue(a, 59, guard=True)
    rep_addr(a, R_B, 7, 8)
    a("v_lshrrev_b32 v2, 2, v0")
    a(f"v_mul_u32_u24 v2, {KC}, v2")
    a("v_and_b32 v3, 3, v0")
    a("v_lshl_add_u32 v2, v3, 4, v2")
    for r in range(4): a(f"v_mov_b32 v{100+r}, 0")
    a("v_cmp_gt_u32 vcc, 48, v0")
    for sl in range(3):
        V = 12 + 12 * sl
        a("s_waitcnt lgkmcnt(0)" if sl == 0 else "s_waitcnt lgkmcnt(4)")
        if sl < 2: gath(sl + 1)
        O = 48 + 16 * (sl & 1)
        for c in range(4):
            for m in range(4):
                a(f"v_lshl_or_b32 v{O+4*c+m}, v{V+c+2*m+1}, 16, v{V+c+2*m}")
            a(f"ds_write_b128 v9, v[{O+4*c}:{O+4*c+3}] offset:{sl*SLOT + c*KC}")
    a("s_and_saveexec_b64 s[44:45], vcc")
    a("ds_write_b128 v2, v[100:103] offset:4096")
    a("s_mov_b64 exec, s[44:45]")
    a("s_waitcnt lgkmcnt(0)")
    a("s_barrier")
    a.stamp(12)
    def wown(q0, wn): return [G.wl(q0 + s, 19, WS[wn][0] + s*1024) for s in range(20)]
    def wsh_dma(wn, base_s, nfr, lds0, per):
        out = []
        for m in range(0, per, 4):
            for e in range(min(4, per - m)):
                t = ""
                if e == 0:
                    t = f"s_add_u32 m0, s{21 if per == 5 else 28}, {lds0 + m*1024}\ns_add_u32 s61, s{base_s}, {WS[wn][0] + m*1024}\n"
                out.append(t + f"buffer_load_dwordx4 v6, s[8:11], s61 offen offset:{e*1024} lds")
        return out
    def w3a(es): return [G.wl(40 + e, 24, WS["WP3"][0] + ((e & 1)*20 + (e >> 1))*1024) for e in sorted(es, key=lambda e: (e & 1, e >> 1))]
    def w3b(): return [G.wl(s, 25, WS["WP3"][0] + s*1024) for s in range(20)]
    ord4 = [6*c + e for c in range(8) for e in range(4)] + [6*c + 4 + e for c in range(8) for e in range(2)]
    def w4(ps): return [G.wl(20 + p, 26, WS["WP4"][0] + ord4[p]*1024) for p in ps]
    ACC, ACC2, FR = 12, 28, 128
    xdma = []
    for m in range(3):
        t = f"s_add_u32 m0, s59, {XPL + m*1024}\n"
        t += "s_nop 0\n"
        xdma.append(t + f"buffer_load_dwordx4 v{VUX+m}, s[8:11], s60 offen sc1 lds")
    fill = xdma + wown(0, "WP1") + wsh_dma("WP1", 20, 20, WSH, 5)
    nfill = len(fill)
    units = [(12 + i, VA2, VB2, ACC2, i == 0) for i in range(4)] + [(i, VA, VB, ACC, i == 0) for i in range(16)]
    def hook(i):
        if i == 4:
            poll(a, 7, 8, 9)
            a(f"s_mul_i32 s59, s3, {XPS}")
            a(f"s_mul_i32 s60, s3, {64*10240}")
            a(f"s_add_u32 s60, s60, 0x{WS['X2'][0]:x}")
            pack_finish(a, 91, 4096, 60, 67, 96)
    ex = [(4, t) for t in fill]
    conv_loop(a, units, FR, ex, hook)
    assert not ex, len(ex)
    a.stamp(13)
    a("s_lshl_b32 s59, s3, 12")
    a(f"s_add_u32 s59, s59, {RED}")
    a("v_add_u32 v8, s59, v6")
    for nt in range(4):
        a(f"ds_write_b128 v8, v[{ACC2+4*nt}:{ACC2+4*nt+3}] offset:{1024*nt}")
    a("v_lshrrev_b32 v9, 1, v5")
    a("v_and_b32 v7, 1, v5")
    a("v_mul_u32_u24 v2, 48, v4")
    a("v_lshl_add_u32 v2, v7, 3, v2")
    a(f"v_mul_u32_u24 v44, {UPS}, v9")
    a("v_add_u32 v44, v44, v2")
    a(f"v_mul_u32_u24 v45, {XPS}, v9")
    a("v_add_u32 v45, v45, v2")
    UR, XR = 50, 60
    def uxaddr(mt, pos, ntw, d):
        a(f"s_mul_i32 s59, s{mt}, {2*UPS}")
        a(f"s_lshl_b32 s60, s{pos}, 4")
        if ntw:
            a("s_mul_i32 s61, s3, 768")
            a("s_add_u32 s60, s60, s61")
        a("s_add_u32 s59, s59, s60")
        a(f"v_add_u32 v{d}, s59, v44")
        a(f"s_mul_i32 s59, s{mt}, {2*XPS}")
        a("s_add_u32 s59, s59, s60")
        a(f"s_add_u32 s59, s59, {XPL}")
        a(f"v_add_u32 v{d+1}, s59, v45")
    uxaddr(55, 54, False, 46)
    uxaddr(53, 56, True, 48)
    a("v_lshlrev_b32 v3, 9, v5")
    a("v_lshl_add_u32 v3, v4, 3, v3")
    a("s_lshl_b32 s59, s57, 12")
    a("s_lshl_b32 s60, s55, 11")
    a("s_add_u32 s59, s59, s60")
    a(f"s_add_u32 s59, s59, 0x{WS['HT'][0]:x}")
    a("v_lshlrev_b32 v10, 16, v87")
    a("v_lshlrev_b32 v11, 16, v88")
    a("s_lshl_b32 s60, s3, 10")
    a(f"s_add_u32 s60, s60, {RED}")
    a("v_add_u32 v8, s60, v6")
    a(f"s_waitcnt vmcnt({nfill - 3}) lgkmcnt(0)")
    a("s_barrier")
    for nt in range(4):
        a(f"ds_read_b64 v[{UR+2*nt}:{UR+2*nt+1}], v46 offset:{UPL + 768 + 768*nt}")
        a(f"ds_read_b64 v[{XR+2*nt}:{XR+2*nt+1}], v47 offset:{768*nt}")
    a(f"ds_read_b64 v[{UR+8}:{UR+9}], v48 offset:{UPL + 768}")
    a(f"ds_read_b64 v[{XR+8}:{XR+9}], v49")
    for w in range(4):
        a(f"ds_read_b128 v[{ACC2+4*w}:{ACC2+4*w+3}], v8 offset:{4096*w}")
    T = 72
    for nt in range(4):
        a(f"s_waitcnt lgkmcnt({12 - 2*nt})")
        conv_epi(a, ACC + 4*nt, UR + 2*nt, XR + 2*nt, 10, T, MASK)
        a(f"buffer_store_dwordx2 v[{ACC+4*nt}:{ACC+4*nt+1}], v3, s[8:11], s59 offen offset:{128*nt} sc1")
    a("s_waitcnt lgkmcnt(0)")
    for r in (0, 2):
        a(f"v_pk_add_f32 v[{ACC2+r}:{ACC2+r+1}], v[{ACC2+r}:{ACC2+r+1}], v[{ACC2+4+r}:{ACC2+4+r+1}]")
        a(f"v_pk_add_f32 v[{ACC2+8+r}:{ACC2+8+r+1}], v[{ACC2+8+r}:{ACC2+8+r+1}], v[{ACC2+12+r}:{ACC2+12+r+1}]")
    for r in (0, 2):
        a(f"v_pk_add_f32 v[{ACC2+r}:{ACC2+r+1}], v[{ACC2+r}:{ACC2+r+1}], v[{ACC2+8+r}:{ACC2+8+r+1}]")
    conv_epi(a, ACC2, UR + 8, XR + 8, 11, T, MASK)
    a("s_lshl_b32 s59, s58, 12")
    a("s_lshl_b32 s60, s53, 11")
    a("s_add_u32 s59, s59, s60")
    a("s_lshl_b32 s60, s3, 7")
    a("s_add_u32 s59, s59, s60")
    a(f"s_add_u32 s59, s59, 0x{WS['HT'][0]:x}")
    a(f"buffer_store_dwordx2 v[{ACC2}:{ACC2+1}], v3, s[8:11], s59 offen sc1")

    def publish(cnt_code, pre=()):
        for t in pre: a(t)
        a(f"s_waitcnt vmcnt({len(pre)})")
        a("s_barrier")
        l = a.newlabel("PUB")
        a("s_cmp_lg_u32 s3, 0")
        a(f"s_cbranch_scc1 {l}")
        a(cnt_code)
        arrive(a, 56)
        a.label(l)
    def publish2(cnt, rep, pre=()):
        for t in pre: a(t)
        a(f"s_waitcnt vmcnt({len(pre)})")
        a("s_barrier")
        l = a.newlabel("PUB")
        a("s_cmp_lg_u32 s3, 0")
        a(f"s_cbranch_scc1 {l}")
        arrive2_issue(a, cnt, 7)
        a("s_waitcnt vmcnt(0)")
        arrive2_finish(a, rep, 7)
        a.label(l)
    def await_(setup):
        l = a.newlabel("AW")
        a("s_cmp_lg_u32 s3, 0")
        a(f"s_cbranch_scc1 {l}")
        a(setup)
        poll(a, 2, 3, 7)
        a.label(l)
        a("s_waitcnt vmcnt(0)")
        a("s_barrier")
    from d_mlp import gen_mlp
    gen_mlp(a, G, dict(wown=wown, wsh_dma=wsh_dma, w3a=w3a, w3b=w3b, w4=w4, ord4=ord4, publish=publish, publish2=publish2, await_=await_))
    a.label("D_END")
    a.endk()
    a.label("D_EXIT")
    a("s_endpgm")
    a.label("D_CODE_END")
    return dict(name=name, grid=256, block=256, lds=LDS_TOTAL, vgpr=512, accum=256)
```

```python
from asmlib import *
from layout_d import *
from kg import rbf1, rbf2, gelu_regs, ln_apply_gelu, swap_pair, stats_calc, gelu_consts, MASK
from d import Q, STAT, WSH, Rec, poll, arrive, MF, l2_prefetch

VD, VT, VTH, VP, VW = 8, 12, 16, 20, 27
CS3, CS1, CS1S, HK, XK, CG, ACC, ACS, S1, S2, ONES, FR = 28, 40, 44, 40, 52, 62, 68, 84, 116, 120, 124, 128
T, O = 128, 144
TILE = 20480

def gen_mlp(a, G, H):
    publish, await_ = H["publish"], H["await_"]
    ord4 = H["ord4"]

    def tile_sgpr(tl, mul, add=0):
        a(f"s_add_u32 s59, s3, {tl}")
        a("s_and_b32 s59, s59, 3")
        if mul != 1: a(f"s_mul_i32 s59, s59, {mul}")
        if add: a(f"s_add_u32 s59, s59, {add}")

    def rowaddr(dst, vtt, perm, ks, trow=None):
        t0, t1 = T, T + 1
        if perm:
            a(f"v_and_b32 v{t0}, 1, v{vtt}")
            a(f"v_lshlrev_b32 v{t0}, 3, v{t0}")
            a(f"v_lshrrev_b32 v{t1}, 2, v4")
            a(f"v_lshl_add_u32 v{t0}, v{t1}, 1, v{t0}")
            a("s_lshl_b32 s59, s4, 4")
            a("s_lshr_b32 s60, s5, 1")
            a("s_add_u32 s59, s59, s60")
            a(f"v_add_u32 v{t0}, s59, v{t0}")
            a(f"v_mul_u32_u24 v{dst}, {ks*1024}, v{t0}")
            if trow is not None: a(f"v_lshlrev_b32 v{trow}, 4, v{t0}")
            a(f"v_lshrrev_b32 v{t0}, 1, v{vtt}")
            a(f"v_lshlrev_b32 v{t0}, 2, v{t0}")
            a(f"v_and_b32 v{t1}, 3, v4")
            a(f"v_add_u32 v{t0}, v{t0}, v{t1}")
            a("s_and_b32 s59, s5, 1")
            a("s_lshl_b32 s59, s59, 3")
            a(f"v_add_u32 v{t0}, s59, v{t0}")
            a(f"v_lshl_add_u32 v{dst}, v{t0}, 4, v{dst}")
            if trow is not None: a(f"v_add_u32 v{trow}, v{trow}, v{t0}")
        else:
            a("s_lshl_b32 s59, s7, 2")
            a(f"v_add_u32 v{t0}, s59, v{vtt}")
            a(f"v_mul_u32_u24 v{dst}, {ks*1024}, v{t0}")
            a(f"v_lshl_add_u32 v{dst}, v4, 4, v{dst}")
            if trow is not None: a(f"v_lshl_add_u32 v{trow}, v{t0}, 4, v4")

    def out_addrs(perm, ks, base=VP, shared=True, trows=None):
        tt = T + 2
        for pr in range(2):
            a(f"v_and_b32 v{tt}, 1, v5")
            a(f"s_add_u32 s61, s3, {2*pr}")
            a(f"v_add_u32 v{tt}, s61, v{tt}")
            a(f"v_and_b32 v{tt}, 3, v{tt}")
            rowaddr(base + pr, tt, perm, ks, trows[pr] if trows else None)
            a(f"v_lshrrev_b32 v{T}, 1, v5")
            a(f"v_lshl_add_u32 v{base+pr}, v{T}, 8, v{base+pr}")
        if shared:
            a(f"v_mov_b32 v{tt}, s3")
            rowaddr(23, tt, perm, ks, trows[2] if trows else None)
            a(f"v_lshrrev_b32 v{T}, 1, v5")
            a(f"v_lshl_add_u32 v22, v{T}, 8, v23")
            a(f"v_and_b32 v{T}, 1, v5")
            a(f"v_lshl_add_u32 v22, v{T}, 3, v22")

    def frag_addrs(tr):
        if tr:
            a(f"v_bfe_u32 v{T}, v1, 2, 2")
            a(f"v_lshlrev_b32 v{T+1}, 3, v5")
            a(f"v_add_u32 v{T+1}, v{T+1}, v{T}")
            a(f"v_lshlrev_b32 v{T+1}, 7, v{T+1}")
            a(f"v_and_b32 v{T+2}, 3, v1")
            a(f"v_lshl_add_u32 v{T+1}, v{T+2}, 3, v{T+1}")
            a(f"v_lshrrev_b32 v{T}, 1, v{T}")
            a(f"v_and_b32 v{T+2}, 1, v5")
            a(f"v_lshl_or_b32 v{T}, v{T+2}, 1, v{T}")
            for tl in range(4):
                tile_sgpr(tl, 1)
                a(f"v_xor_b32 v{T+2}, s59, v{T}")
                a(f"v_lshl_add_u32 v{VT+tl}, v{T+2}, 5, v{T+1}")
                a(f"v_add_u32 v{VTH+tl}, 0x10000, v{VT+tl}")
        else:
            for tl in range(4):
                tile_sgpr(tl, TILE)
                a(f"v_add_u32 v{VT+tl}, s59, v6")

    def reads(p, tr, wsh):
        b = FR + 20 * (p % 3)
        out = []
        for tl in range(4):
            if tr:
                off, va = p * 4096, VT
                if off >= 65536: off -= 65536; va = VTH
                out.append(f"ds_read_b64_tr_b16 v[{b+4*tl}:{b+4*tl+1}], v{va+tl} offset:{off}\n"
                           f"ds_read_b64_tr_b16 v[{b+4*tl+2}:{b+4*tl+3}], v{va+tl} offset:{off+512}")
            else:
                out.append(f"ds_read_b128 v[{b+4*tl}:{b+4*tl+3}], v{VT+tl} offset:{(p % 20)*1024}")
        if wsh is not None:
            out.append(f"ds_read_b128 v[{b+16}:{b+19}], v{VW} offset:{wsh}")
        return out

    def gloop(KS, bounds, init, per_step, dma, tr, wshf, mfmas, xslots, pre=None, hook=None, st=None):
        issued = []
        def wait_txt(p):
            last = max(i for i, t in enumerate(issued) if t == p)
            return f"s_waitcnt vmcnt({len(issued) - 1 - last})"
        for p in range(init):
            for t in dma(p): a(t)
            issued.append(p)
        if pre: issued.extend([-1] * pre())
        if st: a.stamp(st[0])
        a(wait_txt(bounds[0] - 1))
        a("s_barrier")
        if st: a.stamp(st[1])
        vis = bounds[0]; bi = 1
        assert vis >= 2
        nr = (8 if tr else 4) + (1 if wshf else 0)
        for p in (0, 1):
            for r in reads(p, tr, wshf(p) if wshf else None): a(r)
        if vis < 3:
            a(wait_txt(bounds[1] - 1)); a("s_barrier"); vis = bounds[1]; bi = 2
        a(f"s_waitcnt lgkmcnt({nr})")
        for p in range(KS):
            if st and p in st[2]: a.stamp(st[2][p])
            X = []
            if hook:
                for t, isv in hook(p): X.append((t, -1 if isv else None))
            for pos in per_step(p):
                d = dma(pos)
                for t in d[:-1]: X.append((t, None))
                X.append((d[-1], pos))
            if p + 3 < KS and p + 3 >= vis:
                X.append(("WAIT", bounds[bi] - 1)); X.append(("s_barrier", None))
                vis = bounds[bi]; bi += 1
            rd = reads(p + 2, tr, wshf(p + 2) if wshf else None) if p + 2 < KS else []
            ms = mfmas(p, FR + 20 * (p % 3))
            for gi, m in enumerate(ms):
                a(m)
                if gi < len(rd): a(rd[gi])
                n = xslots[gi] if gi < len(ms) - 1 else len(X)
                for _ in range(n):
                    if not X: break
                    t, tag = X.pop(0)
                    if t == "WAIT": a(wait_txt(tag))
                    else:
                        a(t)
                        if tag is not None: issued.append(tag)
            if p + 1 < KS:
                a(f"s_waitcnt lgkmcnt({nr if p + 2 < KS else 0})")

    def mfma5(qown, stats):
        def f(p, b):
            out = []
            for tl in range(4):
                c = "0" if p == 0 else f"v[{ACC+4*tl}:{ACC+4*tl+3}]"
                out.append(f"{MF} v[{ACC+4*tl}:{ACC+4*tl+3}], {Q(qown(p))}, v[{b+4*tl}:{b+4*tl+3}], {c}")
            c = "0" if p == 0 else f"v[{ACS}:{ACS+3}]"
            out.append(f"{MF} v[{ACS}:{ACS+3}], v[{b+16}:{b+19}], v[{b}:{b+3}], {c}")
            if stats:
                c1 = "0" if p == 0 else f"v[{S1}:{S1+3}]"
                c2 = "0" if p == 0 else f"v[{S2}:{S2+3}]"
                out.append(f"{MF} v[{S1}:{S1+3}], v[{ONES}:{ONES+3}], v[{b}:{b+3}], {c1}")
                out.append(f"{MF} v[{S2}:{S2+3}], v[{b}:{b+3}], v[{b}:{b+3}], {c2}")
            return out
        return f

    def unpack(dst, src, n):
        for m in range(n):
            a(f"v_lshlrev_b32 v{dst+2*m}, 16, v{src+m}")
            a(f"v_and_b32 v{dst+2*m+1}, s{MASK}, v{src+m}")
    def addres(P, n, res, dst=None):
        dst = P if dst is None else dst
        unpack(T, P, n)
        unpack(T + 8, res, n)
        for m in range(n):
            a(f"v_pk_add_f32 v[{T+2*m}:{T+2*m+1}], v[{T+2*m}:{T+2*m+1}], v[{T+8+2*m}:{T+8+2*m+1}]")
        for m in range(n):
            a(f"v_cvt_pk_bf16_f32 v{dst+m}, v{T+2*m}, v{T+2*m+1}")
    def read_stats(AB):
        for tl in range(4):
            tile_sgpr(tl, 256, STAT)
            a("v_lshl_add_u32 v2, v4, 4, s59")
            a(f"ds_read_b64 v[{AB+2*tl}:{AB+2*tl+1}], v2")
    def frag_dma(sbase, const_of, srd="s[8:11]", vo=lambda p: 6):
        st = {}
        def f(p):
            c = const_of(p)
            slot = p % 20
            out = []
            if st and st["p"] + st["n"] == p and st["c"] + 1024 * st["n"] == c and st["n"] < 4 and slot != 0 and vo(p) == st["v"]:
                e = st["n"]; st["n"] += 1
            else:
                st.update(p=p, c=c, n=1, v=vo(p)); e = 0
                out.append(f"s_add_u32 m0, s29, {slot*1024}")
                out.append(f"s_add_u32 s61, s{sbase}, 0x{c:x}" if sbase is not None else f"s_mov_b32 s61, 0x{c:x}")
            out.append(f"buffer_load_dwordx4 v{vo(p)}, {srd}, s61 offen offset:{e*1024} sc1 lds")
            return out
        return f
    def refetch(lst):
        for i, (v, s, off, w) in enumerate(lst):
            a(f"buffer_load_dword v{188+(i&1)}, v{v}, s[8:11], s{s} offen offset:{off} sc1")
    def st2(t):
        a(t)

    if a.diag: a("v_mov_b32 v191, 0")
    w2l = H["wown"](20, "WP2") + H["wsh_dma"]("WP2", 20, 20, WSH + 20480, 5)
    w3l = H["w3a"](range(40))
    H["publish2"](C_C, R_C, pre=w2l[:10])
    a.stamp(14)
    for t in w2l[10:]: a(t)
    a("s_lshl_b32 s30, s16, 9")
    a("s_lshl_b32 s31, s17, 9")
    a(f"s_mul_i32 s29, s3, {TILE}")
    for r in range(4): a(f"v_mov_b32 v{ONES+r}, 0x3f803f80")
    gelu_consts(a, CG)
    a(f"v_add_u32 v{VW}, {WSH}, v6")
    a(f"v_lshrrev_b32 v{T}, 3, v1")
    a("s_lshl_b32 s59, s3, 3")
    a(f"v_add_u32 v{T}, s59, v{T}")
    a(f"v_lshlrev_b32 v{VD}, 12, v{T}")
    a(f"v_bfe_u32 v{T}, v1, 4, 1")
    a("s_and_b32 s59, s3, 1")
    a("s_lshl_b32 s59, s59, 1")
    a(f"v_or_b32 v{T}, s59, v{T}")
    a(f"v_lshlrev_b32 v{T}, 1, v{T}")
    a(f"v_and_b32 v{T+1}, 7, v1")
    a(f"v_xor_b32 v{T}, v{T}, v{T+1}")
    a(f"v_lshrrev_b32 v{T+1}, 2, v{T}")
    a(f"v_lshl_add_u32 v{VD}, v{T+1}, 9, v{VD}")
    a(f"v_and_b32 v{T+1}, 3, v{T}")
    a(f"v_lshl_add_u32 v{VD}, v{T+1}, 4, v{VD}")
    a("s_lshl_b32 s52, s5, 10")
    a("s_lshl_b32 s59, s4, 6")
    a("s_add_u32 s52, s52, s59")
    frag_addrs(True)
    out_addrs(True, 20, trows=[None, None, 24])
    a("v_lshlrev_b32 v24, 3, v24")
    def colsum_lds(dst, off0, n):
        for s in range(n):
            b = FR + 4 * (s % 8)
            if s == 0:
                for s2 in range(min(6, n)): a(f"ds_read_b128 v[{FR+4*(s2%8)}:{FR+4*(s2%8)+3}], v{VW} offset:{off0 + s2*1024}")
            a(f"s_waitcnt lgkmcnt({min(5, n-1-s)})")
            a(f"{MF} v[{dst}:{dst+3}], v[{b}:{b+3}], v[{ONES}:{ONES+3}], {'0' if s == 0 else f'v[{dst}:{dst+3}]'}")
            if s + 6 < n: a(f"ds_read_b128 v[{FR+4*((s+6)%8)}:{FR+4*((s+6)%8)+3}], v{VW} offset:{off0 + (s+6)*1024}")
    for s in range(20):
        a(f"{MF} v[{CS1}:{CS1+3}], {Q(s)}, v[{ONES}:{ONES+3}], {'0' if s == 0 else f'v[{CS1}:{CS1+3}]'}")
    colsum_lds(CS1S, 0, 20)
    await_(f"s_lshl_b32 s60, s4, 8\ns_add_u32 s60, s60, {R_C*256}\nv_mov_b32 v2, s60\nv_mov_b32 v3, 8")
    a.stamp2(14)
    def bg_hook(lst, p0, p1, n):
        def h(p):
            out = []
            if p0 <= p < p1:
                for _ in range(n):
                    if lst:
                        ls = lst.pop(0).split("\n")
                        out += [(t, False) for t in ls[:-1]] + [(ls[-1], True)]
            return out
        return h
    w3rest = list(w3l[:14])
    hook1 = bg_hook(w3rest, 10, 17, 2)
    gloop(20, [2, 4, 6, 8, 10, 12, 14, 16, 20], 8, lambda p: [8 + 2*p, 9 + 2*p] if p < 2 else ([10 + p] if p < 10 else []),
          lambda p: [f"s_add_u32 m0, s18, {p*4096}", f"s_add_u32 s61, s52, 0x{WS['HT'][0] + p*32*4096:x}",
                     f"buffer_load_dwordx4 v{VD}, s[8:11], s61 offen sc1 lds"],
          True, lambda p: p * 1024, mfma5(lambda p: p, True), [0, 0, 0, 0, 1, 2, 1], hook=hook1)
    assert not w3rest
    a.stamp2(0)
    HR = O + 12
    a("s_lshl_b32 s59, s6, 12")
    a(f"v_add_u32 v2, s59, v{VT}")
    a(f"v_add_u32 v3, s59, v{VTH}")
    for m in range(3):
        va, off = (2, 32768 * m) if m < 2 else (3, 0)
        a(f"ds_read_b64_tr_b16 v[{HR+4*m}:{HR+4*m+1}], v{va} offset:{off}")
        a(f"ds_read_b64_tr_b16 v[{HR+4*m+2}:{HR+4*m+3}], v{va} offset:{off+512}")
    a("s_lshl_b32 s59, s3, 8")
    a(f"s_add_u32 s59, s59, {STAT}")
    a("v_lshl_add_u32 v3, v4, 4, s59")
    a(f"s_mov_b32 s60, 0x{WS['RS'][0]:x}")
    a("s_cmp_lg_u32 s6, 0")
    a("s_cselect_b32 s60, 0x7ff00000, s60")
    stats_calc(a, S1, S2, 4, 5, T, True, 3, extra=f"buffer_store_dwordx2 v[{T+2}:{T+3}], v24, s[8:11], s60 offen sc1")
    a("v_lshl_add_u32 v25, v5, 8, v23")
    a("s_lshl_b32 s53, s6, 10")
    a(f"s_add_u32 s53, s53, 0x{WS['HF'][0]:x}")
    a("s_add_u32 s54, s53, 8192")
    a("s_add_u32 s55, s53, 16384")
    a("s_cmp_ge_u32 s6, 4")
    a("s_cselect_b32 s55, 0x7ff00000, s55")
    a("s_waitcnt lgkmcnt(0)")
    a("s_barrier")
    AB = S1
    read_stats(AB)
    for m in range(3):
        st2(f"buffer_store_dwordx4 v[{HR+4*m}:{HR+4*m+3}], v25, s[8:11], s{53+m} offen sc1")
    a(f"s_add_u32 s57, s30, 0x{WS['H1F'][0]:x}")
    a(f"s_add_u32 s58, s31, 0x{WS['H1F'][0]:x}")
    a("s_waitcnt lgkmcnt(0)")
    for pr in range(2):
        P = O + 4 * pr
        for h in range(2):
            tl = 2 * pr + h
            ln_apply_gelu(a, ACC + 4 * tl, AB + 2 * tl, CS1, T, CG, P + 2 * h)
        swap_pair(a, P)
        st2(f"buffer_store_dwordx4 v[{P}:{P+3}], v{VP+pr}, s[8:11], s57 offen sc1")
    ln_apply_gelu(a, ACS, AB, CS1S, T, CG, O + 8)
    st2(f"buffer_store_dwordx2 v[{O+8}:{O+9}], v22, s[8:11], s58 offen sc1")
    a.stamp2(1)
    w3bl = H["w3b"]()
    nxt = w3l[14:38]
    publish(f"s_lshl_b32 s56, s4, 8\ns_add_u32 s56, s56, {C_G1*256}", pre=nxt[:10])
    a.stamp2(2)
    refetch([(VP, 57, 0, 4), (VP + 1, 57, 0, 4), (22, 58, 0, 2), (25, 53, 0, 4), (25, 54, 0, 4), (25, 55, 0, 4)])
    for t in nxt[10:]: a(t)
    a("s_lshl_b32 s59, s7, 6")
    a("s_lshl_b32 s60, s3, 4")
    a("s_add_u32 s59, s59, s60")
    a(f"v_add_u32 v{T}, s59, v4")
    a(f"s_movk_i32 s60, {20*1024}")
    for gi, sh in enumerate((1, -1, 2, -2)):
        a(f"v_add_u32 v{T+1}, {-sh}, v{T}")
        a(f"v_ashrrev_i32 v{T+2}, 4, v{T+1}")
        a(f"v_mul_lo_u32 v{VD+gi}, v{T+2}, s60")
        a(f"v_and_b32 v{T+1}, 15, v{T+1}")
        a(f"v_lshl_add_u32 v{VD+gi}, v{T+1}, 4, v{VD+gi}")
        a(f"v_lshl_add_u32 v{VD+gi}, v5, 8, v{VD+gi}")
    srd(a, 12, 40, WS["H1F"][0], ACT)
    frag_addrs(False)
    out_addrs(False, 20, trows=[16, 17, 18])
    await_(f"""v_and_b32 v7, 3, v1
v_min_u32 v7, 2, v7
s_add_u32 s59, s4, {C_G1 - 1}
v_add_u32 v2, s59, v7
v_lshlrev_b32 v2, 8, v2
s_cmp_eq_u32 s7, 0
s_cselect_b32 s59, 0, 32
s_cmp_eq_u32 s5, 0
s_cselect_b32 s59, s59, 0
s_cmp_eq_u32 s7, 31
s_cselect_b32 s60, 0, 32
s_cmp_eq_u32 s5, 3
s_cselect_b32 s60, s60, 0
v_mov_b32 v3, 32
v_cmp_eq_u32 vcc, 0, v7
v_mov_b32 v{T}, s59
v_mov_b32 v{T+1}, s60
v_cndmask_b32 v3, v3, v{T}, vcc
v_cmp_eq_u32 vcc, 2, v7
s_nop 1
v_cndmask_b32 v3, v3, v{T+1}, vcc""")
    a.stamp2(3)
    RSR = S1
    def pre2():
        a(f"s_add_u32 s59, s30, 0x{WS['HF'][0]:x}")
        a(f"buffer_load_dwordx4 v[{HK}:{HK+3}], v{VP}, s[8:11], s59 offen sc1")
        a(f"buffer_load_dwordx4 v[{HK+4}:{HK+7}], v{VP+1}, s[8:11], s59 offen sc1")
        a(f"s_add_u32 s59, s31, 0x{WS['HF'][0]:x}")
        a(f"buffer_load_dwordx2 v[{HK+8}:{HK+9}], v22, s[8:11], s59 offen sc1")
        a(f"s_mov_b32 s59, 0x{WS['RS'][0]:x}")
        for m in range(3):
            a(f"v_lshlrev_b32 v2, 3, v{16+m}")
            a(f"buffer_load_dwordx2 v[{RSR+2*m}:{RSR+2*m+1}], v2, s[8:11], s59 offen sc1")
        return 6
    X5 = [1, 1, 1, 1, 0]
    w3b2 = list(w3l[38:] + w3bl[:14])
    gloop(20, [2, 4, 8, 12, 16, 20], 10, lambda p: [10 + 2*p, 11 + 2*p] if p < 5 else [],
          frag_dma(None, lambda p: p * 1024, "s[12:15]", lambda p: VD + p // 5),
          False, lambda p: 20480 + p * 1024, mfma5(lambda p: 20 + p, False), X5, pre=pre2, hook=bg_hook(w3b2, 5, 13, 2), st=(4, 5, {0: 7, 5: 8, 13: 9}))
    assert not w3b2
    a.stamp2(4)
    a("s_waitcnt vmcnt(0)")
    for m, n in ((0, 4), (1, 4), (2, 2)):
        unpack(T, HK + 4 * m, n)
        R = RSR + 2 * m
        for p in range(0, 2 * n, 2):
            a(f"v_pk_add_f32 v[{T+p}:{T+p+1}], v[{T+p}:{T+p+1}], v[{R}:{R+1}] op_sel_hi:[1,0] neg_lo:[0,1] neg_hi:[0,1]")
        for p in range(0, 2 * n, 2):
            rbf2(a, T + p, T + p + 1, T + 8)
        for p in range(0, 2 * n, 2):
            a(f"v_pk_mul_f32 v[{T+p}:{T+p+1}], v[{T+p}:{T+p+1}], v[{R}:{R+1}] op_sel:[0,1] op_sel_hi:[1,1]")
        for p in range(n):
            a(f"v_cvt_pk_bf16_f32 v{XK+4*m+p}, v{T+2*p}, v{T+2*p+1}")
    a(f"s_add_u32 s57, s30, 0x{WS['X1F'][0]:x}")
    a(f"s_add_u32 s58, s31, 0x{WS['X1F'][0]:x}")
    def pack5(pr):
        if pr < 2:
            P = O + 4 * pr
            for h in range(2):
                X = ACC + 4 * (2 * pr + h)
                a(f"v_cvt_pk_bf16_f32 v{P+2*h}, v{X}, v{X+1}")
                a(f"v_cvt_pk_bf16_f32 v{P+2*h+1}, v{X+2}, v{X+3}")
            swap_pair(a, P)
        else:
            P = O + 8
            a(f"v_cvt_pk_bf16_f32 v{P}, v{ACS}, v{ACS+1}")
            a(f"v_cvt_pk_bf16_f32 v{P+1}, v{ACS+2}, v{ACS+3}")
        return P
    for pr in range(3):
        P = pack5(pr)
        n = 4 if pr < 2 else 2
        addres(P, n, XK + 4 * pr, dst=XK + 4 * pr)
        if pr < 2: st2(f"buffer_store_dwordx4 v[{XK+4*pr}:{XK+4*pr+3}], v{VP+pr}, s[8:11], s57 offen sc1")
        else: st2(f"buffer_store_dwordx2 v[{XK+8}:{XK+9}], v22, s[8:11], s58 offen sc1")
    a.stamp2(5)
    w4a = H["w4"](range(20))
    publish(f"s_lshl_b32 s56, s7, 8\ns_add_u32 s56, s56, {C_G2*256}", pre=w3bl[14:] + w4a[:4])
    a.stamp2(6)
    refetch([(VP, 57, 0, 4), (VP + 1, 57, 0, 4), (22, 58, 0, 2)])
    VH = 24
    out_addrs(False, 48, base=VH, shared=False)
    a("s_lshl_b32 s52, s7, 2")
    a("s_add_u32 s52, s52, s3")
    a(f"s_mul_i32 s53, s52, {48*1024}")
    a(f"s_mul_i32 s52, s52, {20*1024}")
    a("s_lshl_b32 s54, s22, 9")
    a(f"s_add_u32 s54, s54, 0x{WS['H3F'][0]:x}")
    a("s_lshl_b32 s55, s23, 9")
    a(f"s_add_u32 s55, s55, 0x{WS['H3F'][0]:x}")
    rest = list(w4a[4:14])
    for s in range(20):
        for jj in range(2):
            d = CS3 + 4 * jj
            a(f"{MF} v[{d}:{d+3}], {Q(40+2*s+jj)}, v[{ONES}:{ONES+3}], {'0' if s == 0 else f'v[{d}:{d+3}]'}")
            if jj == 0 and rest and s % 2 == 0: a(rest.pop(0))
    assert not rest
    a("s_waitcnt vmcnt(10)")
    for s in range(20):
        d = CS3 + 8
        a(f"{MF} v[{d}:{d+3}], {Q(s)}, v[{ONES}:{ONES+3}], {'0' if s == 0 else f'v[{d}:{d+3}]'}")
    await_(f"s_lshl_b32 s59, s7, 8\ns_add_u32 s59, s59, {C_G2*256}\nv_mov_b32 v2, s59\nv_mov_b32 v3, 8")
    a.stamp2(7)
    def mf3(p, b):
        out = []
        for jj in range(2):
            for tl in range(4):
                d = ACC + 16 * jj + 4 * tl
                c = "0" if p == 0 else f"v[{d}:{d+3}]"
                out.append(f"{MF} v[{d}:{d+3}], {Q(40+2*p+jj)}, v[{b+4*tl}:{b+4*tl+3}], {c}")
        c1 = "0" if p == 0 else f"v[{S1}:{S1+3}]"
        c2 = "0" if p == 0 else f"v[{S2}:{S2+3}]"
        out.append(f"{MF} v[{S1}:{S1+3}], v[{ONES}:{ONES+3}], v[{b}:{b+3}], {c1}")
        out.append(f"{MF} v[{S2}:{S2+3}], v[{b}:{b+3}], v[{b}:{b+3}], {c2}")
        return out
    w4s = H["wsh_dma"]("WP4", 27, 48, WSH, 12)
    w4s = w4a[14:] + w4s
    hook3 = bg_hook(w4s, 6, 15, 2)
    gloop(20, [2, 4, 8, 12, 16, 20], 8, lambda p: [8 + 2*p, 9 + 2*p] if p < 6 else [],
          frag_dma(52, lambda p: WS['X1F'][0] + p * 1024), False, None, mf3, [1, 1, 1, 1, 2, 2, 2, 2, 2, 1], hook=hook3)
    assert not w4s
    a.stamp2(8)
    a("s_lshl_b32 s59, s3, 8")
    a(f"s_add_u32 s59, s59, {STAT}")
    a("v_lshl_add_u32 v3, v4, 4, s59")
    a("s_nop 5")
    stats_calc(a, S1, S2, 4, 5, T, False, 3)
    a("s_waitcnt lgkmcnt(0)")
    a("s_barrier")
    read_stats(AB)
    a("s_waitcnt lgkmcnt(0)")
    def epi3(jj):
        for pr in range(2):
            P = O + 4 * pr
            for h in range(2):
                tl = 2 * pr + h
                ln_apply_gelu(a, ACC + 16 * jj + 4 * tl, AB + 2 * tl, CS3 + 4 * jj, T, CG, P + 2 * h)
            swap_pair(a, P)
            if jj < 2: st2(f"buffer_store_dwordx4 v[{P}:{P+3}], v{VH+pr}, s[8:11], s54 offen offset:{512*jj} sc1")
            else: st2(f"buffer_store_dwordx4 v[{P}:{P+3}], v{VH+pr}, s[8:11], s55 offen sc1")
    G.wstate = None
    w4b = H["w4"](range(20, 48))
    for t in w4b[:8]: a(t)
    w4c = w4b[20:]
    w4b = w4b[8:20]
    epi3(0); epi3(1)
    a.stamp2(9)
    a("s_nop 1")
    nb = 0
    for p in (0, 1):
        for r in reads(p, False, None): a(r)
    a("s_waitcnt lgkmcnt(4)")
    for p in range(20):
        b = FR + 20 * (p % 3)
        rd = reads(p + 2, False, None) if p + 2 < 20 else []
        if p == 12:
            publish(f"s_lshl_b32 s56, s7, 8\ns_add_u32 s56, s56, {C_G3A*256}", pre=["s_nop 0"] * 0) if False else None
            a(f"s_waitcnt vmcnt({nb})")
            a("s_barrier")
            l = a.newlabel("PUB")
            a("s_cmp_lg_u32 s3, 0")
            a(f"s_cbranch_scc1 {l}")
            a(f"s_lshl_b32 s56, s7, 8\ns_add_u32 s56, s56, {C_G3A*256}")
            arrive(a, 56)
            a.label(l)
            refetch([(VH, 54, 0, 4), (VH + 1, 54, 0, 4), (VH, 54, 512, 4), (VH + 1, 54, 512, 4)])
        for tl in range(4):
            d = ACC + 32 + 4 * tl
            c = "0" if p == 0 else f"v[{d}:{d+3}]"
            a(f"{MF} v[{d}:{d+3}], {Q(p)}, v[{b+4*tl}:{b+4*tl+3}], {c}")
            if rd: a(rd[tl])
            if tl == 0 and w4b:
                a(w4b.pop(0)); nb += 1
        if p + 1 < 20: a(f"s_waitcnt lgkmcnt({4 if p + 2 < 20 else 0})")
    assert not w4b
    a.stamp2(10)
    a("s_nop 7")
    epi3(2)
    publish(f"s_lshl_b32 s56, s7, 8\ns_add_u32 s56, s56, {C_G3B*256}")
    a.stamp2(11)
    refetch([(VH, 55, 0, 4), (VH + 1, 55, 0, 4)])
    for pr in range(2):
        a(f"v_mul_u32_u24 v{24+pr}, 1280, v{16+pr}")
        a(f"v_lshrrev_b32 v{T}, 1, v5")
        a(f"v_lshl_add_u32 v{24+pr}, v{T}, 4, v{24+pr}")
    a("v_mul_u32_u24 v26, 1280, v18")
    a("v_lshl_add_u32 v26, v5, 3, v26")
    srd(a, 12, 48, 0, ACT)
    await_(f"s_lshl_b32 s59, s7, 8\ns_add_u32 s59, s59, {C_G3A*256}\nv_mov_b32 v2, s59\nv_mov_b32 v3, 8")
    a.stamp2(12)
    a("s_lshl_b32 s59, s7, 8")
    a(f"s_add_u32 s59, s59, {C_G3B*256}")
    a("v_mov_b32 v2, s59")
    a("v_mov_b32 v3, 8")
    P4 = 16
    h4bg = bg_hook(w4c, 18, 26, 1)
    def hook4(p):
        if 18 <= p < 26: return h4bg(p)
        if p == 8:
            return [("buffer_load_dword v7, v2, s[8:11], 0 offen sc1", True)]
        if p == 32 - P4:
            a("s_waitcnt vmcnt(8)")
            poll(a, 2, 3, 7, pre_loaded=True)
        return []
    gloop(48, [2, 4] + list(range(8, 49, 4)), 12,
          lambda p: ([12 + 2*p, 13 + 2*p] if p < 4 else ([p + P4] if p + P4 < 48 else [])),
          frag_dma(53, lambda p: WS['H3F'][0] + ord4[p] * 1024), False, lambda p: ord4[p] * 1024,
          mfma5(lambda p: 20 + p, False), X5, hook=hook4)
    a.stamp2(13)
    a("s_lshl_b32 s61, s17, 5")
    a("s_lshl_b32 s60, s16, 5")
    a("s_nop 5")
    for pr in range(3):
        P = pack5(pr)
        n = 4 if pr < 2 else 2
        addres(P, n, XK + 4 * pr)
        addres(P, n, HK + 4 * pr)
        if pr < 2: a(f"buffer_store_dwordx4 v[{P}:{P+3}], v{24+pr}, s[12:15], s60 offen")
        else: a(f"buffer_store_dwordx2 v[{P}:{P+1}], v26, s[12:15], s61 offen")
```

```python
L, D, N, F = 2048, 640, 192, 1536
def _al(x, a=4096): return (x + a - 1) // a * a
_off = 0
WS = {}
def _alloc(name, size):
    global _off
    WS[name] = (_off, size)
    _off = _al(_off + size)
ACT = L * D * 2
_alloc("CNT", 208 * 256)
_alloc("U2", ACT)
_alloc("X2", ACT)
_alloc("HT", ACT)
_alloc("WP1", D * D * 2)
_alloc("WP2", D * D * 2)
_alloc("WP3", D * F * 2)
_alloc("WP4", D * F * 2)
_alloc("HF", ACT)
_alloc("RS", L * 8)
_alloc("H1F", ACT)
_alloc("X1F", ACT)
_alloc("H3F", L * F * 2)
WS_TOTAL = _off
C_A, C_C, C_G1, C_G2, C_G3A, C_G3B, C_B = 0, 136, 16, 32, 64, 96, 128
C_B2 = 24
R_A, R_B, R_C, R_B2 = 8, 144, 152, 160
if __name__ == "__main__":
    for k, v in WS.items(): print(k, hex(v[0]), v[1])
    print(hex(WS_TOTAL))
```

```python
class Asm:
    def __init__(self):
        self.lines = []
        self._lbl = 0
    def __call__(self, s):
        for ln in s.strip("\n").split("\n"):
            self.lines.append("    " + ln.strip())
    def raw(self, s):
        self.lines.append(s)
    def label(self, l):
        self.lines.append(l + ":")
    def newlabel(self, p="L"):
        self._lbl += 1
        return f"{p}_{self._lbl}"
    def comment(self, s):
        self.lines.append("    ; " + s)
    diag = False
    kidx = 0
    def stamp(self, slot, real=False):
        if not self.diag: return
        self("s_memrealtime s[76:77]" if real else "s_memtime s[76:77]")
        self("s_waitcnt lgkmcnt(0)")
        self(f"s_mov_b32 s{80+slot}, s76")
    big = False
    vdiag = 191
    wshift = 2
    def stamp2(self, slot):
        if not self.diag: return
        self("s_memtime s[76:77]")
        self("s_waitcnt lgkmcnt(0)")
        self(f"v_writelane_b32 v{self.vdiag}, s76, {16+slot}")
    def start(self):
        if not self.diag: return
        for i in range(16): self(f"s_mov_b32 s{80+i}, 0")
        self.stamp(0, True)
        self.stamp(2)
    def endk(self):
        if self.diag:
            self("s_waitcnt vmcnt(0) lgkmcnt(0)")
            self.stamp(3)
            self.stamp(1, True)
            self("s_mov_b64 exec, -1")
            self("s_add_u32 s72, s40, 0x8000000")
            self("s_addc_u32 s73, s41, 0")
            self("s_mov_b32 s74, 0x1000000")
            self("s_mov_b32 s75, 0x00020000")
            vo = self.vdiag if self.big else 2
            for i in range(16): self(f"v_writelane_b32 v{vo}, s{80+i}, {i}")
            self(f"s_add_u32 s76, s2, {self.kidx*1024}")
            self(f"s_lshl_b32 s76, s76, {self.wshift}")
            self("s_add_u32 s76, s76, s3")
            self(f"s_lshl_b32 s76, s76, {7 if self.big else 6}")
            self("v_mbcnt_lo_u32_b32 v3, -1, 0")
            self("v_mbcnt_hi_u32_b32 v3, -1, v3")
            self(f"v_cmp_gt_u32 vcc, {32 if self.big else 16}, v3")
            self("v_lshlrev_b32 v3, 2, v3")
            self("s_and_saveexec_b64 s[78:79], vcc")
            self(f"buffer_store_dword v{vo}, v3, s[72:75], s76 offen")
        self("s_endpgm")
    def text(self):
        return "\n".join(self.lines) + "\n"

def vr(b, n=1):
    return f"v{b}" if n == 1 else f"v[{b}:{b+n-1}]"
def ar(b, n=1):
    return f"a{b}" if n == 1 else f"a[{b}:{b+n-1}]"
def sr(b, n=1):
    return f"s{b}" if n == 1 else f"s[{b}:{b+n-1}]"

import struct
def f2u(x):
    return struct.unpack("<I", struct.pack("<f", x))[0]
def fhex(x):
    return "0x%08x" % f2u(x)

def srd(a, d, base, off, size):
    if off:
        a(f"s_add_u32 s{d}, s{base}, 0x{off:x}")
        a(f"s_addc_u32 s{d+1}, s{base+1}, 0")
    else:
        a(f"s_mov_b32 s{d}, s{base}")
        a(f"s_mov_b32 s{d+1}, s{base+1}")
    a(f"s_mov_b32 s{d+2}, 0x{size:x}")
    a(f"s_mov_b32 s{d+3}, 0x00020000")

def kernel_begin(a, name):
    a.raw(f".globl {name}")
    a.raw(".p2align 8")
    a.raw(f".type {name},@function")
    a.label(name)

def kernel_desc(name, vgpr, accum, sgpr=102):
    return f""".amdhsa_kernel {name}
  .amdhsa_next_free_vgpr {vgpr}
  .amdhsa_next_free_sgpr {sgpr}
  .amdhsa_accum_offset {accum}
  .amdhsa_group_segment_fixed_size 0
  .amdhsa_kernarg_size 136
  .amdhsa_user_sgpr_count 2
  .amdhsa_user_sgpr_kernarg_segment_ptr 1
  .amdhsa_system_sgpr_workgroup_id_x 1
.end_amdhsa_kernel
"""
```

```python
from asmlib import *
from layout_d import *
import math
from kg import rbf1, rbf2, MASK
from kg import swap_pair
def conv_epi(a, Y, U, X, DS, T, out):
    def unp(d, s):
        for m in range(2):
            a(f"v_lshlrev_b32 v{d+2*m}, 16, v{s+m}")
            a(f"v_and_b32 v{d+2*m+1}, s{MASK}, v{s+m}")
    def cv(d, s):
        a(f"v_cvt_pk_bf16_f32 v{d}, v{s}, v{s+1}")
        a(f"v_cvt_pk_bf16_f32 v{d+1}, v{s+2}, v{s+3}")
    def add(d, s):
        for p in (0, 2): a(f"v_pk_add_f32 v[{d+p}:{d+p+1}], v[{d+p}:{d+p+1}], v[{s+p}:{s+p+1}]")
    unp(T, U)
    for p in (0, 2): a(f"v_pk_mul_f32 v[{T+p}:{T+p+1}], v[{T+p}:{T+p+1}], v[{DS}:{DS+1}] op_sel_hi:[1,0]")
    cv(T + 4, T); cv(T + 6, Y)
    unp(T, T + 4); unp(Y, T + 6)
    add(Y, T)
    cv(T + 4, Y)
    unp(T, T + 4); unp(Y, X)
    add(Y, T)
    cv(out, Y)
LOG2E = 1.4426950408889634
SPIN = 20000
MF = "v_mfma_f32_16x16x32_bf16"

KC = 4160
SLOT = 4 * KC
LN_ROW = 1344
LN_U, LN_X = 0, 8 * LN_ROW
PK = 129024
UPL = 3 * SLOT
UPS = 3840
XPL = UPL + 4 * UPS
XPS = 3072
KGT = XPL + 4 * XPS
KG_LANE = 240
KG_WAVE = 64 * KG_LANE
TT = KGT + 3 * KG_WAVE
TTS = 1664
RED = KGT
LFLAG = 128768
LDS_TOTAL = 163840
STAT = 81920
WSH = 98304

def Q(q):
    return f"a[{4*q}:{4*q+3}]" if q < 64 else f"v[{192+4*(q-64)}:{192+4*(q-64)+3}]"

class Gen:
    def __init__(self, a):
        self.a = a
        self.wstate = None
    def wl(self, q, base, const):
        out = []
        hi = const >> 12
        if self.wstate != (base, hi):
            out.append(f"s_add_u32 s62, s{base}, {hi << 12}")
            self.wstate = (base, hi)
        out.append(f"buffer_load_dwordx4 {Q(q)}, v6, s[8:11], s62 offen offset:{const & 4095}")
        return "\n".join(out)

def arrive(a, soff, va=2, vb=3):
    a(f"v_mov_b32 v{va}, 0")
    a(f"v_mov_b32 v{vb}, 1")
    a("s_mov_b64 exec, 1")
    a(f"buffer_atomic_add v{vb}, v{va}, s[8:11], s{soff} offen sc1")
    a("s_mov_b64 exec, -1")

def arrive2_issue(a, cnt, vr):
    a("s_lshl_b32 s60, s4, 8")
    if cnt: a(f"s_add_u32 s60, s60, {cnt*256}")
    a("v_mov_b32 v2, 0")
    a(f"v_mov_b32 v{vr}, 1")
    a("s_mov_b64 exec, 1")
    a(f"buffer_atomic_add v{vr}, v2, s[8:11], s60 offen sc0 sc1")
    a("s_mov_b64 exec, -1")

def arrive2_finish(a, rep, vr):
    l = a.newlabel("NOTLAST")
    a(f"v_readfirstlane_b32 s60, v{vr}")
    a("s_nop 3")
    a("s_cmp_lg_u32 s60, 31")
    a(f"s_cbranch_scc1 {l}")
    a("v_mov_b32 v3, 1")
    a(f"s_mov_b32 s60, {rep*256}")
    a("s_mov_b64 exec, 0xff")
    a("buffer_atomic_add v3, v99, s[8:11], s60 offen sc1")
    a("s_mov_b64 exec, -1")
    a.label(l)

def rep_addr(a, rep, voff, vthr):
    a("s_lshl_b32 s60, s4, 8")
    a(f"s_add_u32 s60, s60, {rep*256}")
    a(f"v_mov_b32 v{voff}, s60")
    a(f"v_mov_b32 v{vthr}, 8")

def poll(a, voff, vthr, vv, srd="s[8:11]", pre_loaded=False):
    l, d = a.newlabel("POLL"), a.newlabel("POLLD")
    if pre_loaded:
        a(f"v_cmp_ge_u32 vcc, v{vv}, v{vthr}")
        a("s_cmp_eq_u64 vcc, -1")
        a(f"s_cbranch_scc1 {d}")
    a(f"s_mov_b32 s63, {SPIN}")
    a.label(l)
    a(f"buffer_load_dword v{vv}, v{voff}, {srd}, 0 offen sc1")
    a("s_waitcnt vmcnt(0)")
    a(f"v_cmp_ge_u32 vcc, v{vv}, v{vthr}")
    a("s_cmp_eq_u64 vcc, -1")
    a(f"s_cbranch_scc1 {d}")
    a("s_sleep 2")
    a("s_sub_u32 s63, s63, 1")
    a("s_cmp_lg_u32 s63, 0")
    a(f"s_cbranch_scc1 {l}")
    a.label(d)

def red32_1(a, ra, ta):
    a("s_nop 1")
    for ctrl in ("quad_perm:[1,0,3,2]", "quad_perm:[2,3,0,1]", "row_half_mirror", "row_mirror"):
        a(f"v_add_f32_dpp v{ra}, v{ra}, v{ra} {ctrl} row_mask:0xf bank_mask:0xf")
        a("s_nop 1")
    a(f"v_mov_b32 v{ta}, v{ra}")
    a("s_nop 1")
    a(f"v_permlane16_swap_b32 v{ra}, v{ta}")
    a("s_nop 0")
    a(f"v_add_f32 v{ra}, v{ra}, v{ta}")

def pack_decode(a):
    a("s_mov_b32 s68, s32\ns_mov_b32 s69, s33")
    a(f"s_mov_b32 s70, {D*D*2}\ns_mov_b32 s71, 0x00020000")
    a("s_movk_i32 s65, 1280\ns_movk_i32 s97, 10")
    a(f"s_mov_b32 s98, 0x{(2**32+9)//10:x}\ns_movk_i32 s96, {20*1024}")
    a(f"s_mov_b32 s67, 0x{WS['WP1'][0]:x}\ns_mov_b32 s99, 0")
    a("s_cmp_ge_u32 s64, 200")
    a("s_cselect_b32 s68, s34, s68\ns_cselect_b32 s69, s35, s69")
    a(f"s_cselect_b32 s67, 0x{WS['WP2'][0]:x}, s67\ns_cselect_b32 s99, 200, s99")
    a("s_cmp_ge_u32 s64, 400")
    a("s_cselect_b32 s68, s36, s68\ns_cselect_b32 s69, s37, s69")
    a(f"s_cselect_b32 s67, 0x{WS['WP3'][0]:x}, s67\ns_cselect_b32 s99, 400, s99")
    a(f"s_cselect_b32 s70, {D*F*2}, s70\ns_cselect_b32 s65, 3072, s65\ns_cselect_b32 s97, 24, s97")
    a(f"s_cselect_b32 s98, 0x{(2**32+23)//24:x}, s98")
    a("s_cmp_ge_u32 s64, 880")
    a("s_cselect_b32 s68, s38, s68\ns_cselect_b32 s69, s39, s69")
    a(f"s_cselect_b32 s67, 0x{WS['WP4'][0]:x}, s67\ns_cselect_b32 s99, 880, s99")
    a(f"s_cselect_b32 s65, 1280, s65\ns_cselect_b32 s97, 10, s97")
    a(f"s_cselect_b32 s98, 0x{(2**32+9)//10:x}, s98\ns_cselect_b32 s96, {48*1024}, s96")
    a("s_sub_u32 s99, s64, s99")
    a("s_mul_hi_u32 s100, s99, s98")
    a("s_mul_i32 s101, s100, s97")
    a("s_sub_u32 s101, s99, s101")
    a("s_mul_i32 s66, s100, s65")
    a("s_lshl_b32 s66, s66, 5")
    a("s_lshl_b32 s99, s101, 7")
    a("s_add_u32 s66, s66, s99")
    a("s_mul_i32 s99, s101, s96")
    a("s_lshl_b32 s99, s99, 2")
    a("s_add_u32 s67, s67, s99")
    a("s_lshl_b32 s99, s100, 10")
    a("s_add_u32 s67, s67, s99")

def pack_issue(a, lds_s, guard=False):
    pack_decode(a)
    if guard:
        a("s_cmp_ge_u32 s64, 1360")
        a("s_cselect_b32 s70, 0, s70")
        a("s_cselect_b32 s67, 0x7ff00000, s67")
    a("v_lshrrev_b32 v2, 3, v1")
    a("v_mul_lo_u32 v2, v2, s65")
    a("v_and_b32 v3, 7, v1")
    a("v_lshl_add_u32 v2, v3, 4, v2")
    a("s_lshl_b32 s99, s65, 3")
    for m in range(4):
        a(f"s_add_u32 m0, s{lds_s}, {m*1024}")
        a("s_add_u32 s66, s66, s99" if m else "s_nop 0")
        a("buffer_load_dwordx4 v2, s[68:71], s66 offen lds")

def pack_finish(a, vaddr, off, R, sdst, sks):
    for jj in range(4):
        for h in range(2):
            a(f"ds_read_b64_tr_b16 v[{R+4*jj+2*h}:{R+4*jj+2*h+1}], v{vaddr} offset:{off + h*512 + jj*32}")
    for jj in range(4):
        a(f"s_waitcnt lgkmcnt({6-2*jj})")
        a(f"buffer_store_dwordx4 v[{R+4*jj}:{R+4*jj+3}], v6, s[8:11], s{sdst} offen sc1")
        if jj < 3: a(f"s_add_u32 s{sdst}, s{sdst}, s{sks}")

def l2_prefetch(a, start, size, vt, vd, nw=4):
    lines = size // 128
    per_wave = (lines + 32*nw - 1) // (32*nw)
    n = (per_wave + 63) // 64
    out = []
    out.append("s_lshr_b32 s59, s2, 3")
    out.append(f"s_mul_i32 s59, s59, {nw}")
    out.append("s_add_u32 s59, s59, s3")
    out.append(f"s_mul_i32 s59, s59, {per_wave*128}")
    out.append(f"s_add_u32 s59, s59, 0x{start:x}")
    for t in out: a(t)
    for m in range(n):
        a(f"v_add_u32 v{vt}, {64*m}, v1")
        a(f"v_min_u32 v{vt}, {per_wave-1}, v{vt}")
        a(f"v_lshlrev_b32 v{vt}, 7, v{vt}")
        a(f"buffer_load_dword v{vd}, v{vt}, s[8:11], s59 offen")
    return n

class Rec:
    def __init__(self, a): self.l = []; self.a = a
    def __call__(self, s):
        for ln in s.strip("\n").split("\n"): self.l.append(ln.strip())
    def newlabel(self, p): return self.a.newlabel(p)

def conv_loop(a, units, FR, extra, hook=None):
    def loads(i):
        d0, vA, vB, ACC, first = units[i]
        base = FR + 32 * (i & 1)
        def lb(c): return f"ds_read_b128 v[{base+16+4*c}:{base+16+4*c+3}], v{vB} offset:{48*(15-d0) + 768*c}"
        def la(q):
            o = 64 * (15 - d0) + 1024 * (3 - q)
            return (f"ds_read_b64 v[{base+4*q}:{base+4*q+1}], v{vA} offset:{o}\n"
                    f"ds_read_b64 v[{base+4*q+2}:{base+4*q+3}], v{vA} offset:{o+8}")
        return [la(0), lb(0) + "\n" + lb(1), lb(2) + "\n" + lb(3), la(1), la(2), la(3)]
    for f in loads(0): a(f)
    a("s_waitcnt lgkmcnt(4)")
    n = len(units)
    order = [(q, c) for q in range(4) for c in range(q, 4)]
    for i in range(n):
        d0, vA, vB, ACC, first = units[i]
        base = FR + 32 * (i & 1)
        if hook: hook(i)
        nx = loads(i + 1) if i + 1 < n else None
        def X():
            if extra and extra[0][0] <= i: a(extra.pop(0)[1])
        for k, (q, c) in enumerate(order):
            cc = "0" if (first and q == 0) else f"v[{ACC+4*c}:{ACC+4*c+3}]"
            a(f"{MF} v[{ACC+4*c}:{ACC+4*c+3}], v[{base+4*q}:{base+4*q+3}], v[{base+16+4*(c-q)}:{base+16+4*(c-q)+3}], {cc}")
            if k in (0, 1, 2, 3) and nx: a(nx[k])
            if k == 4: X()
            if k == 5 and nx: a(nx[4])
            if k == 6:
                a(f"s_waitcnt lgkmcnt({10 if nx else 0})")
            if k == 7 and nx: a(nx[5])
            if k == 8: X()
            if k == 9 and nx: a("s_waitcnt lgkmcnt(4)")

def gen_d(a, name):
    G = Gen(a)
    kernel_begin(a, name)
    a("s_cmp_ge_u32 s2, 256")
    a("s_cbranch_scc1 D_EXIT")
    a.start()
    a("s_load_dwordx16 s[16:31], s[0:1], 0")
    a("s_load_dwordx2 s[40:41], s[0:1], 128")
    a("s_load_dwordx8 s[32:39], s[0:1], 80")
    a("s_load_dwordx2 s[46:47], s[0:1], 64")
    a("s_load_dwordx4 s[48:51], s[0:1], 112")
    a("s_getpc_b64 s[64:65]")
    a.label("D_PC")
    a("v_and_b32 v1, 63, v0")
    a("v_lshrrev_b32 v2, 6, v0")
    a(f"s_mov_b32 s{MASK}, 0xffff0000")
    a("v_readfirstlane_b32 s3, v2")
    a("s_and_b32 s4, s2, 7")
    a("s_lshr_b32 s5, s2, 6")
    a("s_lshr_b32 s6, s2, 3")
    a("s_lshl_b32 s52, s4, 5")
    a("s_add_u32 s52, s52, s6")
    a("s_and_b32 s6, s6, 7")
    a("s_lshl_b32 s7, s4, 2")
    a("s_add_u32 s7, s7, s5")
    a("s_and_b32 s53, s52, 1")
    a("s_lshr_b32 s52, s52, 1")
    a("s_mul_i32 s52, s52, 5")
    a("s_lshl_b32 s54, s53, 1")
    a("s_add_u32 s52, s52, s54")
    a("s_and_b32 s54, s2, 63")
    a("s_lshl_b32 s54, s54, 5")
    a("s_lshl_b32 s55, s5, 3")
    a("s_add_u32 s54, s54, s55")
    a("v_lshrrev_b32 v7, 5, v0")
    a("v_and_b32 v8, 31, v0")
    a("v_add_u32 v9, s54, v7")
    a("v_mul_u32_u24 v9, 1280, v9")
    a("v_lshl_add_u32 v9, v8, 3, v9")
    a("s_add_u32 s54, s52, s3")
    a("s_mul_i32 s55, s54, 384")
    a("v_lshl_add_u32 v10, v1, 1, s55")
    a("s_lshl_b32 s55, s54, 1")
    a("v_mov_b32 v11, s55")
    a("s_waitcnt lgkmcnt(0)")
    a.stamp(4)
    XA, FA = 12, 22
    srd(a, 8, 40, 0, WS_TOTAL)
    a("s_cmp_lg_u32 s3, 3")
    a("s_cbranch_scc1 D_NOINIT")
    a("s_cmp_ge_u32 s2, 13")
    a("s_cbranch_scc1 D_NOINIT")
    a("v_lshrrev_b32 v2, 3, v1")
    a("v_lshlrev_b32 v2, 8, v2")
    a("v_and_b32 v3, 7, v1")
    a("v_lshl_add_u32 v2, v3, 4, v2")
    for r in range(4): a(f"v_mov_b32 v{44+r}, 0")
    a("s_lshl_b32 s59, s2, 12")
    a("buffer_store_dwordx4 v[44:47], v2, s[8:11], s59 offen sc1")
    a("buffer_store_dwordx4 v[44:47], v2, s[8:11], s59 offen offset:2048 sc1")
    a.label("D_NOINIT")
    for i in range(5):
        a(f"global_load_dwordx2 v[{XA+2*i}:{XA+2*i+1}], v9, s[16:17] offset:{256*i}")
    a("s_barrier")
    PR = 100
    a("s_cmp_eq_u32 s3, 3")
    a("s_cbranch_scc1 D_W3_ISSUE")
    a(f"global_load_ushort v{PR+18}, v11, s[30:31]")
    for p in range(3):
        for i in range(6):
            a(f"global_load_ushort v{PR+6*p+i}, v10, s[{18+2*i}:{19+2*i}] offset:{128*p}")
    a("s_branch D_ISSUED")
    a.label("D_W3_ISSUE")
    a("s_cmp_lg_u32 s2, 0")
    a("s_cbranch_scc1 D_W3_PF")
    a("s_waitcnt vmcnt(5)")
    a("v_mov_b32 v2, 1")
    a("v_mov_b32 v3, 0")
    a("global_store_dword v3, v2, s[50:51] sc1")
    a.stamp(15)
    a("s_branch D_ISSUED")
    a.label("D_W3_PF")
    a("s_lshr_b32 s59, s2, 3")
    a("s_sub_u32 s59, s59, 1")
    a("s_cmp_lt_u32 s59, 6")
    a("s_cselect_b32 s60, 7, 0")
    a("s_cselect_b32 s59, s59, 0")
    a("s_lshl_b32 s59, s59, 13")
    a("v_lshlrev_b32 v2, s60, v1")
    a("v_and_b32 v2, 0xffffff80, v2")
    a("v_add_u32 v2, s59, v2")
    a("v_min_u32 v2, D_CODE_END-D_PC-4, v2")
    a("global_load_dword v250, v2, s[64:65]")
    a.label("D_ISSUED")
    a("v_and_b32 v4, 15, v1")
    a("v_lshrrev_b32 v5, 4, v1")
    a("v_lshlrev_b32 v6, 4, v1")
    a(f"v_mul_u32_u24 v9, {LN_ROW}, v7")
    a("v_lshl_add_u32 v9, v8, 3, v9")
    a("v_mul_u32_u24 v2, 1366, v0")
    a("v_lshrrev_b32 v2, 16, v2")
    a("v_mul_u32_u24 v3, 48, v2")
    a("v_sub_u32 v3, v0, v3")
    a(f"v_mul_u32_u24 v2, {UPS}, v2")
    a("v_lshl_add_u32 v2, v3, 4, v2")
    for r in range(4): a(f"v_mov_b32 v{44+r}, 0")
    a("v_cmp_gt_u32 vcc, 192, v0")
    a("s_and_saveexec_b64 s[44:45], vcc")
    a(f"ds_write_b128 v2, v[44:47] offset:{UPL}")
    a("s_mov_b64 exec, s[44:45]")
    a("s_min_u32 s55, s3, 2")
    a(f"s_mul_i32 s55, s55, {TTS}")
    a(f"s_add_u32 s55, s55, {TT}")
    a("v_and_b32 v2, 3, v1")
    a("v_lshl_add_u32 v2, v2, 4, s55")
    a("ds_write_b128 v2, v[44:47]")
    a(f"v_mov_b32 v90, {LFLAG}")
    a("ds_write_b32 v90, v44")
    GA = 120
    TB0 = TT + 64
    code128 = f2u(128.0) >> 16
    a("v_lshlrev_b32 v2, 3, v0")
    a("v_sub_u32 v2, 2047, v2")
    a("v_cvt_f32_i32 v42, v2")
    a("v_cmp_gt_i32 vcc, 256, v2")
    a("v_lshlrev_b32 v2, 1, v2")
    a(f"v_add_u32 v2, {TB0}, v2")
    a(f"s_mov_b32 s55, {(TB0 + 2*(128 - code128)) & 0xffffffff}")
    for i in range(0, 11, 2):
        a(f"v_add_f32 v43, {fhex(-float(i))}, v42")
        a(f"v_add_f32 v44, {fhex(-float(i+1))}, v42")
        a("v_cvt_pk_bf16_f32 v45, v43, v44")
        for k in range(2):
            if i + k > 10: continue
            a("v_and_b32 v43, 0xffff, v45" if k == 0 else "v_lshrrev_b32 v43, 16, v45")
            a("v_lshl_add_u32 v43, v43, 1, s55")
            a(f"v_add_u32 v44, {-2*(i+k)}, v2" if (i + k) else "v_mov_b32 v44, v2")
            a(f"v_cndmask_b32 v{GA+i+k}, v43, v44, vcc")
    VA, VB, VA2, VB2 = 92, 93, 94, 95
    a("s_lshr_b32 s54, s3, 1")
    a("s_add_u32 s54, s54, s53")
    a("s_and_b32 s55, s3, 1")
    a("s_lshl_b32 s56, s53, 1")
    a("s_sub_u32 s56, 2, s56")
    a("s_add_u32 s57, s52, s54")
    a("s_add_u32 s58, s52, s56")
    a("v_sub_u32 v2, 3, v4")
    a("v_and_b32 v2, 3, v2")
    a(f"v_mul_u32_u24 v2, {KC}, v2")
    a("v_lshl_add_u32 v2, v5, 4, v2")
    a("v_lshrrev_b32 v3, 2, v4")
    a("v_lshlrev_b32 v3, 3, v3")
    a("v_sub_u32 v2, v2, v3")
    a(f"v_add_u32 v2, {2*2044 - 64*15 - 1024*3}, v2")
    a(f"v_mul_u32_u24 v3, {UPS}, v5")
    a("v_mul_u32_u24 v42, 48, v4")
    a("v_add_u32 v3, v3, v42")
    a(f"v_add_u32 v3, {UPL + 768 - 48*15}, v3")
    a(f"s_mul_i32 s59, s54, {SLOT}")
    a("s_lshl_b32 s60, s55, 5")
    a("s_sub_u32 s59, s59, s60")
    a(f"v_add_u32 v{VA}, s59, v2")
    a("s_lshl_b32 s59, s54, 4")
    a(f"v_add_u32 v{VB}, s59, v3")
    a(f"s_mul_i32 s59, s56, {SLOT}")
    a("s_lshl_b32 s60, s53, 5")
    a("s_sub_u32 s59, s59, s60")
    a("s_lshl_b32 s60, s3, 8")
    a("s_sub_u32 s59, s59, s60")
    a("s_add_u32 s59, s59, 768")
    a(f"v_add_u32 v{VA2}, s59, v2")
    a("s_lshl_b32 s59, s56, 4")
    a("s_mul_i32 s60, s3, 192")
    a("s_sub_u32 s59, s59, s60")
    a("s_add_u32 s59, s59, 576")
    a(f"v_add_u32 v{VB2}, s59, v3")
    VUX = 96
    for m in range(3):
        a(f"v_add_u32 v2, {64*m}, v1")
        a("v_mul_u32_u24 v3, 21846, v2")
        a("v_lshrrev_b32 v3, 16, v3")
        a("v_mul_u32_u24 v42, 3, v3")
        a("v_sub_u32 v2, v2, v42")
        a("v_add_u32 v2, s52, v2")
        a(f"v_mul_u32_u24 v{VUX+m}, 10240, v3")
        a(f"v_lshl_add_u32 v{VUX+m}, v2, 4, v{VUX+m}")
    a("v_lshlrev_b32 v91, 10, v5")
    a("v_bfe_u32 v2, v1, 2, 2")
    a("v_lshl_add_u32 v91, v2, 7, v91")
    a("v_and_b32 v2, 3, v1")
    a("v_lshl_add_u32 v91, v2, 3, v91")
    a("s_lshl_b32 s61, s3, 13")
    a(f"s_add_u32 s61, s61, {PK}")
    a("v_add_u32 v91, s61, v91")
    a("v_and_b32 v99, 7, v1")
    a("v_lshlrev_b32 v99, 8, v99")
    a("s_lshl_b32 s59, s57, 1")
    a("v_mov_b32 v87, s59")
    a("s_lshl_b32 s59, s58, 1")
    a("v_mov_b32 v88, s59")
    EU, EX_, EU2, EX2, EH, EH2, ER, EW = 76, 77, 78, 79, 80, 81, 82, 83
    a("s_lshl_b32 s59, s3, 12")
    a(f"s_add_u32 s59, s59, {RED}")
    a(f"v_add_u32 v{EW}, s59, v6")
    a("s_lshl_b32 s59, s3, 10")
    a(f"s_add_u32 s59, s59, {RED}")
    a(f"v_add_u32 v{ER}, s59, v6")
    a("v_lshrrev_b32 v2, 1, v5")
    a("v_and_b32 v3, 1, v5")
    a("v_mul_u32_u24 v84, 48, v4")
    a("v_lshl_add_u32 v84, v3, 3, v84")
    a(f"v_mul_u32_u24 v85, {UPS}, v2")
    a("v_add_u32 v85, v85, v84")
    a(f"v_mul_u32_u24 v86, {XPS}, v2")
    a("v_add_u32 v86, v86, v84")
    def uxaddr(mt, pos, ntw, du, dx):
        a(f"s_mul_i32 s59, s{mt}, {2*UPS}")
        a(f"s_lshl_b32 s60, s{pos}, 4")
        if ntw:
            a("s_mul_i32 s61, s3, 768")
            a("s_add_u32 s60, s60, s61")
        a("s_add_u32 s59, s59, s60")
        a(f"v_add_u32 v{du}, s59, v85")
        a(f"s_mul_i32 s59, s{mt}, {2*XPS}")
        a("s_add_u32 s59, s59, s60")
        a(f"s_add_u32 s59, s59, {XPL}")
        a(f"v_add_u32 v{dx}, s59, v86")
    uxaddr(55, 54, False, EU, EX_)
    uxaddr(53, 56, True, EU2, EX2)
    a(f"v_lshlrev_b32 v{EH}, 10, v2")
    a(f"v_lshl_add_u32 v{EH}, v4, 4, v{EH}")
    a(f"v_lshl_add_u32 v{EH2}, v3, 3, v{EH}")
    a(f"v_lshl_add_u32 v{EH}, v3, 8, v{EH}")
    a("s_lshl_b32 s57, s57, 12")
    a("s_lshl_b32 s60, s55, 11")
    a("s_add_u32 s57, s57, s60")
    a(f"s_add_u32 s57, s57, 0x{WS['HT'][0]:x}")
    a("s_lshl_b32 s58, s58, 12")
    a("s_lshl_b32 s60, s53, 11")
    a("s_add_u32 s58, s58, s60")
    a("s_lshl_b32 s60, s3, 8")
    a("s_add_u32 s58, s58, s60")
    a(f"s_add_u32 s58, s58, 0x{WS['HT'][0]:x}")
    for r in range(8): a(f"v_accvgpr_write_b32 a{248+r}, v{76+r}")
    a("s_mul_i32 s16, s6, 5")
    a("s_add_u32 s17, s16, 4")
    a("s_add_u32 s16, s16, s3")
    a("s_lshl_b32 s18, s3, 10")
    a(f"s_mul_i32 s19, s16, {20*1024}")
    a(f"s_mul_i32 s20, s17, {20*1024}")
    a("s_mul_i32 s21, s3, 5120")
    a("s_add_u32 s20, s20, s21")
    a("s_mul_i32 s29, s6, 12")
    a("s_lshl_b32 s22, s3, 1")
    a("s_add_u32 s22, s22, s29")
    a("s_add_u32 s23, s29, s3")
    a("s_add_u32 s23, s23, 8")
    a(f"s_mul_i32 s24, s22, {20*1024}")
    a(f"s_mul_i32 s25, s23, {20*1024}")
    a(f"s_mul_i32 s26, s16, {48*1024}")
    a(f"s_mul_i32 s27, s17, {48*1024}")
    a("s_mul_i32 s28, s3, 12288")
    a("s_add_u32 s27, s27, s28")
    a("s_lshl_b32 s64, s3, 8")
    a("s_add_u32 s64, s64, s2")
    a("s_cmp_lt_u32 s64, 400")
    a("s_cselect_b32 s43, 1, 0")
    a("s_cbranch_scc0 D_B1DONE")
    a("s_lshl_b32 s61, s3, 13")
    a(f"s_add_u32 s61, s61, {PK}")
    pack_issue(a, 61)
    a("s_mov_b32 s31, s67")
    a("s_mov_b32 s30, s96")
    a.label("D_B1DONE")
    a("s_lshl_b32 s64, s2, 2")
    a("s_add_u32 s64, s64, s3")
    a("s_add_u32 s64, s64, 400")
    pack_decode(a)
    a("s_cmp_ge_u32 s64, 1360")
    a("s_cselect_b32 s70, 0, s70")
    a("s_cselect_b32 s67, 0x7ff00000, s67")
    a("v_lshrrev_b32 v89, 3, v1")
    a("v_mul_lo_u32 v89, v89, s65")
    a("v_and_b32 v3, 7, v1")
    a("v_lshl_add_u32 v89, v3, 4, v89")
    a("s_lshl_b32 s99, s65, 3")
    a("s_lshl_b32 s98, s3, 13")
    a(f"s_add_u32 s98, s98, {PK + 4096}")
    a.stamp(8)
    a("s_cmp_eq_u32 s3, 3")
    a("s_cbranch_scc0 D_XW")
    a("s_waitcnt vmcnt(1)")
    a("s_branch D_XW27")
    a.label("D_XW")
    a("s_cmp_eq_u32 s43, 1")
    a("s_cbranch_scc1 D_XW27")
    a("s_waitcnt vmcnt(19)")
    a.label("D_XW27")
    a("s_waitcnt vmcnt(23)")
    a.stamp(5)
    S, T, Qv, INV = 42, 44, 46, 48
    for m in range(10):
        a(f"v_lshlrev_b32 v{FA+2*m}, 16, v{XA+m}")
        a(f"v_and_b32 v{FA+2*m+1}, s{MASK}, v{XA+m}")
    a(f"v_pk_add_f32 v[{S}:{S+1}], v[{FA}:{FA+1}], v[{FA+2}:{FA+3}]")
    for m in range(2, 10):
        a(f"v_pk_add_f32 v[{S}:{S+1}], v[{S}:{S+1}], v[{FA+2*m}:{FA+2*m+1}]")
    a(f"v_add_f32 v{S}, v{S}, v{S+1}")
    red32_1(a, S, T)
    a(f"s_mov_b32 s59, {fhex(1.0/640)}")
    a(f"v_mul_f32 v{S}, s59, v{S}")
    for m in range(10):
        a(f"v_pk_add_f32 v[{T}:{T+1}], v[{FA+2*m}:{FA+2*m+1}], v[{S}:{S+1}] op_sel_hi:[1,0] neg_lo:[0,1] neg_hi:[0,1]")
        if m == 0: a(f"v_pk_mul_f32 v[{Qv}:{Qv+1}], v[{T}:{T+1}], v[{T}:{T+1}]")
        else: a(f"v_pk_fma_f32 v[{Qv}:{Qv+1}], v[{T}:{T+1}], v[{T}:{T+1}], v[{Qv}:{Qv+1}]")
    a(f"v_add_f32 v{Qv}, v{Qv}, v{Qv+1}")
    red32_1(a, Qv, T)
    a(f"v_mul_f32 v{Qv}, s59, v{Qv}")
    rbf2(a, S, Qv, T)
    a(f"v_add_f32 v{Qv}, {fhex(1e-5)}, v{Qv}")
    rbf1(a, Qv)
    a(f"v_sqrt_f32 v{Qv}, v{Qv}")
    for m in range(10):
        a(f"v_pk_add_f32 v[{FA+2*m}:{FA+2*m+1}], v[{FA+2*m}:{FA+2*m+1}], v[{S}:{S+1}] op_sel_hi:[1,0] neg_lo:[0,1] neg_hi:[0,1]")
    rbf1(a, Qv)
    a(f"v_rcp_f32 v{INV}, v{Qv}")
    for m in range(10):
        rbf2(a, FA + 2*m, FA + 2*m + 1, T)
        a(f"v_pk_mul_f32 v[{FA+2*m}:{FA+2*m+1}], v[{FA+2*m}:{FA+2*m+1}], v[{INV}:{INV+1}] op_sel_hi:[1,0]")
        a(f"v_cvt_pk_bf16_f32 v{50+m}, v{FA+2*m}, v{FA+2*m+1}")
        if m & 1:
            a(f"ds_write_b64 v9, v[{50+m-1}:{50+m}] offset:{LN_U + 256*(m//2)}")
    for i in range(5):
        a(f"ds_write_b64 v9, v[{XA+2*i}:{XA+2*i+1}] offset:{LN_X + 256*i}")
    a("s_waitcnt lgkmcnt(0)")
    a("s_barrier")
    a.stamp(6)
    a("global_load_ushort v87, v87, s[46:47]")
    a("global_load_ushort v88, v88, s[46:47]")
    def trstore(arr):
        R = 12
        for half in range(2):
            for p in range(5):
                pp_ = half * 5 + p
                for h in range(2):
                    d = R + 4 * p + 2 * h + 20 * half
                    a(f"ds_read_b64_tr_b16 v[{d}:{d+1}], v9 offset:{(LN_U, LN_X)[arr] + h*4*LN_ROW + pp_*128}")
            for p in range(5):
                pp_ = half * 5 + p
                d = R + 4 * p + 20 * half
                a(f"s_waitcnt lgkmcnt({8-2*p})")
                if pp_ % 4 == 0:
                    a(f"s_add_u32 s60, s59, {WS[('U2','X2')[arr]][0] + pp_*1024}")
                a(f"buffer_store_dwordx4 v[{d}:{d+3}], v6, s[8:11], s60 offen offset:{(pp_ % 4)*1024} sc1")
    a("s_cmp_eq_u32 s3, 3")
    a("s_cbranch_scc0 D_KGEN")
    srd(a, 12, 50, 0, 256)
    a("v_mov_b32 v76, 0")
    a("v_mov_b32 v77, 1")
    a("buffer_load_dword v78, v76, s[12:15], 0 offen sc1")
    a("v_bfe_u32 v2, v1, 2, 2")
    a(f"v_mul_u32_u24 v9, {LN_ROW}, v2")
    a("v_lshl_add_u32 v9, v5, 5, v9")
    a("v_and_b32 v2, 3, v1")
    a("v_lshl_add_u32 v9, v2, 3, v9")
    a("s_mul_i32 s59, s2, 10240")
    trstore(0)
    a("s_waitcnt vmcnt(0)")
    a.stamp(9)
    poll(a, 76, 77, 78, "s[12:15]", pre_loaded=True)
    arrive2_issue(a, C_A, 11)
    a.stamp(7)
    a("s_waitcnt vmcnt(0)")
    arrive2_finish(a, R_A, 11)
    trstore(1)
    rep_addr(a, R_A, 7, 8)
    poll(a, 7, 8, 11)
    a.stamp(10)
    for kq in range(4):
        a(f"s_mov_b32 s60, 0x{WS['U2'][0] + kq*64*10240:x}")
        for m in range(3):
            a(f"s_mov_b32 m0, {UPL + kq*UPS + 768 + m*1024}")
            a("s_nop 0")
            a(f"buffer_load_dwordx4 v{VUX+m}, s[8:11], s60 offen sc1 lds")
    a.label("D_JOIN")
    a("ds_read_b32 v11, v90")
    a("s_waitcnt lgkmcnt(0)")
    a("v_readfirstlane_b32 s60, v11")
    a("s_sleep 1")
    a("s_cmp_lt_u32 s60, 3")
    a("s_cbranch_scc1 D_JOIN")
    arrive2_issue(a, C_B, 104)
    a("s_branch D_KG_DONE")
    a.label("D_KGEN")
    a(f"s_mul_i32 s59, s3, {KG_WAVE}")
    a(f"s_add_u32 s59, s59, {KGT}")
    a(f"v_mul_u32_u24 v9, {KG_LANE}, v1")
    a("v_add_u32 v9, s59, v9")
    a("v_lshrrev_b32 v8, 5, v1")
    a("v_bfe_u32 v2, v1, 3, 1")
    a("v_lshl_add_u32 v2, v8, 2, v2")
    a(f"v_mul_u32_u24 v10, {KG_LANE}, v2")
    a("v_bfe_u32 v2, v1, 2, 1")
    a("v_mul_u32_u24 v2, 112, v2")
    a("v_add_u32 v10, v10, v2")
    a("v_bfe_u32 v2, v1, 4, 1")
    a("v_lshl_add_u32 v10, v2, 5, v10")
    a("v_and_b32 v2, 3, v1")
    a("v_lshl_add_u32 v10, v2, 3, v10")
    a("v_add_u32 v10, s59, v10")
    a("v_and_b32 v7, 31, v1")
    FRk, ACCk = 132, 12
    for r in range(16): a(f"v_mov_b32 v{ACCk+r}, 0")
    a("s_cmp_eq_u32 s43, 1")
    a("s_cbranch_scc1 D_PW9")
    a("s_waitcnt vmcnt(2)")
    a.label("D_PW9")
    a("s_waitcnt vmcnt(6)")
    LDT = PR + 18
    a(f"s_mov_b32 s60, {fhex(LOG2E)}")
    a(f"v_lshlrev_b32 v{LDT}, 16, v{LDT}")
    a(f"v_mul_f32 v{LDT}, s60, v{LDT}")
    a(f"v_exp_f32 v{LDT}, v{LDT}")
    a("s_nop 0")
    rbf1(a, LDT)
    a("s_mov_b32 s61, 0")
    ARE, AIM, BRE, BIM, CRE, CIM = range(28, 34)
    def cmul(d, x, y):
        a(f"v_pk_mul_f32 v[34:35], v[{x}:{x+1}], v[{y}:{y+1}] op_sel:[1,1] op_sel_hi:[1,0] neg_lo:[1,0]")
        a(f"v_pk_fma_f32 v[{d}:{d+1}], v[{x}:{x+1}], v[{y}:{y+1}], v[34:35] op_sel:[0,0,0] op_sel_hi:[0,1,1]")
    Wr, Z1, Z8, Z256, Z2, Z4, Z16, Z512, E0, E1, R2 = 36, 38, 40, 42, 44, 46, 48, 50, 52, 54, 56
    def ksetup():
        o = []
        for i in range(6): o.append(f"v_lshlrev_b32 v{28+i}, 16, v{PR+i}")
        for i in range(4): o.append(f"v_mul_f32 v{28+i}, v{LDT}, v{28+i}")
        o.append(f"v_mul_f32 v{ARE}, s60, v{ARE}")
        o.append(f"v_mul_f32 v{AIM}, 0.15915494, v{AIM}")
        o.append(f"v_mul_f32 v34, v{CIM}, v{BIM}")
        o.append(f"v_mul_f32 v35, v{CIM}, v{BRE}")
        o.append(f"v_fma_f32 v{Wr}, v{CRE}, v{BRE}, -v34")
        o.append(f"v_fma_f32 v{Wr+1}, v{CRE}, v{BIM}, v35")
        mv = [f"v_mov_b32 v{PR+i}, v{PR+6+i}" for i in range(12)]
        for (z, m) in ((Z1, 1.0), (Z8, 8.0), (Z256, 256.0)):
            o.append(f"v_mul_f32 v58, {fhex(m)}, v{ARE}")
            o.append(f"v_mul_f32 v59, {fhex(m)}, v{AIM}")
            o.append("v_exp_f32 v58, v58")
            o.append("v_fract_f32 v59, v59")
            o.append(f"v_cos_f32 v{z}, v59")
            o.append(f"v_sin_f32 v{z+1}, v59")
            o += mv[:4]; mv = mv[4:]
            o.append(f"v_mul_f32 v{z}, v{z}, v58")
            o.append(f"v_mul_f32 v{z+1}, v{z+1}, v58")
        return o
    for t in ksetup(): a(t)
    a.label("D_KGL")
    PKR = 60
    def put2(e, x0, x1, neg):
        g = e // 8
        b = PKR + 8 * (g & 1)
        m = (e % 8) // 2
        n = "-" if neg else ""
        a(f"v_cvt_pk_bf16_f32 v{b+m}, v{x0}, v{x1}")
        a(f"v_cvt_pk_bf16_f32 v{b+4+m}, {n}v{x0+1}, {n}v{x1+1}")
        if m == 3 or e == 20:
            a(f"ds_write_b128 v9, v[{b}:{b+3}] offset:{16*g}")
            a(f"ds_write_b128 v9, v[{b+4}:{b+7}] offset:{112 + 16*g}")
    cmul(Z2, Z1, Z1); cmul(Z16, Z8, Z8); cmul(Z512, Z256, Z256); cmul(Z4, Z2, Z2)
    cmul(E1, Wr, Z1); put2(0, Wr, E1, False)
    cmul(E0, Wr, Z2); cmul(E1, E1, Z2); put2(2, E0, E1, False)
    for e in (4, 6):
        cmul(E0, E0, Z2); cmul(E1, E1, Z2); put2(e, E0, E1, False)
    cmul(E0, Wr, Z256); cmul(E1, E0, Z2); put2(8, E0, E1, False)
    cmul(E0, E0, Z4); cmul(E1, E1, Z4); put2(10, E0, E1, False)
    cmul(R2, Wr, Z512); cmul(E1, R2, Z4); put2(12, R2, E1, False)
    cmul(E0, R2, Z256); cmul(E1, E1, Z256); put2(14, E0, E1, False)
    cmul(E1, E0, Z512); cmul(E0, R2, Z512); put2(16, E0, E1, False)
    cmul(E0, E0, Z512); cmul(E1, E1, Z512); put2(18, E0, E1, False)
    cmul(E0, E0, Z512); put2(20, E0, E0, False)
    a(f"v_mov_b32 v{E0}, 1.0")
    a(f"v_mov_b32 v{E0+1}, 0")
    put2(24, E0, Z8, True)
    cmul(E1, Z8, Z16); put2(26, Z16, E1, True)
    cmul(E0, Z16, Z16); cmul(E1, E1, Z16); put2(28, E0, E1, True)
    for j in range(6, 32, 2):
        cmul(E0, E0, Z16); cmul(E1, E1, Z16); put2(24 + j, E0, E1, True)
    def kread(s):
        for ab in range(2):
            for h in range(2):
                d = FRk + 8*s + 4*ab + 2*h
                a(f"ds_read_b64_tr_b16 v[{d}:{d+1}], v10 offset:{1920*s + 480*h + 48*ab}")
    kread(0); kread(1); kread(2)
    ks = ksetup()
    per = (len(ks) + 7) // 8
    for s in range(8):
        a(f"s_waitcnt lgkmcnt({8 if s < 6 else (4 if s == 6 else 0)})")
        a(f"v_mfma_f32_32x32x16_bf16 v[{ACCk}:{ACCk+15}], v[{FRk+8*s}:{FRk+8*s+3}], v[{FRk+8*s+4}:{FRk+8*s+7}], v[{ACCk}:{ACCk+15}]")
        if s + 3 < 8: kread(s + 3)
        for t in ks[per*s:per*(s+1)]: a(t)
    a("s_add_u32 s61, s61, 1")
    a("s_cmp_lg_u32 s61, 1")
    a("s_cbranch_scc1 D_KGNP")
    a("s_cmp_eq_u32 s43, 0")
    a("s_cbranch_scc1 D_KGNP")
    a("s_waitcnt vmcnt(0)")
    a.stamp(9)
    pack_finish(a, 91, 0, 60, 31, 30)
    a.label("D_KGNP")
    a("s_cmp_lg_u32 s61, 2")
    a("s_cbranch_scc1 D_KGNS")
    a("s_waitcnt vmcnt(0)")
    a("v_mov_b32 v2, 1")
    a("s_mov_b64 exec, 1")
    a("ds_add_u32 v90, v2")
    a("s_mov_b64 exec, -1")
    a.label("D_KGNS")
    a("s_cmp_lt_u32 s61, 3")
    a("s_cbranch_scc1 D_KGL")
    a.stamp(7)
    a(f"s_mul_i32 s59, s3, {TTS}")
    a(f"s_add_u32 s59, s59, {TB0}")
    a("v_lshlrev_b32 v28, 4, v7")
    a("v_lshl_add_u32 v28, v8, 3, v28")
    a("v_add_u32 v28, s59, v28")
    a("v_cmp_eq_u32 vcc, 1, v8")
    a("v_lshlrev_b32 v31, 3, v7")
    a(f"v_add_u32 v29, {256*2}, v31")
    a(f"v_add_u32 v30, {258*2}, v31")
    a("v_lshlrev_b32 v31, 2, v7")
    a(f"v_add_u32 v32, {384*2}, v31")
    a("v_cndmask_b32 v29, v29, v32, vcc")
    a(f"v_add_u32 v32, {448*2}, v31")
    a("v_cndmask_b32 v30, v30, v32, vcc")
    a("v_add_u32 v29, s59, v29")
    a("v_add_u32 v30, s59, v30")
    a("v_lshlrev_b32 v31, 1, v7")
    a("v_lshl_add_u32 v31, v8, 8, v31")
    a("v_add_u32 v31, s59, v31")
    for m in range(4):
        a(f"v_cvt_pk_bf16_f32 v{34+m}, v{ACCk+2*m}, v{ACCk+2*m+1}")
    for r in range(4):
        a(f"v_cvt_pk_bf16_f32 v{38+r}, v{ACCk+8+r}, v{ACCk+8+r}")
    a("ds_write_b64 v28, v[34:35]")
    a("ds_write_b32 v29, v36")
    a("ds_write_b32 v30, v37")
    for r in range(4):
        a(f"ds_write_b16 v31, v{38+r} offset:{(512+32*r)*2}")
    a("s_waitcnt vmcnt(0)")
    a.label("D_KG_DONE")
    a("s_waitcnt lgkmcnt(0)")
    a("s_barrier")
    a.stamp(11)
    a("v_lshlrev_b32 v9, 4, v0")
    def gath(sl):
        for i in range(11):
            a(f"ds_read_u16 v{12+12*sl+i}, v{GA+i} offset:{sl*TTS}")
    gath(0)
    for m in range(4):
        a(f"s_add_u32 m0, s98, {m*1024}")
        a("s_add_u32 s66, s66, s99" if m else "s_nop 0")
        a("buffer_load_dwordx4 v89, s[68:71], s66 offen lds")
    rep_addr(a, R_B, 7, 8)
    a("v_lshrrev_b32 v2, 2, v0")
    a(f"v_mul_u32_u24 v2, {KC}, v2")
    a("v_and_b32 v3, 3, v0")
    a("v_lshl_add_u32 v2, v3, 4, v2")
    for r in range(4): a(f"v_mov_b32 v{100+r}, 0")
    a("v_cmp_gt_u32 vcc, 48, v0")
    for sl in range(3):
        V = 12 + 12 * sl
        a("s_waitcnt lgkmcnt(0)" if sl == 0 else "s_waitcnt lgkmcnt(4)")
        if sl < 2: gath(sl + 1)
        if sl == 2:
            a("s_cmp_lg_u32 s3, 3")
            a("s_cbranch_scc1 D_NBF")
            a("s_waitcnt vmcnt(4)")
            arrive2_finish(a, R_B, 104)
            a.label("D_NBF")
        O = 48 + 16 * (sl & 1)
        for c in range(4):
            for m in range(4):
                a(f"v_lshl_or_b32 v{O+4*c+m}, v{V+c+2*m+1}, 16, v{V+c+2*m}")
            a(f"ds_write_b128 v9, v[{O+4*c}:{O+4*c+3}] offset:{sl*SLOT + c*KC}")
    a("s_and_saveexec_b64 s[44:45], vcc")
    a("ds_write_b128 v2, v[100:103] offset:4096")
    a("s_mov_b64 exec, s[44:45]")
    a("s_waitcnt lgkmcnt(0)")
    for r in range(8): a(f"v_accvgpr_read_b32 v{76+r}, a{248+r}")
    a("s_barrier")
    a.stamp(12)
    def wown(q0, wn): return [G.wl(q0 + s, 19, WS[wn][0] + s*1024) for s in range(20)]
    def wsh_dma(wn, base_s, nfr, lds0, per):
        out = []
        for m in range(0, per, 4):
            for e in range(min(4, per - m)):
                t = ""
                if e == 0:
                    t = f"s_add_u32 m0, s{21 if per == 5 else 28}, {lds0 + m*1024}\ns_add_u32 s61, s{base_s}, {WS[wn][0] + m*1024}\n"
                out.append(t + f"buffer_load_dwordx4 v6, s[8:11], s61 offen offset:{e*1024} lds")
        return out
    def w3a(es): return [G.wl(40 + e, 24, WS["WP3"][0] + ((e & 1)*20 + (e >> 1))*1024) for e in sorted(es, key=lambda e: (e & 1, e >> 1))]
    def w3b(): return [G.wl(s, 25, WS["WP3"][0] + s*1024) for s in range(20)]
    ord4 = [6*c + e for c in range(8) for e in range(4)] + [6*c + 4 + e for c in range(8) for e in range(2)]
    def w4(ps): return [G.wl(20 + p, 26, WS["WP4"][0] + ord4[p]*1024) for p in ps]
    ACC, ACC2, FR = 12, 28, 128
    xdma = []
    for m in range(3):
        t = f"s_add_u32 m0, s59, {XPL + m*1024}\n"
        t += "s_nop 0\n"
        xdma.append(t + f"buffer_load_dwordx4 v{VUX+m}, s[8:11], s60 offen sc1 lds")
    fill = xdma + wown(0, "WP1") + wsh_dma("WP1", 20, 20, WSH, 5)
    nfill = len(fill)
    units = [(12 + i, VA2, VB2, ACC2, i == 0) for i in range(4)] + [(i, VA, VB, ACC, i == 0) for i in range(16)]
    def hook(i):
        if i == 4:
            poll(a, 7, 8, 9)
            a(f"s_mul_i32 s59, s3, {XPS}")
            a(f"s_mul_i32 s60, s3, {64*10240}")
            a(f"s_add_u32 s60, s60, 0x{WS['X2'][0]:x}")
            pack_finish(a, 91, 4096, 60, 67, 96)
            for nt in range(4):
                a(f"ds_write_b128 v{EW}, v[{ACC2+4*nt}:{ACC2+4*nt+3}] offset:{1024*nt}")
            a("v_lshlrev_b32 v10, 16, v87")
            a("v_lshlrev_b32 v84, 16, v88")
        if i == 17:
            a(f"s_waitcnt vmcnt({2*13 - 3})")
            a("s_barrier")
    ex = [(4, t) for t in fill]
    conv_loop(a, units, FR, ex, hook)
    assert not ex, len(ex)
    a.stamp(13)
    UR, XR = 50, 60
    for nt in range(4):
        a(f"ds_read_b64 v[{UR+2*nt}:{UR+2*nt+1}], v{EU} offset:{UPL + 768 + 768*nt}")
        a(f"ds_read_b64 v[{XR+2*nt}:{XR+2*nt+1}], v{EX_} offset:{768*nt}")
    a(f"ds_read_b64 v[{UR+8}:{UR+9}], v{EU2} offset:{UPL + 768}")
    a(f"ds_read_b64 v[{XR+8}:{XR+9}], v{EX2}")
    for w in range(4):
        a(f"ds_read_b128 v[{ACC2+4*w}:{ACC2+4*w+3}], v{ER} offset:{4096*w}")
    T = 100
    for nt in range(4):
        a(f"s_waitcnt lgkmcnt({12 - 2*nt})")
        conv_epi(a, ACC + 4*nt, UR + 2*nt, XR + 2*nt, 10, T, 108 + 2*nt)
        if nt & 1:
            P = 108 + 2*(nt - 1)
            swap_pair(a, P)
            a(f"buffer_store_dwordx4 v[{P}:{P+3}], v{EH}, s[8:11], s57 offen offset:{256*(nt-1)} sc1")
    a("s_waitcnt lgkmcnt(0)")
    for r in (0, 2):
        a(f"v_pk_add_f32 v[{ACC2+r}:{ACC2+r+1}], v[{ACC2+r}:{ACC2+r+1}], v[{ACC2+4+r}:{ACC2+4+r+1}]")
        a(f"v_pk_add_f32 v[{ACC2+8+r}:{ACC2+8+r+1}], v[{ACC2+8+r}:{ACC2+8+r+1}], v[{ACC2+12+r}:{ACC2+12+r+1}]")
    for r in (0, 2):
        a(f"v_pk_add_f32 v[{ACC2+r}:{ACC2+r+1}], v[{ACC2+r}:{ACC2+r+1}], v[{ACC2+8+r}:{ACC2+8+r+1}]")
    conv_epi(a, ACC2, UR + 8, XR + 8, 84, T, ACC2 + 4)
    a(f"buffer_store_dwordx2 v[{ACC2+4}:{ACC2+5}], v{EH2}, s[8:11], s58 offen sc1")

    def publish(cnt_code, pre=()):
        for t in pre: a(t)
        a(f"s_waitcnt vmcnt({len(pre)})")
        a("s_barrier")
        l = a.newlabel("PUB")
        a("s_cmp_lg_u32 s3, 0")
        a(f"s_cbranch_scc1 {l}")
        a(cnt_code)
        arrive(a, 56)
        a.label(l)
    def publish2(cnt, rep, pre=()):
        for t in pre: a(t)
        a(f"s_waitcnt vmcnt({len(pre)})")
        a("s_barrier")
        l = a.newlabel("PUB")
        a("s_cmp_lg_u32 s3, 0")
        a(f"s_cbranch_scc1 {l}")
        arrive2_issue(a, cnt, 7)
        a("s_waitcnt vmcnt(0)")
        arrive2_finish(a, rep, 7)
        a.label(l)
    def await_(setup):
        l = a.newlabel("AW")
        a("s_cmp_lg_u32 s3, 0")
        a(f"s_cbranch_scc1 {l}")
        a(setup)
        poll(a, 2, 3, 7)
        a.label(l)
        a("s_waitcnt vmcnt(0)")
        a("s_barrier")
    from d_mlp import gen_mlp
    gen_mlp(a, G, dict(wown=wown, wsh_dma=wsh_dma, w3a=w3a, w3b=w3b, w4=w4, ord4=ord4, publish=publish, publish2=publish2, await_=await_))
    a.label("D_END")
    a.endk()
    a.label("D_EXIT")
    a("s_endpgm")
    a.label("D_CODE_END")
    return dict(name=name, grid=256, block=256, lds=LDS_TOTAL, vgpr=512, accum=256)
```

```python
from asmlib import *
from layout_d import *
from kg import rbf1, rbf2, gelu_regs, ln_apply_gelu, swap_pair, stats_calc, gelu_consts, MASK
from d import Q, STAT, WSH, Rec, poll, arrive, MF, l2_prefetch

VD, VT, VTH, VP, VW = 8, 12, 16, 20, 27
CS3, CS1, CS1S, HK, XK, CG, ACC, ACS, S1, S2, ONES, FR = 28, 40, 44, 40, 52, 62, 68, 84, 116, 120, 124, 128
T, O = 128, 144
TILE = 20480

def gen_mlp(a, G, H):
    publish, await_ = H["publish"], H["await_"]
    ord4 = H["ord4"]

    def tile_sgpr(tl, mul, add=0):
        a(f"s_add_u32 s59, s3, {tl}")
        a("s_and_b32 s59, s59, 3")
        if mul != 1: a(f"s_mul_i32 s59, s59, {mul}")
        if add: a(f"s_add_u32 s59, s59, {add}")

    def rowaddr(dst, vtt, perm, ks, trow=None):
        t0, t1 = T, T + 1
        if perm:
            a(f"v_lshlrev_b32 v{t0}, 2, v{vtt}")
            a(f"v_lshrrev_b32 v{t1}, 3, v4")
            a(f"v_lshl_add_u32 v{t0}, v{t1}, 1, v{t0}")
            a("s_lshl_b32 s59, s4, 4")
            a("s_lshr_b32 s60, s5, 1")
            a("s_add_u32 s59, s59, s60")
            a(f"v_add_u32 v{t0}, s59, v{t0}")
            a(f"v_mul_u32_u24 v{dst}, {ks*1024}, v{t0}")
            if trow is not None: a(f"v_lshlrev_b32 v{trow}, 4, v{t0}")
            a(f"v_and_b32 v{t0}, 7, v4")
            a("s_and_b32 s59, s5, 1")
            a("s_lshl_b32 s59, s59, 3")
            a(f"v_add_u32 v{t0}, s59, v{t0}")
            a(f"v_lshl_add_u32 v{dst}, v{t0}, 4, v{dst}")
            if trow is not None: a(f"v_add_u32 v{trow}, v{trow}, v{t0}")
        else:
            a("s_lshl_b32 s59, s7, 2")
            a(f"v_add_u32 v{t0}, s59, v{vtt}")
            a(f"v_mul_u32_u24 v{dst}, {ks*1024}, v{t0}")
            a(f"v_lshl_add_u32 v{dst}, v4, 4, v{dst}")
            if trow is not None: a(f"v_lshl_add_u32 v{trow}, v{t0}, 4, v4")

    def out_addrs(perm, ks, base=VP, shared=True, trows=None):
        tt = T + 2
        for pr in range(2):
            a(f"v_and_b32 v{tt}, 1, v5")
            a(f"s_add_u32 s61, s3, {2*pr}")
            a(f"v_add_u32 v{tt}, s61, v{tt}")
            a(f"v_and_b32 v{tt}, 3, v{tt}")
            rowaddr(base + pr, tt, perm, ks, trows[pr] if trows else None)
            a(f"v_lshrrev_b32 v{T}, 1, v5")
            a(f"v_lshl_add_u32 v{base+pr}, v{T}, 8, v{base+pr}")
        if shared:
            a(f"v_mov_b32 v{tt}, s3")
            rowaddr(23, tt, perm, ks, trows[2] if trows else None)
            a(f"v_lshrrev_b32 v{T}, 1, v5")
            a(f"v_lshl_add_u32 v22, v{T}, 8, v23")
            a(f"v_and_b32 v{T}, 1, v5")
            a(f"v_lshl_add_u32 v22, v{T}, 3, v22")

    def frag_addrs(tr):
        if tr:
            a(f"v_bfe_u32 v{T}, v1, 2, 2")
            a(f"v_lshlrev_b32 v{T+1}, 3, v5")
            a(f"v_add_u32 v{T+1}, v{T+1}, v{T}")
            a(f"v_lshlrev_b32 v{T+1}, 7, v{T+1}")
            a(f"v_and_b32 v{T+2}, 3, v1")
            a(f"v_lshl_add_u32 v{T+1}, v{T+2}, 3, v{T+1}")
            a(f"v_lshrrev_b32 v{T}, 1, v{T}")
            a(f"v_and_b32 v{T+2}, 1, v5")
            a(f"v_lshl_or_b32 v{T}, v{T+2}, 1, v{T}")
            for tl in range(4):
                tile_sgpr(tl, 1)
                a(f"v_xor_b32 v{T+2}, s59, v{T}")
                a(f"v_lshl_add_u32 v{VT+tl}, v{T+2}, 5, v{T+1}")
                a(f"v_add_u32 v{VTH+tl}, 0x10000, v{VT+tl}")
        else:
            for tl in range(4):
                tile_sgpr(tl, TILE)
                a(f"v_add_u32 v{VT+tl}, s59, v6")

    def reads(p, tr, wsh):
        b = FR + 20 * (p % 3)
        out = []
        for tl in range(4):
            if tr:
                off, va = p * 4096, VT
                if off >= 65536: off -= 65536; va = VTH
                out.append(f"ds_read_b64_tr_b16 v[{b+4*tl}:{b+4*tl+1}], v{va+tl} offset:{off}\n"
                           f"ds_read_b64_tr_b16 v[{b+4*tl+2}:{b+4*tl+3}], v{va+tl} offset:{off+512}")
            else:
                out.append(f"ds_read_b128 v[{b+4*tl}:{b+4*tl+3}], v{VT+tl} offset:{(p % 20)*1024}")
        if wsh is not None:
            out.append(f"ds_read_b128 v[{b+16}:{b+19}], v{VW} offset:{wsh}")
        return out

    def gloop(KS, bounds, init, per_step, dma, tr, wshf, mfmas, xslots, pre=None, hook=None, st=None):
        issued = []
        def wait_txt(p):
            last = max(i for i, t in enumerate(issued) if t == p)
            return f"s_waitcnt vmcnt({len(issued) - 1 - last})"
        for p in range(init):
            for t in dma(p): a(t)
            issued.append(p)
        if pre: issued.extend([-1] * pre())
        if st: a.stamp(st[0])
        a(wait_txt(bounds[0] - 1))
        a("s_barrier")
        if st: a.stamp(st[1])
        vis = bounds[0]; bi = 1
        assert vis >= 2
        nr = (8 if tr else 4) + (1 if wshf else 0)
        for p in (0, 1):
            for r in reads(p, tr, wshf(p) if wshf else None): a(r)
        if vis < 3:
            a(wait_txt(bounds[1] - 1)); a("s_barrier"); vis = bounds[1]; bi = 2
        a(f"s_waitcnt lgkmcnt({nr})")
        for p in range(KS):
            if st and p in st[2]: a.stamp(st[2][p])
            X = []
            if hook:
                for t, isv in hook(p): X.append((t, -1 if isv else None))
            for pos in per_step(p):
                d = dma(pos)
                for t in d[:-1]: X.append((t, None))
                X.append((d[-1], pos))
            if p + 3 < KS and p + 3 >= vis:
                X.append(("WAIT", bounds[bi] - 1)); X.append(("s_barrier", None))
                vis = bounds[bi]; bi += 1
            rd = reads(p + 2, tr, wshf(p + 2) if wshf else None) if p + 2 < KS else []
            ms = mfmas(p, FR + 20 * (p % 3))
            for gi, m in enumerate(ms):
                a(m)
                if gi < len(rd): a(rd[gi])
                n = xslots[gi] if gi < len(ms) - 1 else len(X)
                for _ in range(n):
                    if not X: break
                    t, tag = X.pop(0)
                    if t == "WAIT": a(wait_txt(tag))
                    else:
                        a(t)
                        if tag is not None: issued.append(tag)
            if p + 1 < KS:
                a(f"s_waitcnt lgkmcnt({nr if p + 2 < KS else 0})")

    def mfma5(qown, stats):
        def f(p, b):
            out = []
            for tl in range(4):
                c = "0" if p == 0 else f"v[{ACC+4*tl}:{ACC+4*tl+3}]"
                out.append(f"{MF} v[{ACC+4*tl}:{ACC+4*tl+3}], {Q(qown(p))}, v[{b+4*tl}:{b+4*tl+3}], {c}")
            c = "0" if p == 0 else f"v[{ACS}:{ACS+3}]"
            out.append(f"{MF} v[{ACS}:{ACS+3}], v[{b+16}:{b+19}], v[{b}:{b+3}], {c}")
            if stats:
                c1 = "0" if p == 0 else f"v[{S1}:{S1+3}]"
                c2 = "0" if p == 0 else f"v[{S2}:{S2+3}]"
                out.append(f"{MF} v[{S1}:{S1+3}], v[{ONES}:{ONES+3}], v[{b}:{b+3}], {c1}")
                out.append(f"{MF} v[{S2}:{S2+3}], v[{b}:{b+3}], v[{b}:{b+3}], {c2}")
            return out
        return f

    def unpack(dst, src, n):
        for m in range(n):
            a(f"v_lshlrev_b32 v{dst+2*m}, 16, v{src+m}")
            a(f"v_and_b32 v{dst+2*m+1}, s{MASK}, v{src+m}")
    def addres(P, n, res, dst=None):
        dst = P if dst is None else dst
        unpack(T, P, n)
        unpack(T + 8, res, n)
        for m in range(n):
            a(f"v_pk_add_f32 v[{T+2*m}:{T+2*m+1}], v[{T+2*m}:{T+2*m+1}], v[{T+8+2*m}:{T+8+2*m+1}]")
        for m in range(n):
            a(f"v_cvt_pk_bf16_f32 v{dst+m}, v{T+2*m}, v{T+2*m+1}")
    def read_stats(AB):
        for tl in range(4):
            tile_sgpr(tl, 256, STAT)
            a("v_lshl_add_u32 v2, v4, 4, s59")
            a(f"ds_read_b64 v[{AB+2*tl}:{AB+2*tl+1}], v2")
    def frag_dma(sbase, const_of, srd="s[8:11]", vo=lambda p: 6):
        st = {}
        def f(p):
            c = const_of(p)
            slot = p % 20
            out = []
            if st and st["p"] + st["n"] == p and st["c"] + 1024 * st["n"] == c and st["n"] < 4 and slot != 0 and vo(p) == st["v"]:
                e = st["n"]; st["n"] += 1
            else:
                st.update(p=p, c=c, n=1, v=vo(p)); e = 0
                out.append(f"s_add_u32 m0, s29, {slot*1024}")
                out.append(f"s_add_u32 s61, s{sbase}, 0x{c:x}" if sbase is not None else f"s_mov_b32 s61, 0x{c:x}")
            out.append(f"buffer_load_dwordx4 v{vo(p)}, {srd}, s61 offen offset:{e*1024} sc1 lds")
            return out
        return f
    def refetch(lst):
        for i, (v, s, off, w) in enumerate(lst):
            a(f"buffer_load_dword v{188+(i&1)}, v{v}, s[8:11], s{s} offen offset:{off} sc1")
    def st2(t):
        a(t)

    if a.diag: a("v_mov_b32 v191, 0")
    w2l = H["wown"](20, "WP2") + H["wsh_dma"]("WP2", 20, 20, WSH + 20480, 5)
    w3l = H["w3a"](range(40))
    H["publish2"](C_C, R_C, pre=w2l[:10])
    a.stamp(14)
    for t in w2l[10:]: a(t)
    a("s_lshl_b32 s30, s16, 9")
    a("s_lshl_b32 s31, s17, 9")
    a(f"s_mul_i32 s29, s3, {TILE}")
    for r in range(4): a(f"v_mov_b32 v{ONES+r}, 0x3f803f80")
    gelu_consts(a, CG)
    a(f"v_add_u32 v{VW}, {WSH}, v6")
    a(f"v_lshrrev_b32 v{T}, 3, v1")
    a("s_lshl_b32 s59, s3, 3")
    a(f"v_add_u32 v{T}, s59, v{T}")
    a(f"v_lshlrev_b32 v{VD}, 12, v{T}")
    a(f"v_bfe_u32 v{T}, v1, 4, 1")
    a("s_and_b32 s59, s3, 1")
    a("s_lshl_b32 s59, s59, 1")
    a(f"v_or_b32 v{T}, s59, v{T}")
    a(f"v_lshlrev_b32 v{T}, 1, v{T}")
    a(f"v_and_b32 v{T+1}, 7, v1")
    a(f"v_xor_b32 v{T}, v{T}, v{T+1}")
    a(f"v_lshl_add_u32 v{VD}, v{T}, 4, v{VD}")
    a("s_lshl_b32 s52, s5, 10")
    a("s_lshl_b32 s59, s4, 7")
    a("s_add_u32 s52, s52, s59")
    frag_addrs(True)
    out_addrs(True, 20, trows=[None, None, 24])
    a("v_lshlrev_b32 v24, 3, v24")
    def colsum_lds(dst, off0, n):
        for s in range(n):
            b = FR + 4 * (s % 8)
            if s == 0:
                for s2 in range(min(6, n)): a(f"ds_read_b128 v[{FR+4*(s2%8)}:{FR+4*(s2%8)+3}], v{VW} offset:{off0 + s2*1024}")
            a(f"s_waitcnt lgkmcnt({min(5, n-1-s)})")
            a(f"{MF} v[{dst}:{dst+3}], v[{b}:{b+3}], v[{ONES}:{ONES+3}], {'0' if s == 0 else f'v[{dst}:{dst+3}]'}")
            if s + 6 < n: a(f"ds_read_b128 v[{FR+4*((s+6)%8)}:{FR+4*((s+6)%8)+3}], v{VW} offset:{off0 + (s+6)*1024}")
    for s in range(20):
        a(f"{MF} v[{CS1}:{CS1+3}], {Q(s)}, v[{ONES}:{ONES+3}], {'0' if s == 0 else f'v[{CS1}:{CS1+3}]'}")
    colsum_lds(CS1S, 0, 20)
    await_(f"s_lshl_b32 s60, s4, 8\ns_add_u32 s60, s60, {R_C*256}\nv_mov_b32 v2, s60\nv_mov_b32 v3, 8")
    a.stamp2(14)
    def bg_hook(lst, p0, p1, n):
        def h(p):
            out = []
            if p0 <= p < p1:
                for _ in range(n):
                    if lst:
                        ls = lst.pop(0).split("\n")
                        out += [(t, False) for t in ls[:-1]] + [(ls[-1], True)]
            return out
        return h
    w3rest = list(w3l[:14])
    hook1 = bg_hook(w3rest, 10, 17, 2)
    gloop(20, [2, 4, 6, 8, 10, 12, 14, 16, 20], 8, lambda p: [8 + 2*p, 9 + 2*p] if p < 2 else ([10 + p] if p < 10 else []),
          lambda p: [f"s_add_u32 m0, s18, {p*4096}", f"s_add_u32 s61, s52, 0x{WS['HT'][0] + p*32*4096:x}",
                     f"buffer_load_dwordx4 v{VD}, s[8:11], s61 offen sc1 lds"],
          True, lambda p: p * 1024, mfma5(lambda p: p, True), [0, 0, 0, 0, 1, 2, 1], hook=hook1)
    assert not w3rest
    a.stamp2(0)
    HR = O + 12
    a("s_lshl_b32 s59, s6, 12")
    a(f"v_add_u32 v2, s59, v{VT}")
    a(f"v_add_u32 v3, s59, v{VTH}")
    for m in range(3):
        va, off = (2, 32768 * m) if m < 2 else (3, 0)
        a(f"ds_read_b64_tr_b16 v[{HR+4*m}:{HR+4*m+1}], v{va} offset:{off}")
        a(f"ds_read_b64_tr_b16 v[{HR+4*m+2}:{HR+4*m+3}], v{va} offset:{off+512}")
    a("s_lshl_b32 s59, s3, 8")
    a(f"s_add_u32 s59, s59, {STAT}")
    a("v_lshl_add_u32 v3, v4, 4, s59")
    a(f"s_mov_b32 s60, 0x{WS['RS'][0]:x}")
    a("s_cmp_lg_u32 s6, 0")
    a("s_cselect_b32 s60, 0x7ff00000, s60")
    stats_calc(a, S1, S2, 4, 5, T, True, 3, extra=f"buffer_store_dwordx2 v[{T+2}:{T+3}], v24, s[8:11], s60 offen sc1")
    a("v_lshl_add_u32 v25, v5, 8, v23")
    a("s_lshl_b32 s53, s6, 10")
    a(f"s_add_u32 s53, s53, 0x{WS['HF'][0]:x}")
    a("s_add_u32 s54, s53, 8192")
    a("s_add_u32 s55, s53, 16384")
    a("s_cmp_ge_u32 s6, 4")
    a("s_cselect_b32 s55, 0x7ff00000, s55")
    a("s_waitcnt lgkmcnt(0)")
    a("s_barrier")
    AB = S1
    read_stats(AB)
    for m in range(3):
        st2(f"buffer_store_dwordx4 v[{HR+4*m}:{HR+4*m+3}], v25, s[8:11], s{53+m} offen sc1")
    a(f"s_add_u32 s57, s30, 0x{WS['H1F'][0]:x}")
    a(f"s_add_u32 s58, s31, 0x{WS['H1F'][0]:x}")
    a("s_waitcnt lgkmcnt(0)")
    for pr in range(2):
        P = O + 4 * pr
        for h in range(2):
            tl = 2 * pr + h
            ln_apply_gelu(a, ACC + 4 * tl, AB + 2 * tl, CS1, T, CG, P + 2 * h)
        swap_pair(a, P)
        st2(f"buffer_store_dwordx4 v[{P}:{P+3}], v{VP+pr}, s[8:11], s57 offen sc1")
    ln_apply_gelu(a, ACS, AB, CS1S, T, CG, O + 8)
    st2(f"buffer_store_dwordx2 v[{O+8}:{O+9}], v22, s[8:11], s58 offen sc1")
    a.stamp2(1)
    w3bl = H["w3b"]()
    nxt = w3l[14:38]
    publish(f"s_lshl_b32 s56, s4, 8\ns_add_u32 s56, s56, {C_G1*256}", pre=nxt[:10])
    a.stamp2(2)
    refetch([(VP, 57, 0, 4), (VP + 1, 57, 0, 4), (22, 58, 0, 2), (25, 53, 0, 4), (25, 54, 0, 4), (25, 55, 0, 4)])
    for t in nxt[10:]: a(t)
    a("s_lshl_b32 s59, s7, 6")
    a("s_lshl_b32 s60, s3, 4")
    a("s_add_u32 s59, s59, s60")
    a(f"v_add_u32 v{T}, s59, v4")
    a(f"s_movk_i32 s60, {20*1024}")
    for gi, sh in enumerate((1, -1, 2, -2)):
        a(f"v_add_u32 v{T+1}, {-sh}, v{T}")
        a(f"v_ashrrev_i32 v{T+2}, 4, v{T+1}")
        a(f"v_mul_lo_u32 v{VD+gi}, v{T+2}, s60")
        a(f"v_and_b32 v{T+1}, 15, v{T+1}")
        a(f"v_lshl_add_u32 v{VD+gi}, v{T+1}, 4, v{VD+gi}")
        a(f"v_lshl_add_u32 v{VD+gi}, v5, 8, v{VD+gi}")
    srd(a, 12, 40, WS["H1F"][0], ACT)
    frag_addrs(False)
    out_addrs(False, 20, trows=[16, 17, 18])
    await_(f"""v_and_b32 v7, 3, v1
v_min_u32 v7, 2, v7
s_add_u32 s59, s4, {C_G1 - 1}
v_add_u32 v2, s59, v7
v_lshlrev_b32 v2, 8, v2
s_cmp_eq_u32 s7, 0
s_cselect_b32 s59, 0, 32
s_cmp_eq_u32 s5, 0
s_cselect_b32 s59, s59, 0
s_cmp_eq_u32 s7, 31
s_cselect_b32 s60, 0, 32
s_cmp_eq_u32 s5, 3
s_cselect_b32 s60, s60, 0
v_mov_b32 v3, 32
v_cmp_eq_u32 vcc, 0, v7
v_mov_b32 v{T}, s59
v_mov_b32 v{T+1}, s60
v_cndmask_b32 v3, v3, v{T}, vcc
v_cmp_eq_u32 vcc, 2, v7
s_nop 1
v_cndmask_b32 v3, v3, v{T+1}, vcc""")
    a.stamp2(3)
    RSR = S1
    def pre2():
        a(f"s_add_u32 s59, s30, 0x{WS['HF'][0]:x}")
        a(f"buffer_load_dwordx4 v[{HK}:{HK+3}], v{VP}, s[8:11], s59 offen sc1")
        a(f"buffer_load_dwordx4 v[{HK+4}:{HK+7}], v{VP+1}, s[8:11], s59 offen sc1")
        a(f"s_add_u32 s59, s31, 0x{WS['HF'][0]:x}")
        a(f"buffer_load_dwordx2 v[{HK+8}:{HK+9}], v22, s[8:11], s59 offen sc1")
        a(f"s_mov_b32 s59, 0x{WS['RS'][0]:x}")
        for m in range(3):
            a(f"v_lshlrev_b32 v2, 3, v{16+m}")
            a(f"buffer_load_dwordx2 v[{RSR+2*m}:{RSR+2*m+1}], v2, s[8:11], s59 offen sc1")
        return 6
    X5 = [1, 1, 1, 1, 0]
    w3b2 = list(w3l[38:] + w3bl[:14])
    gloop(20, [2, 4, 8, 12, 16, 20], 10, lambda p: [10 + 2*p, 11 + 2*p] if p < 5 else [],
          frag_dma(None, lambda p: p * 1024, "s[12:15]", lambda p: VD + p // 5),
          False, lambda p: 20480 + p * 1024, mfma5(lambda p: 20 + p, False), X5, pre=pre2, hook=bg_hook(w3b2, 5, 13, 2))
    assert not w3b2
    a.stamp2(4)
    a("s_waitcnt vmcnt(0)")
    for m, n in ((0, 4), (1, 4), (2, 2)):
        unpack(T, HK + 4 * m, n)
        R = RSR + 2 * m
        for p in range(0, 2 * n, 2):
            a(f"v_pk_add_f32 v[{T+p}:{T+p+1}], v[{T+p}:{T+p+1}], v[{R}:{R+1}] op_sel_hi:[1,0] neg_lo:[0,1] neg_hi:[0,1]")
        for p in range(0, 2 * n, 2):
            rbf2(a, T + p, T + p + 1, T + 8)
        for p in range(0, 2 * n, 2):
            a(f"v_pk_mul_f32 v[{T+p}:{T+p+1}], v[{T+p}:{T+p+1}], v[{R}:{R+1}] op_sel:[0,1] op_sel_hi:[1,1]")
        for p in range(n):
            a(f"v_cvt_pk_bf16_f32 v{XK+4*m+p}, v{T+2*p}, v{T+2*p+1}")
    a(f"s_add_u32 s57, s30, 0x{WS['X1F'][0]:x}")
    a(f"s_add_u32 s58, s31, 0x{WS['X1F'][0]:x}")
    def pack5(pr):
        if pr < 2:
            P = O + 4 * pr
            for h in range(2):
                X = ACC + 4 * (2 * pr + h)
                a(f"v_cvt_pk_bf16_f32 v{P+2*h}, v{X}, v{X+1}")
                a(f"v_cvt_pk_bf16_f32 v{P+2*h+1}, v{X+2}, v{X+3}")
            swap_pair(a, P)
        else:
            P = O + 8
            a(f"v_cvt_pk_bf16_f32 v{P}, v{ACS}, v{ACS+1}")
            a(f"v_cvt_pk_bf16_f32 v{P+1}, v{ACS+2}, v{ACS+3}")
        return P
    for pr in range(3):
        P = pack5(pr)
        n = 4 if pr < 2 else 2
        addres(P, n, XK + 4 * pr, dst=XK + 4 * pr)
        if pr < 2: st2(f"buffer_store_dwordx4 v[{XK+4*pr}:{XK+4*pr+3}], v{VP+pr}, s[8:11], s57 offen sc1")
        else: st2(f"buffer_store_dwordx2 v[{XK+8}:{XK+9}], v22, s[8:11], s58 offen sc1")
    a.stamp2(5)
    w4a = H["w4"](range(20))
    publish(f"s_lshl_b32 s56, s7, 8\ns_add_u32 s56, s56, {C_G2*256}", pre=w3bl[14:] + w4a[:4])
    a.stamp2(6)
    refetch([(VP, 57, 0, 4), (VP + 1, 57, 0, 4), (22, 58, 0, 2)])
    VH = 24
    out_addrs(False, 48, base=VH, shared=False)
    a("s_lshl_b32 s52, s7, 2")
    a("s_add_u32 s52, s52, s3")
    a(f"s_mul_i32 s53, s52, {48*1024}")
    a(f"s_mul_i32 s52, s52, {20*1024}")
    a("s_lshl_b32 s54, s22, 9")
    a(f"s_add_u32 s54, s54, 0x{WS['H3F'][0]:x}")
    a("s_lshl_b32 s55, s23, 9")
    a(f"s_add_u32 s55, s55, 0x{WS['H3F'][0]:x}")
    rest = list(w4a[4:14])
    for s in range(20):
        for jj in range(2):
            d = CS3 + 4 * jj
            a(f"{MF} v[{d}:{d+3}], {Q(40+2*s+jj)}, v[{ONES}:{ONES+3}], {'0' if s == 0 else f'v[{d}:{d+3}]'}")
            if jj == 0 and rest and s % 2 == 0: a(rest.pop(0))
    assert not rest
    a("s_waitcnt vmcnt(10)")
    for s in range(20):
        d = CS3 + 8
        a(f"{MF} v[{d}:{d+3}], {Q(s)}, v[{ONES}:{ONES+3}], {'0' if s == 0 else f'v[{d}:{d+3}]'}")
    await_(f"s_lshl_b32 s59, s7, 8\ns_add_u32 s59, s59, {C_G2*256}\nv_mov_b32 v2, s59\nv_mov_b32 v3, 8")
    a.stamp2(7)
    def mf3(p, b):
        out = []
        for jj in range(2):
            for tl in range(4):
                d = ACC + 16 * jj + 4 * tl
                c = "0" if p == 0 else f"v[{d}:{d+3}]"
                out.append(f"{MF} v[{d}:{d+3}], {Q(40+2*p+jj)}, v[{b+4*tl}:{b+4*tl+3}], {c}")
        c1 = "0" if p == 0 else f"v[{S1}:{S1+3}]"
        c2 = "0" if p == 0 else f"v[{S2}:{S2+3}]"
        out.append(f"{MF} v[{S1}:{S1+3}], v[{ONES}:{ONES+3}], v[{b}:{b+3}], {c1}")
        out.append(f"{MF} v[{S2}:{S2+3}], v[{b}:{b+3}], v[{b}:{b+3}], {c2}")
        return out
    w4s = H["wsh_dma"]("WP4", 27, 48, WSH, 12)
    w4s = w4a[14:] + w4s
    hook3 = bg_hook(w4s, 6, 15, 2)
    gloop(20, [2, 4, 8, 12, 16, 20], 8, lambda p: [8 + 2*p, 9 + 2*p] if p < 6 else [],
          frag_dma(52, lambda p: WS['X1F'][0] + p * 1024), False, None, mf3, [1, 1, 1, 1, 2, 2, 2, 2, 2, 1], hook=hook3)
    assert not w4s
    a.stamp2(8)
    a("s_lshl_b32 s59, s3, 8")
    a(f"s_add_u32 s59, s59, {STAT}")
    a("v_lshl_add_u32 v3, v4, 4, s59")
    a("s_nop 5")
    stats_calc(a, S1, S2, 4, 5, T, False, 3)
    a("s_waitcnt lgkmcnt(0)")
    a("s_barrier")
    read_stats(AB)
    a("s_waitcnt lgkmcnt(0)")
    def epi3(jj):
        for pr in range(2):
            P = O + 4 * pr
            for h in range(2):
                tl = 2 * pr + h
                ln_apply_gelu(a, ACC + 16 * jj + 4 * tl, AB + 2 * tl, CS3 + 4 * jj, T, CG, P + 2 * h)
            swap_pair(a, P)
            if jj < 2: st2(f"buffer_store_dwordx4 v[{P}:{P+3}], v{VH+pr}, s[8:11], s54 offen offset:{512*jj} sc1")
            else: st2(f"buffer_store_dwordx4 v[{P}:{P+3}], v{VH+pr}, s[8:11], s55 offen sc1")
    G.wstate = None
    w4b = H["w4"](range(20, 48))
    for t in w4b[:8]: a(t)
    w4c = w4b[20:]
    w4b = w4b[8:20]
    epi3(0); epi3(1)
    a.stamp2(9)
    a("s_nop 1")
    nb = 0
    for p in (0, 1):
        for r in reads(p, False, None): a(r)
    a("s_waitcnt lgkmcnt(4)")
    for p in range(20):
        b = FR + 20 * (p % 3)
        rd = reads(p + 2, False, None) if p + 2 < 20 else []
        if p == 12:
            publish(f"s_lshl_b32 s56, s7, 8\ns_add_u32 s56, s56, {C_G3A*256}", pre=["s_nop 0"] * 0) if False else None
            a(f"s_waitcnt vmcnt({nb})")
            a("s_barrier")
            l = a.newlabel("PUB")
            a("s_cmp_lg_u32 s3, 0")
            a(f"s_cbranch_scc1 {l}")
            a(f"s_lshl_b32 s56, s7, 8\ns_add_u32 s56, s56, {C_G3A*256}")
            arrive(a, 56)
            a.label(l)
            refetch([(VH, 54, 0, 4), (VH + 1, 54, 0, 4), (VH, 54, 512, 4), (VH + 1, 54, 512, 4)])
        for tl in range(4):
            d = ACC + 32 + 4 * tl
            c = "0" if p == 0 else f"v[{d}:{d+3}]"
            a(f"{MF} v[{d}:{d+3}], {Q(p)}, v[{b+4*tl}:{b+4*tl+3}], {c}")
            if rd: a(rd[tl])
            if tl == 0 and w4b:
                a(w4b.pop(0)); nb += 1
        if p + 1 < 20: a(f"s_waitcnt lgkmcnt({4 if p + 2 < 20 else 0})")
    assert not w4b
    a.stamp2(10)
    a("s_nop 7")
    epi3(2)
    publish(f"s_lshl_b32 s56, s7, 8\ns_add_u32 s56, s56, {C_G3B*256}")
    a.stamp2(11)
    refetch([(VH, 55, 0, 4), (VH + 1, 55, 0, 4)])
    for pr in range(2):
        a(f"v_mul_u32_u24 v{24+pr}, 1280, v{16+pr}")
        a(f"v_lshrrev_b32 v{T}, 1, v5")
        a(f"v_lshl_add_u32 v{24+pr}, v{T}, 4, v{24+pr}")
    a("v_mul_u32_u24 v26, 1280, v18")
    a("v_lshl_add_u32 v26, v5, 3, v26")
    srd(a, 12, 48, 0, ACT)
    await_(f"s_lshl_b32 s59, s7, 8\ns_add_u32 s59, s59, {C_G3A*256}\nv_mov_b32 v2, s59\nv_mov_b32 v3, 8")
    a.stamp2(12)
    a("s_lshl_b32 s59, s7, 8")
    a(f"s_add_u32 s59, s59, {C_G3B*256}")
    a("v_mov_b32 v2, s59")
    a("v_mov_b32 v3, 8")
    P4 = 16
    h4bg = bg_hook(w4c, 18, 26, 1)
    def hook4(p):
        if 18 <= p < 26: return h4bg(p)
        if p == 8:
            return [("buffer_load_dword v7, v2, s[8:11], 0 offen sc1", True)]
        if p == 32 - P4:
            a("s_waitcnt vmcnt(8)")
            poll(a, 2, 3, 7, pre_loaded=True)
        return []
    gloop(48, [2, 4] + list(range(8, 49, 4)), 12,
          lambda p: ([12 + 2*p, 13 + 2*p] if p < 4 else ([p + P4] if p + P4 < 48 else [])),
          frag_dma(53, lambda p: WS['H3F'][0] + ord4[p] * 1024), False, lambda p: ord4[p] * 1024,
          mfma5(lambda p: 20 + p, False), X5, hook=hook4)
    a.stamp2(13)
    a("s_lshl_b32 s61, s17, 5")
    a("s_lshl_b32 s60, s16, 5")
    a("s_nop 5")
    for pr in range(3):
        P = pack5(pr)
        n = 4 if pr < 2 else 2
        addres(P, n, XK + 4 * pr)
        addres(P, n, HK + 4 * pr)
        if pr < 2: a(f"buffer_store_dwordx4 v[{P}:{P+3}], v{24+pr}, s[12:15], s60 offen")
        else: a(f"buffer_store_dwordx2 v[{P}:{P+1}], v26, s[12:15], s61 offen")
```

```python
from asmlib import *
from layout import *
import math
LOG2E = 1.4426950408889634
GC0 = -2.0 * math.sqrt(2.0 / math.pi) * LOG2E
GC1 = GC0 * 0.044715
PREROUND = True
MASK = 42

def rbf2(a, x, y, t):
    a(f"v_cvt_pk_bf16_f32 v{t}, v{x}, v{y}")
    a(f"v_lshlrev_b32 v{x}, 16, v{t}")
    a(f"v_and_b32 v{y}, s{MASK}, v{t}")

def rbf1(a, x):
    a(f"v_cvt_pk_bf16_f32 v{x}, v{x}, v{x}")
    a(f"v_and_b32 v{x}, s{MASK}, v{x}")

def gelu_regs(a, X, T, n, CG):
    for p in range(0, n, 2):
        a(f"v_pk_mul_f32 v[{T+p}:{T+p+1}], v[{X+p}:{X+p+1}], v[{X+p}:{X+p+1}]")
    for p in range(0, n, 2):
        a(f"v_pk_fma_f32 v[{T+p}:{T+p+1}], v[{T+p}:{T+p+1}], v[{CG}:{CG+1}], v[{CG+2}:{CG+3}]")
    for p in range(0, n, 2):
        a(f"v_pk_mul_f32 v[{T+p}:{T+p+1}], v[{T+p}:{T+p+1}], v[{X+p}:{X+p+1}]")
    for p in range(n):
        a(f"v_exp_f32 v{T+p}, v{T+p}")
    a("s_nop 0")
    for p in range(0, n, 2):
        a(f"v_pk_add_f32 v[{T+p}:{T+p+1}], v[{T+p}:{T+p+1}], 1.0 op_sel_hi:[1,0]")
    for p in range(n):
        a(f"v_rcp_f32 v{T+p}, v{T+p}")
    a("s_nop 0")
    for p in range(0, n, 2):
        a(f"v_pk_mul_f32 v[{X+p}:{X+p+1}], v[{X+p}:{X+p+1}], v[{T+p}:{T+p+1}]")

def ln_apply_gelu(a, X, AB, CS, T, CG, out):
    for p in (0, 2):
        a(f"v_pk_mul_f32 v[{T+p}:{T+p+1}], v[{CS+p}:{CS+p+1}], v[{AB}:{AB+1}] op_sel:[0,1] op_sel_hi:[1,1]")
    for p in (0, 2):
        a(f"v_pk_fma_f32 v[{X+p}:{X+p+1}], v[{X+p}:{X+p+1}], v[{AB}:{AB+1}], v[{T+p}:{T+p+1}] op_sel_hi:[1,0,1] neg_lo:[0,0,1] neg_hi:[0,0,1]")
    if PREROUND:
        rbf2(a, X, X + 1, T)
        rbf2(a, X + 2, X + 3, T + 1)
    gelu_regs(a, X, T, 4, CG)
    a(f"v_cvt_pk_bf16_f32 v{out}, v{X}, v{X+1}")
    a(f"v_cvt_pk_bf16_f32 v{out+1}, v{X+2}, v{X+3}")

def swap_pair(a, P):
    a("s_nop 1")
    a(f"v_permlane16_swap_b32 v{P}, v{P+2}")
    a(f"v_permlane16_swap_b32 v{P+1}, v{P+3}")

def stats_calc(a, S1, S2, vi, vq, T, double_ln, vaddr, extra=None):
    sm, sq = T + 4, T + 5
    a(f"v_and_b32 v{T+6}, 3, v{vi}")
    a(f"v_cmp_eq_u32 vcc, 1, v{T+6}")
    a(f"s_mov_b32 s46, {fhex(1.0/640)}")
    a("s_nop 0")
    a(f"v_cndmask_b32 v{sq}, v{S2}, v{S2+1}, vcc")
    a(f"v_cmp_eq_u32 vcc, 2, v{T+6}")
    a(f"v_mul_f32 v{sm}, s46, v{S1}")
    a("s_nop 0")
    a(f"v_cndmask_b32 v{sq}, v{sq}, v{S2+2}, vcc")
    a(f"v_cmp_eq_u32 vcc, 3, v{T+6}")
    a(f"v_lshrrev_b32 v{T+7}, 2, v{vi}")
    a("s_nop 0")
    a(f"v_cndmask_b32 v{sq}, v{sq}, v{S2+3}, vcc")
    a(f"v_mul_f32 v{sq}, s46, v{sq}")
    a(f"v_fma_f32 v{sq}, -v{sm}, v{sm}, v{sq}")
    a(f"v_max_f32 v{sq}, 0, v{sq}")
    m1r, i1 = T + 2, T + 3
    a(f"v_mov_b32 v{m1r}, v{sm}")
    a(f"v_mov_b32 v{i1}, v{sq}")
    rbf2(a, m1r, i1, T + 6)
    a(f"v_add_f32 v{i1}, {fhex(1e-5)}, v{i1}")
    rbf1(a, i1)
    a(f"v_sqrt_f32 v{i1}, v{i1}")
    a("s_nop 0")
    rbf1(a, i1)
    a(f"v_rcp_f32 v{i1}, v{i1}")
    a(f"v_cmp_eq_u32 vcc, v{T+7}, v{vq}")
    if double_ln:
        a(f"v_sub_f32 v{T}, v{sm}, v{m1r}")
        a(f"v_mul_f32 v{T}, v{T}, v{i1}")
        a(f"v_mul_f32 v{T+1}, v{sq}, v{i1}")
        a(f"v_mul_f32 v{T+1}, v{T+1}, v{i1}")
        rbf2(a, T, T + 1, T + 6)
        a(f"v_add_f32 v{T+1}, {fhex(1e-5)}, v{T+1}")
        rbf1(a, T + 1)
        a(f"v_sqrt_f32 v{T+1}, v{T+1}")
        a("s_nop 0")
        rbf1(a, T + 1)
        a(f"v_rcp_f32 v{T+6}, v{T+1}")
        a("s_nop 0")
        a(f"v_mul_f32 v{T+1}, v{T}, v{T+6}")
        a(f"v_mul_f32 v{T}, v{i1}, v{T+6}")
        a(f"v_fma_f32 v{T+1}, v{m1r}, v{T}, v{T+1}")
    else:
        a(f"v_mov_b32 v{T}, v{i1}")
        a(f"v_mul_f32 v{T+1}, v{m1r}, v{i1}")
    a("s_and_saveexec_b64 s[44:45], vcc")
    a(f"ds_write_b128 v{vaddr}, v[{T}:{T+3}]")
    if extra: a(extra)
    a("s_mov_b64 exec, s[44:45]")

def common_head(a, name, K, extra_loads=()):
    kernel_begin(a, name)
    a("s_cmp_ge_u32 s2, 256")
    a(f"s_cbranch_scc1 {K}_EXIT")
    a.start()
    a("s_load_dwordx2 s[40:41], s[0:1], 128")
    for l in extra_loads: a(l)
    a("v_and_b32 v1, 63, v0")
    a("v_lshrrev_b32 v2, 6, v0")
    a(f"s_mov_b32 s{MASK}, 0xffff0000")
    a("v_readfirstlane_b32 s3, v2")
    a("s_and_b32 s4, s2, 7")
    a("s_lshr_b32 s5, s2, 6")
    a("s_lshr_b32 s6, s2, 3")
    a("s_and_b32 s6, s6, 7")
    a("s_lshl_b32 s7, s4, 2")
    a("s_add_u32 s7, s7, s5")
    a("v_and_b32 v4, 15, v1")
    a("v_lshrrev_b32 v5, 4, v1")
    a("v_lshlrev_b32 v6, 4, v1")

def gelu_consts(a, CG):
    a(f"v_mov_b32 v{CG}, {fhex(GC1)}")
    a(f"v_mov_b32 v{CG+1}, {fhex(GC1)}")
    a(f"v_mov_b32 v{CG+2}, {fhex(GC0)}")
    a(f"v_mov_b32 v{CG+3}, {fhex(GC0)}")

def gen_gemm5(a, name, K, KS, wname, mode):
    k3, k4, k6 = mode == 'k3', mode == 'k4', mode == 'k6'
    common_head(a, name, K, ["s_load_dwordx2 s[38:39], s[0:1], 112"] if k6 else [])
    NSLOT = KS if KS <= 20 else 36
    SCR = NSLOT * 4096
    if k6: SCR = 0
    LDS = NSLOT * 4096 + (16384 + 1024 if not k6 else 0)
    VD = 8
    if k3:
        a("v_lshrrev_b32 v7, 3, v1")
        a("s_lshl_b32 s16, s3, 3")
        a("v_add_u32 v7, s16, v7")
        a(f"v_lshlrev_b32 v{VD}, 12, v7")
        a("v_bfe_u32 v7, v1, 4, 1")
        a("s_and_b32 s16, s3, 1")
        a("s_lshl_b32 s16, s16, 1")
        a("v_or_b32 v7, s16, v7")
        a("v_lshlrev_b32 v7, 1, v7")
        a("v_and_b32 v12, 7, v1")
        a("v_xor_b32 v7, v7, v12")
        a("v_lshrrev_b32 v12, 2, v7")
        a(f"v_lshl_add_u32 v{VD}, v12, 9, v{VD}")
        a("v_and_b32 v12, 3, v7")
        a(f"v_lshl_add_u32 v{VD}, v12, 4, v{VD}")
        a("s_lshl_b32 s16, s5, 10")
        a("s_lshl_b32 s17, s4, 6")
        a("s_add_u32 s16, s16, s17")
        a(f"s_add_u32 s16, s16, 0x{WS['HT'][0]:x}")
        dstep = 32 * 4096
    elif k4:
        a("s_lshl_b32 s16, s7, 6")
        a("s_lshl_b32 s17, s3, 4")
        a("s_add_u32 s16, s16, s17")
        a("v_add_u32 v7, s16, v4")
        a(f"s_movk_i32 s17, {20*1024}")
        for gi, sh in enumerate((1, -1, 2, -2)):
            a(f"v_add_u32 v12, {-sh}, v7")
            a("v_ashrrev_i32 v13, 4, v12")
            a(f"v_mul_lo_u32 v{VD+gi}, v13, s17")
            a("v_and_b32 v12, 15, v12")
            a(f"v_lshl_add_u32 v{VD+gi}, v12, 4, v{VD+gi}")
            a(f"v_lshl_add_u32 v{VD+gi}, v5, 8, v{VD+gi}")
        a("s_mov_b32 s16, 0")
        dstep = 1024
    else:
        a(f"v_mov_b32 v{VD}, v6")
        a("s_lshl_b32 s16, s7, 2")
        a("s_add_u32 s16, s16, s3")
        a(f"s_mul_i32 s16, s16, {KS*1024}")
        a(f"s_add_u32 s16, s16, 0x{WS['H3F'][0]:x}")
        dstep = 1024
    a("s_lshl_b32 s18, s3, 10")
    a("s_mul_i32 s19, s6, 5")
    a("s_add_u32 s20, s19, 4")
    a("s_add_u32 s19, s19, s3")
    a(f"s_mul_i32 s21, s19, {KS*1024}")
    a(f"s_add_u32 s21, s21, 0x{WS[wname][0]:x}")
    a(f"s_mul_i32 s22, s20, {KS*1024}")
    a("s_add_u32 s22, s22, s18")
    a(f"s_add_u32 s22, s22, 0x{WS[wname][0]:x}")
    a("s_waitcnt lgkmcnt(0)")
    a.stamp(15)
    srd(a, 8, 40, 0, WS_TOTAL)
    if k4:
        srd(a, 12, 40, WS["H1F"][0], ACT)
    asrd = 12 if k4 else 8
    WO, WSH = 0, 4 * KS
    issued = []
    def dma(s):
        slot = s % NSLOT
        a(f"s_add_u32 m0, s18, {slot*4096}")
        vd = VD + (s // 5 if k4 else 0)
        if s:
            a(f"s_add_u32 s16, s16, {dstep}")
        else:
            a("s_nop 0")
        a(f"buffer_load_dwordx4 v{vd}, s[{asrd}:{asrd+3}], s16 offen lds")
        issued.append(("A", s))
    def wload(s):
        a(f"buffer_load_dwordx4 a[{WO+4*s}:{WO+4*s+3}], v6, s[8:11], s21 offen offset:{(s % 4)*1024}")
        if s % 4 == 3: a("s_add_u32 s21, s21, 4096")
        issued.append(("W", s))
        if s % 4 == 0:
            m = s // 4
            a(f"buffer_load_dwordx4 a[{WSH+4*m}:{WSH+4*m+3}], v6, s[8:11], s22 offen")
            a("s_add_u32 s22, s22, 4096")
            issued.append(("S", s))
    if KS == 20:
        first = 20
        stages = [2, 5, 10, 15, 20]
    else:
        first = 24
        stages = [2, 6, 12, 18, 24, 30, 36, 42, 48]
    for s in range(first):
        dma(s); wload(s)
        if KS == 20 and s in (1, 4, 9, 19): a.stamp({1: 10, 4: 11, 9: 12, 19: 13}[s])
    nxt = first
    VT = 12
    if k3:
        a("v_bfe_u32 v16, v1, 2, 2")
        a("v_lshlrev_b32 v17, 3, v5")
        a("v_add_u32 v17, v17, v16")
        a("v_lshlrev_b32 v17, 7, v17")
        a("v_and_b32 v18, 3, v1")
        a("v_lshl_add_u32 v17, v18, 3, v17")
        a("v_lshrrev_b32 v16, 1, v16")
        a("v_and_b32 v18, 1, v5")
        a("v_lshl_or_b32 v16, v18, 1, v16")
        for tl in range(4):
            a(f"s_add_u32 s23, s3, {tl}")
            a("s_and_b32 s23, s23, 3")
            a("v_xor_b32 v18, s23, v16")
            a(f"v_lshl_add_u32 v{VT+tl}, v18, 5, v17")
    else:
        for tl in range(4):
            a(f"s_add_u32 s23, s3, {tl}")
            a("s_and_b32 s23, s23, 3")
            a("s_lshl_b32 s23, s23, 10")
            a(f"v_add_u32 v{VT+tl}, s23, v6")
    def rowaddr(dst, vtt, t0, t1):
        if k3:
            a(f"v_and_b32 v{t0}, 1, v{vtt}")
            a(f"v_lshlrev_b32 v{t0}, 3, v{t0}")
            a(f"v_lshrrev_b32 v{t1}, 2, v4")
            a(f"v_lshl_add_u32 v{t0}, v{t1}, 1, v{t0}")
            a("s_lshl_b32 s23, s4, 4")
            a("s_lshr_b32 s24, s5, 1")
            a("s_add_u32 s23, s23, s24")
            a(f"v_add_u32 v{t0}, s23, v{t0}")
            a(f"v_mul_u32_u24 v{dst}, {20*1024}, v{t0}")
            a(f"v_lshrrev_b32 v{t0}, 1, v{vtt}")
            a(f"v_lshlrev_b32 v{t0}, 2, v{t0}")
            a(f"v_and_b32 v{t1}, 3, v4")
            a(f"v_add_u32 v{t0}, v{t0}, v{t1}")
            a("s_and_b32 s23, s5, 1")
            a("s_lshl_b32 s23, s23, 3")
            a(f"v_add_u32 v{t0}, s23, v{t0}")
            a(f"v_lshl_add_u32 v{dst}, v{t0}, 4, v{dst}")
        else:
            a("s_lshl_b32 s23, s7, 2")
            a(f"v_add_u32 v{t0}, s23, v{vtt}")
            a(f"v_mul_u32_u24 v{dst}, {20*1024}, v{t0}")
            a(f"v_lshl_add_u32 v{dst}, v4, 4, v{dst}")
    VP = 20
    for pr in range(2):
        a("v_and_b32 v16, 1, v5")
        a(f"s_add_u32 s25, s3, {2*pr}")
        a("v_add_u32 v16, s25, v16")
        a("v_and_b32 v16, 3, v16")
        rowaddr(VP + pr, 16, 17, 18)
        a("v_lshrrev_b32 v17, 1, v5")
        a(f"v_lshl_add_u32 v{VP+pr}, v17, 8, v{VP+pr}")
        if k6:
            a("s_lshl_b32 s23, s7, 6")
            a("v_lshl_add_u32 v18, v16, 4, v4")
            a("v_add_u32 v18, s23, v18")
            a(f"v_mul_u32_u24 v{24+pr}, 1280, v18")
            a(f"v_lshl_add_u32 v{24+pr}, v17, 4, v{24+pr}")
    a("v_mov_b32 v16, s3")
    rowaddr(23, 16, 17, 18)
    a("v_lshrrev_b32 v17, 1, v5")
    a("v_lshl_add_u32 v22, v17, 8, v23")
    a("v_and_b32 v17, 1, v5")
    a("v_lshl_add_u32 v22, v17, 3, v22")
    if k6:
        a("s_lshl_b32 s23, s7, 6")
        a("s_lshl_b32 s24, s3, 4")
        a("s_add_u32 s23, s23, s24")
        a("v_add_u32 v18, s23, v4")
        a("v_mul_u32_u24 v26, 1280, v18")
        a("v_lshl_add_u32 v26, v5, 3, v26")
    a("s_lshl_b32 s26, s19, 9")
    a("s_lshl_b32 s27, s20, 9")
    EX = 28
    nextra = 0
    if k3:
        a("v_lshlrev_b32 v16, 4, v5")
        a("s_lshl_b32 s23, s19, 6")
        a(f"s_add_u32 s23, s23, 0x{WS['CS'][0]:x}")
        a(f"buffer_load_dwordx4 v[{EX}:{EX+3}], v16, s[8:11], s23 offen")
        a("s_lshl_b32 s23, s20, 6")
        a(f"s_add_u32 s23, s23, 0x{WS['CS'][0]:x}")
        a(f"buffer_load_dwordx4 v[{EX+4}:{EX+7}], v16, s[8:11], s23 offen")
        issued += [("X", 0)] * 2
    def extra_loads(arrs):
        for ai, arr in enumerate(arrs):
            b = EX + 12 * ai
            a(f"s_add_u32 s23, s26, 0x{WS[arr][0]:x}")
            a(f"buffer_load_dwordx4 v[{b}:{b+3}], v{VP}, s[8:11], s23 offen")
            a(f"buffer_load_dwordx4 v[{b+4}:{b+7}], v{VP+1}, s[8:11], s23 offen")
            a(f"s_add_u32 s23, s27, 0x{WS[arr][0]:x}")
            a(f"buffer_load_dwordx2 v[{b+8}:{b+9}], v22, s[8:11], s23 offen")
            issued.extend([("X", 0)] * 3)
    if k4: extra_loads(["XBF"])
    ACC, ACS, S1, S2, ONES, FR = 56, 72, 88, 92, 96, 100
    CG = 52
    if k3:
        for r in range(4): a(f"v_mov_b32 v{ONES+r}, 0x3f803f80")
        gelu_consts(a, CG)
    for r in range(16): a(f"v_mov_b32 v{ACS+r}, 0")
    rdbase = [0]
    def frag_reads(s):
        slot = s % NSLOT
        b = FR + 16 * (s & 1)
        out = []
        off = slot * 4096 - rdbase[0]
        for tl in range(4):
            if k3:
                out.append(f"ds_read_b64_tr_b16 v[{b+4*tl}:{b+4*tl+1}], v{VT+tl} offset:{off}\n"
                           f"ds_read_b64_tr_b16 v[{b+4*tl+2}:{b+4*tl+3}], v{VT+tl} offset:{off+512}")
            else:
                out.append(f"ds_read_b128 v[{b+4*tl}:{b+4*tl+3}], v{VT+tl} offset:{off}")
        return out
    def rebase(s):
        slot = s % NSLOT
        want = (slot // 12) * 12 * 4096
        if want != rdbase[0]:
            d = want - rdbase[0]
            for tl in range(4):
                a(f"v_add_u32 v{VT+tl}, {d & 0xffffffff}, v{VT+tl}")
            rdbase[0] = want
    s0 = 0
    for st, s1 in enumerate(stages):
        last = max(idx for idx, tg in enumerate(issued) if tg[0] in "AWS" and tg[1] <= s1 - 1)
        if st == 0: a.stamp(4)
        a(f"s_waitcnt vmcnt({len(issued) - 1 - last})")
        a("s_barrier")
        if st < 9: a.stamp(5 + st)
        if KS > 20:
            lim = min(KS, s0 + 24)
            while nxt < lim:
                assert nxt < NSLOT or (nxt - NSLOT) < s0
                dma(nxt); wload(nxt); nxt += 1
            if nxt == KS and not any(t[0] == "X" for t in issued):
                extra_loads(["X1F", "HF"])
        rebase(s0)
        for r in frag_reads(s0): a(r)
        for s in range(s0, s1):
            b = FR + 16 * (s & 1)
            a("s_waitcnt lgkmcnt(0)")
            pre = []
            if s + 1 < s1:
                rebase(s + 1)
                pre = frag_reads(s + 1)
            for tl in range(4):
                c = "0" if s == 0 else f"v[{ACC+4*tl}:{ACC+4*tl+3}]"
                a(f"v_mfma_f32_16x16x32_bf16 v[{ACC+4*tl}:{ACC+4*tl+3}], a[{WO+4*s}:{WO+4*s+3}], v[{b+4*tl}:{b+4*tl+3}], {c}")
                if pre: a(pre[tl])
            if k3:
                c1 = "0" if s == 0 else f"v[{S1}:{S1+3}]"
                c2 = "0" if s == 0 else f"v[{S2}:{S2+3}]"
                a(f"v_mfma_f32_16x16x32_bf16 v[{S1}:{S1+3}], v[{ONES}:{ONES+3}], v[{b}:{b+3}], {c1}")
                a(f"v_mfma_f32_16x16x32_bf16 v[{S2}:{S2+3}], v[{b}:{b+3}], v[{b}:{b+3}], {c2}")
            lb = a.newlabel(f"{K}_SK")
            a(f"s_cmp_lg_u32 s3, {s & 3}")
            a(f"s_cbranch_scc1 {lb}")
            m = s // 4
            for tl in range(4):
                a(f"v_mfma_f32_16x16x32_bf16 v[{ACS+4*tl}:{ACS+4*tl+3}], a[{WSH+4*m}:{WSH+4*m+3}], v[{b+4*tl}:{b+4*tl+3}], v[{ACS+4*tl}:{ACS+4*tl+3}]")
            a.label(lb)
        s0 = s1
    a.stamp(14)
    T = FR
    if k6:
        SCR = 16 * 4096
    STAT = SCR + 16384
    a("s_nop 7")
    for tl in range(4):
        a(f"s_add_u32 s23, s3, {tl}")
        a("s_and_b32 s23, s23, 3")
        a("s_lshl_b32 s23, s23, 12")
        a("s_add_u32 s23, s23, s18")
        a(f"s_add_u32 s23, s23, {SCR}")
        a(f"v_add_u32 v16, s23, v6")
        a(f"ds_write_b128 v16, v[{ACS+4*tl}:{ACS+4*tl+3}]")
    if k3:
        a("s_lshl_b32 s23, s3, 8")
        a(f"s_add_u32 s23, s23, {STAT}")
        a("v_lshl_add_u32 v16, v4, 4, s23")
        stats_calc(a, S1, S2, 4, 5, T, True, 16)
    a("s_waitcnt lgkmcnt(0)")
    a("s_barrier")
    a("s_lshl_b32 s23, s3, 12")
    a(f"s_add_u32 s23, s23, {SCR}")
    a("v_add_u32 v16, s23, v6")
    for w in range(4):
        a(f"ds_read_b128 v[{ACS+4*w}:{ACS+4*w+3}], v16 offset:{1024*w}")
    AB = S1
    if k3:
        for tl in range(4):
            a(f"s_add_u32 s23, s3, {tl}")
            a("s_and_b32 s23, s23, 3")
            a("s_lshl_b32 s23, s23, 8")
            a(f"s_add_u32 s23, s23, {STAT}")
            a("v_lshl_add_u32 v16, v4, 4, s23")
            a(f"ds_read_b64 v[{AB+2*tl}:{AB+2*tl+1}], v16")
            if tl == 0:
                a(f"ds_read_b64 v[{ONES}:{ONES+1}], v16 offset:8")
        a("s_lshl_b32 s23, s6, 12")
        a(f"s_sub_u32 s23, s23, {rdbase[0]}")
        a(f"v_add_u32 v16, s23, v{VT}")
        a(f"v_add_u32 v17, 0x10000, v16")
        HR = FR + 16
        for m in range(3):
            va, off = (16, 32768 * m) if m < 2 else (17, 0)
            a(f"ds_read_b64_tr_b16 v[{HR+4*m}:{HR+4*m+1}], v{va} offset:{off}")
            a(f"ds_read_b64_tr_b16 v[{HR+4*m+2}:{HR+4*m+3}], v{va} offset:{off+512}")
    a("s_waitcnt vmcnt(0) lgkmcnt(0)")
    for r in range(4):
        a(f"v_add_f32 v{ACS+r}, v{ACS+r}, v{ACS+4+r}")
        a(f"v_add_f32 v{ACS+8+r}, v{ACS+8+r}, v{ACS+12+r}")
    for r in range(4):
        a(f"v_add_f32 v{ACS+r}, v{ACS+r}, v{ACS+8+r}")
    O = ACS + 4
    def unpack(dst, src, n):
        for m in range(n):
            a(f"v_lshlrev_b32 v{dst+2*m}, 16, v{src+m}")
            a(f"v_and_b32 v{dst+2*m+1}, s{MASK}, v{src+m}")
    def addres(P, n, res):
        unpack(T, P, n)
        unpack(T + 8, res, n)
        for m in range(n):
            a(f"v_pk_add_f32 v[{T+2*m}:{T+2*m+1}], v[{T+2*m}:{T+2*m+1}], v[{T+8+2*m}:{T+8+2*m+1}]")
        for m in range(n):
            a(f"v_cvt_pk_bf16_f32 v{P+m}, v{T+2*m}, v{T+2*m+1}")
    outarr = {'k3': 'H1F', 'k4': 'X1F'}.get(mode)
    if k6:
        srd(a, 12, 38, 0, ACT)
        a("s_lshl_b32 s26, s19, 5")
        a("s_lshl_b32 s27, s20, 5")
    else:
        a(f"s_add_u32 s26, s26, 0x{WS[outarr][0]:x}")
        a(f"s_add_u32 s27, s27, 0x{WS[outarr][0]:x}")
    for pr in range(2):
        P = O + 4 * pr
        for h in range(2):
            tl = 2 * pr + h
            X = ACC + 4 * tl
            if k3:
                ln_apply_gelu(a, X, AB + 2 * tl, EX, T, CG, P + 2 * h)
            else:
                a(f"v_cvt_pk_bf16_f32 v{P+2*h}, v{X}, v{X+1}")
                a(f"v_cvt_pk_bf16_f32 v{P+2*h+1}, v{X+2}, v{X+3}")
        swap_pair(a, P)
        if k4: addres(P, 4, EX + 4 * pr)
        if k6:
            addres(P, 4, EX + 4 * pr)
            addres(P, 4, EX + 12 + 4 * pr)
            a(f"buffer_store_dwordx4 v[{P}:{P+3}], v{24+pr}, s[12:15], s26 offen")
        else:
            a(f"buffer_store_dwordx4 v[{P}:{P+3}], v{VP+pr}, s[8:11], s26 offen")
    P = O + 8
    if k3:
        ln_apply_gelu(a, ACS, AB, EX + 4, T, CG, P)
    else:
        a(f"v_cvt_pk_bf16_f32 v{P}, v{ACS}, v{ACS+1}")
        a(f"v_cvt_pk_bf16_f32 v{P+1}, v{ACS+2}, v{ACS+3}")
    if k4: addres(P, 2, EX + 8)
    if k6:
        addres(P, 2, EX + 8)
        addres(P, 2, EX + 12 + 8)
        a(f"buffer_store_dwordx2 v[{P}:{P+1}], v26, s[12:15], s27 offen")
    else:
        a(f"buffer_store_dwordx2 v[{P}:{P+1}], v22, s[8:11], s27 offen")
    if k3:
        a("v_lshl_add_u32 v16, v5, 8, v23")
        a("s_lshl_b32 s23, s6, 10")
        a(f"s_add_u32 s24, s23, 0x{WS['XBF'][0]:x}")
        a(f"s_add_u32 s23, s23, 0x{WS['HF'][0]:x}")
        for m in range(3):
            if m == 2:
                a("s_cmp_ge_u32 s6, 4")
                a(f"s_cbranch_scc1 {K}_END")
            H = HR + 4 * m
            a(f"buffer_store_dwordx4 v[{H}:{H+3}], v16, s[8:11], s23 offen")
            unpack(T, H, 4)
            for p in range(0, 8, 2):
                a(f"v_pk_add_f32 v[{T+p}:{T+p+1}], v[{T+p}:{T+p+1}], v[{ONES}:{ONES+1}] op_sel_hi:[1,0] neg_lo:[0,1] neg_hi:[0,1]")
            for p in range(0, 8, 2):
                rbf2(a, T + p, T + p + 1, T + 8)
            for p in range(0, 8, 2):
                a(f"v_pk_mul_f32 v[{T+p}:{T+p+1}], v[{T+p}:{T+p+1}], v[{ONES}:{ONES+1}] op_sel:[0,1] op_sel_hi:[1,1]")
            XO = ACC + 4 * m
            for p in range(4):
                a(f"v_cvt_pk_bf16_f32 v{XO+p}, v{T+2*p}, v{T+2*p+1}")
            a(f"buffer_store_dwordx4 v[{XO}:{XO+3}], v16, s[8:11], s24 offen")
            a("s_add_u32 s23, s23, 8192")
            a("s_add_u32 s24, s24, 8192")
    a.label(f"{K}_END")
    a.endk()
    a.label(f"{K}_EXIT")
    a("s_endpgm")
    nagpr = 4 * KS + KS
    return dict(name=name, grid=256, block=256, lds=LDS, vgpr=132 + nagpr, accum=132)

def gen_k5(a, name):
    K = "K5"
    KS = 20
    common_head(a, name, K)
    SCR = KS * 4096
    STAT = SCR
    LDS = SCR + 1024
    a("s_lshl_b32 s16, s7, 2")
    a("s_add_u32 s16, s16, s3")
    a(f"s_mul_i32 s16, s16, {KS*1024}")
    a(f"s_add_u32 s16, s16, 0x{WS['X1F'][0]:x}")
    a("s_lshl_b32 s18, s3, 10")
    a("s_mul_i32 s19, s6, 12")
    a("s_mul_i32 s20, s3, 3")
    a("s_add_u32 s19, s19, s20")
    a(f"s_mul_i32 s21, s19, {KS*1024}")
    a(f"s_add_u32 s21, s21, 0x{WS['WP3'][0]:x}")
    a(f"s_add_u32 s22, s21, {KS*1024}")
    a(f"s_add_u32 s28, s22, {KS*1024}")
    a("s_waitcnt lgkmcnt(0)")
    srd(a, 8, 40, 0, WS_TOTAL)
    issued = []
    def dma(s):
        a(f"s_add_u32 m0, s18, {s*4096}")
        if s: a("s_add_u32 s16, s16, 1024")
        else: a("s_nop 0")
        a("buffer_load_dwordx4 v6, s[8:11], s16 offen lds")
        issued.append(("A", s))
    def wload(jj, s):
        sg = (21, 22, 28)[jj]
        b = 80 * jj + 4 * s
        a(f"buffer_load_dwordx4 a[{b}:{b+3}], v6, s[8:11], s{sg} offen offset:{(s % 4)*1024}")
        if s % 4 == 3: a(f"s_add_u32 s{sg}, s{sg}, 4096")
        issued.append(("W" if jj < 2 else "V", s))
    for s in range(KS):
        dma(s); wload(0, s); wload(1, s)
    VT = 12
    for tl in range(4):
        a(f"s_add_u32 s23, s3, {tl}")
        a("s_and_b32 s23, s23, 3")
        a("s_lshl_b32 s23, s23, 10")
        a(f"v_add_u32 v{VT+tl}, s23, v6")
    VP = 20
    for pr in range(2):
        a("v_and_b32 v16, 1, v5")
        a(f"s_add_u32 s25, s3, {2*pr}")
        a("v_add_u32 v16, s25, v16")
        a("v_and_b32 v16, 3, v16")
        a("s_lshl_b32 s23, s7, 2")
        a("v_add_u32 v17, s23, v16")
        a(f"v_mul_u32_u24 v{VP+pr}, {48*1024}, v17")
        a(f"v_lshl_add_u32 v{VP+pr}, v4, 4, v{VP+pr}")
        a("v_lshrrev_b32 v17, 1, v5")
        a(f"v_lshl_add_u32 v{VP+pr}, v17, 8, v{VP+pr}")
    a("s_lshl_b32 s26, s19, 9")
    a(f"s_add_u32 s26, s26, 0x{WS['H3F'][0]:x}")
    EX = 28
    CG = 24
    ACC, S1, S2, ONES, FR, T, O = 40, 88, 92, 96, 100, 132, 148
    a("v_lshlrev_b32 v16, 4, v5")
    a("s_lshl_b32 s23, s19, 6")
    a(f"s_add_u32 s23, s23, 0x{WS['CS'][0] + 640*4:x}")
    for jj in range(3):
        a(f"buffer_load_dwordx4 v[{EX+4*jj}:{EX+4*jj+3}], v16, s[8:11], s23 offen offset:{64*jj}")
        issued.append(("X", 0))
    for r in range(4): a(f"v_mov_b32 v{ONES+r}, 0x3f803f80")
    gelu_consts(a, CG)
    rdbase = [0]
    def frag_reads(s):
        b = FR + 16 * (s & 1)
        off = s * 4096 - rdbase[0]
        return [f"ds_read_b128 v[{b+4*tl}:{b+4*tl+3}], v{VT+tl} offset:{off}" for tl in range(4)]
    def rebase(s):
        want = (s // 12) * 12 * 4096
        if want != rdbase[0]:
            d = want - rdbase[0]
            for tl in range(4):
                a(f"v_add_u32 v{VT+tl}, {d & 0xffffffff}, v{VT+tl}")
            rdbase[0] = want
    stages = [2, 5, 10, 15, 20]
    s0 = 0
    nv = 0
    for st, s1 in enumerate(stages):
        last = max(idx for idx, tg in enumerate(issued) if tg[0] in "AW" and tg[1] <= s1 - 1)
        if st == 0: a.stamp(4)
        a(f"s_waitcnt vmcnt({len(issued) - 1 - last})")
        a("s_barrier")
        if st < 9: a.stamp(5 + st)
        lim = min(KS, 3 * s1)
        while nv < lim:
            wload(2, nv); nv += 1
        rebase(s0)
        for r in frag_reads(s0): a(r)
        for s in range(s0, s1):
            b = FR + 16 * (s & 1)
            a("s_waitcnt lgkmcnt(0)")
            pre = []
            if s + 1 < s1:
                rebase(s + 1)
                pre = frag_reads(s + 1)
            for jj in range(2):
                for tl in range(4):
                    d = ACC + 16 * jj + 4 * tl
                    c = "0" if s == 0 else f"v[{d}:{d+3}]"
                    a(f"v_mfma_f32_16x16x32_bf16 v[{d}:{d+3}], a[{80*jj+4*s}:{80*jj+4*s+3}], v[{b+4*tl}:{b+4*tl+3}], {c}")
                    if pre and jj == 0: a(pre[tl])
            c1 = "0" if s == 0 else f"v[{S1}:{S1+3}]"
            c2 = "0" if s == 0 else f"v[{S2}:{S2+3}]"
            a(f"v_mfma_f32_16x16x32_bf16 v[{S1}:{S1+3}], v[{ONES}:{ONES+3}], v[{b}:{b+3}], {c1}")
            a(f"v_mfma_f32_16x16x32_bf16 v[{S2}:{S2+3}], v[{b}:{b+3}], v[{b}:{b+3}], {c2}")
        s0 = s1
    a.stamp(10)
    a("s_lshl_b32 s23, s3, 8")
    a(f"s_add_u32 s23, s23, {STAT}")
    a("v_lshl_add_u32 v16, v4, 4, s23")
    a("s_nop 6")
    stats_calc(a, S1, S2, 4, 5, T, False, 16)
    a("s_waitcnt lgkmcnt(0)")
    a("s_barrier")
    AB = S1
    for tl in range(4):
        a(f"s_add_u32 s23, s3, {tl}")
        a("s_and_b32 s23, s23, 3")
        a("s_lshl_b32 s23, s23, 8")
        a(f"s_add_u32 s23, s23, {STAT}")
        a("v_lshl_add_u32 v16, v4, 4, s23")
        a(f"ds_read_b64 v[{AB+2*tl}:{AB+2*tl+1}], v16")
    rebase(0)
    for r in frag_reads(0): a(r)
    a("s_waitcnt vmcnt(0)")
    a.stamp(11)
    def epi(jj):
        for pr in range(2):
            P = O + 4 * pr
            for h in range(2):
                tl = 2 * pr + h
                ln_apply_gelu(a, ACC + 16 * jj + 4 * tl, AB + 2 * tl, EX + 4 * jj, T, CG, P + 2 * h)
            swap_pair(a, P)
            a(f"buffer_store_dwordx4 v[{P}:{P+3}], v{VP+pr}, s[8:11], s26 offen offset:{512*jj}")
    for s in range(KS):
        b = FR + 16 * (s & 1)
        a("s_waitcnt lgkmcnt(0)")
        pre = []
        if s + 1 < KS:
            rebase(s + 1)
            pre = frag_reads(s + 1)
        for tl in range(4):
            d = ACC + 32 + 4 * tl
            c = "0" if s == 0 else f"v[{d}:{d+3}]"
            a(f"v_mfma_f32_16x16x32_bf16 v[{d}:{d+3}], a[{160+4*s}:{160+4*s+3}], v[{b+4*tl}:{b+4*tl+3}], {c}")
            if pre: a(pre[tl])
    a.stamp(14)
    epi(0); epi(1); epi(2)
    a.label(f"{K}_END")
    a.endk()
    a.label(f"{K}_EXIT")
    a("s_endpgm")
    return dict(name=name, grid=256, block=256, lds=LDS, vgpr=156 + 240, accum=156)
```

```python
L, D, N, F = 2048, 640, 192, 1536
def _al(x, a=4096): return (x + a - 1) // a * a
_off = 0
WS = {}
def _alloc(name, size):
    global _off
    WS[name] = (_off, size)
    _off = _al(_off + size)
ACT = L * D * 2
_alloc("CNT", 224 * 256)
_alloc("U2", ACT)
_alloc("X2", ACT)
_alloc("HT", ACT)
_alloc("WP1", D * D * 2)
_alloc("WP2", D * D * 2)
_alloc("WP3", D * F * 2)
_alloc("WP4", D * F * 2)
_alloc("HF", ACT)
_alloc("RS", L * 8)
_alloc("H1F", ACT)
_alloc("X1F", ACT)
_alloc("H3F", L * F * 2)
WS_TOTAL = _off
C_A, R_A, C_B, R_B, C_G2, C_G3A, C_G3B, C_C, R_C, C_G1 = 0, 8, 16, 24, 32, 64, 96, 128, 136, 145
C_B2 = R_B2 = None
if __name__ == "__main__":
    for k, v in WS.items(): print(k, hex(v[0]), v[1])
    print(hex(WS_TOTAL))
```
